```python
import torch

def _softmax(x, axis=-1):
    return torch.softmax(x, dim=axis)
def _gelu(x):
    return torch.nn.functional.gelu(x, approximate="tanh")
def _silu(x):
    return torch.nn.functional.silu(x)
def _sigmoid(x):
    return torch.sigmoid(x)
def _layernorm(x, axis=-1, eps=1e-5):
    m = x.mean(dim=axis, keepdim=True)
    v = x.var(dim=axis, keepdim=True, unbiased=False)
    return (x - m) / torch.sqrt(v + eps)
def _scatter_add(tgt, idx, src, axis=0):
    return tgt.clone().index_add_(axis, idx, src)
def _segment_sum(src, seg, n):
    out = torch.zeros((n,) + src.shape[1:], dtype=src.dtype)
    return out.index_add_(0, seg, src)
def _pad(x, pw):
    flat = tuple(v for pair in reversed(pw) for v in pair)
    return torch.nn.functional.pad(x, flat)

kernel_name = 'concat_heads__mha_block_cached__mha_block_cached__near_ridge'

def setup_inputs():

    _w = (lambda a: (lambda t: t.to(torch.bfloat16) if t.is_floating_point() else t)(torch.as_tensor(a)))
    def _A_setup():
        B, Sq, D = 16, 32, 1024
        H, Sk, Dh = 32, 32, 128
        return {
            "x": _w((lambda *s: torch.randn(*s, dtype=torch.bfloat16) * 0.8)(B, Sq, D)),
            "k_cache": _w((lambda *s: torch.randn(*s, dtype=torch.bfloat16) * 0.8)(B, H, Sk, Dh)),
            "v_cache": _w((lambda *s: torch.randn(*s, dtype=torch.bfloat16) * 0.05)(B, H, Sk, Dh)),
            "wq": _w((lambda *s: torch.randn(*s, dtype=torch.bfloat16) * 0.8)(D, H * Dh) * (D ** -0.5)),
            "wo": _w((lambda *s: torch.randn(*s, dtype=torch.bfloat16) * 0.05)(H * Dh, D) * ((H * Dh) ** -0.5)),
        }
    _A_in = _A_setup()

    def _B_setup():
        B, Sq, D = 16, 32, 1024
        H, Sk, Dh = 32, 32, 128
        return {
            "x": _w((lambda *s: torch.randn(*s, dtype=torch.bfloat16) * 0.8)(B, Sq, D)),
            "k_cache": _w((lambda *s: torch.randn(*s, dtype=torch.bfloat16) * 0.8)(B, H, Sk, Dh)),
            "v_cache": _w((lambda *s: torch.randn(*s, dtype=torch.bfloat16) * 0.05)(B, H, Sk, Dh)),
            "wq": _w((lambda *s: torch.randn(*s, dtype=torch.bfloat16) * 0.8)(D, H * Dh) * (D ** -0.5)),
            "wo": _w((lambda *s: torch.randn(*s, dtype=torch.bfloat16) * 0.05)(H * Dh, D) * ((H * Dh) ** -0.5)),
        }
    _B_in = _B_setup()

    return {
        "A_x": _A_in["x"],
        "A_k_cache": _A_in["k_cache"],
        "A_v_cache": _A_in["v_cache"],
        "A_wq": _A_in["wq"],
        "A_wo": _A_in["wo"],
        "B_x": _B_in["x"],
        "B_k_cache": _B_in["k_cache"],
        "B_v_cache": _B_in["v_cache"],
        "B_wq": _B_in["wq"],
        "B_wo": _B_in["wo"],
    }

def reference(A_x, A_k_cache, A_v_cache, A_wq, A_wo, B_x, B_k_cache, B_v_cache, B_wq, B_wo):
    def _A_ref(x, k_cache, v_cache, wq, wo):
        B, Sq, D = x.shape
        H, Dh = 32, 128
        q = (lambda x, *d: x.permute(*d))((x @ wq).reshape(B, Sq, H, Dh), 0, 2, 1, 3)
        scores = torch.einsum("bhqd,bhkd->bhqk", q, k_cache) * (Dh ** -0.5)
        p = _softmax(scores, axis=-1)
        o = torch.einsum("bhqk,bhkd->bhqd", p, v_cache)
        return (lambda x, *d: x.permute(*d))(o, 0, 2, 1, 3).reshape(B, Sq, H * Dh) @ wo

    def _B_ref(x, k_cache, v_cache, wq, wo):
        B, Sq, D = x.shape
        H, Dh = 32, 128
        q = (lambda x, *d: x.permute(*d))((x @ wq).reshape(B, Sq, H, Dh), 0, 2, 1, 3)
        scores = torch.einsum("bhqd,bhkd->bhqk", q, k_cache) * (Dh ** -0.5)
        p = _softmax(scores, axis=-1)
        o = torch.einsum("bhqk,bhkd->bhqd", p, v_cache)
        return (lambda x, *d: x.permute(*d))(o, 0, 2, 1, 3).reshape(B, Sq, H * Dh) @ wo

    a = _A_ref(A_x, A_k_cache, A_v_cache, A_wq, A_wo)
    b = _B_ref(B_x, B_k_cache, B_v_cache, B_wq, B_wo)
    return torch.concatenate([a, b], axis=-1)
```

```python
import sys, argparse
NAME = "concat_heads__mha_block_cached__mha_block_cached__near_ridge"

class Asm:
    def __init__(self): self.L = []
    def __call__(self, s): self.L.append("    " + s)
    def lab(self, s): self.L.append(s + ":")
    def c(self, s): self.L.append("    ; " + s)
    def raw(self, s): self.L.append(s)
    def text(self): return "\n".join(self.L) + "\n"

EPOCH = 0; PFLAG = 4096; XFLAG = 65536; PBUF = 0x100000; XBUF = 0x400000; WS_REC = 0xC00000
SLOT = 32768; NS = 5
S_BR, S_KQ, S_RB, S_IDX, S_WAVE = 3, 4, 5, 6, 7
SRD_X, SRD_K, SRD_V, SRD_WQ, SRD_WO, SRD_WS, SRD_OUT = 8, 12, 16, 20, 24, 28, 32
S_TAG = 36
S_CL = 38
S_HG = 39
S_T0, S_T1, S_T2, S_T3 = 40, 41, 42, 43
S_CNT = 44; S_SLOT = 45; S_DELTA = 46; S_OFFR = 47; S_OFFW = 48; S_PB = 49; S_C = 50
S_ST = 60
def srd(b): return f"s[{b}:{b+3}]"
V_AR = 8; V_AW = 12; V_R = 16; V_W = 24; V_P = 40; V_BF = 48; V_KF = 80; V_PN = 80; V_S = 112; V_ACC = 128; V_OUT = 192
def vr(b, n): return f"v[{b}:{b+n-1}]"

def gen(opt):
    a = Asm()
    a.raw(f"; @launch grid=(256,1,1) block=(512,1,1) lds={SLOT*NS}")
    a.raw('.amdgcn_target "amdgcn-amd-amdhsa--gfx950"')
    a.raw(".text"); a.raw(f".globl {NAME}_kernel"); a.raw(".p2align 8"); a.raw(f".type {NAME}_kernel,@function")
    a.lab(f"{NAME}_kernel")
    nst = [0]
    def stamp():
        if opt.stamps:
            r = S_ST + 2 * nst[0]; nst[0] += 1
            a(f"s_memrealtime s[{r}:{r+1}]")
    stamp()
    a("s_cmp_ge_u32 s2, 256"); a("s_cbranch_scc1 L_end")
    a("s_and_b32 s40, s2, 7")
    a(f"s_lshr_b32 s{S_BR}, s40, 2"); a(f"s_and_b32 s{S_KQ}, s40, 3")
    a(f"s_mul_i32 s41, s{S_BR}, 40")
    a("s_add_u32 s42, s0, s41"); a("s_addc_u32 s43, s1, 0")
    a(f"s_load_dwordx2 s[{SRD_X}:{SRD_X+1}], s[42:43], 0")
    a(f"s_load_dwordx2 s[{SRD_WQ}:{SRD_WQ+1}], s[42:43], 24")
    a(f"s_load_dwordx2 s[{SRD_K}:{SRD_K+1}], s[42:43], 8")
    a(f"s_load_dwordx2 s[{SRD_V}:{SRD_V+1}], s[42:43], 16")
    a(f"s_load_dwordx2 s[{SRD_WO}:{SRD_WO+1}], s[42:43], 32")
    a(f"s_load_dwordx2 s[{SRD_WS}:{SRD_WS+1}], s[0:1], 96")
    a(f"s_load_dwordx2 s[{SRD_OUT}:{SRD_OUT+1}], s[0:1], 80")
    a(f"s_lshr_b32 s{S_RB}, s2, 6"); a(f"s_bfe_u32 s{S_IDX}, s2, 0x30003")
    a("v_lshrrev_b32 v1, 6, v0"); a("v_and_b32 v0, 63, v0")
    a(f"s_lshl_b32 s{S_CL}, s{S_BR}, 2"); a(f"s_add_u32 s{S_CL}, s{S_CL}, s{S_RB}")
    a(f"v_readfirstlane_b32 s{S_WAVE}, v1")
    a(f"s_lshl_b32 s{S_HG}, s{S_KQ}, 3"); a(f"s_add_u32 s{S_HG}, s{S_HG}, s{S_IDX}")
    for b, n in ((SRD_X, 0x100000), (SRD_K, 0x400000), (SRD_V, 0x400000), (SRD_WQ, 0x800000), (SRD_WO, 0x800000), (SRD_WS, WS_REC), (SRD_OUT, 0x200000)):
        a(f"s_mov_b32 s{b+2}, {hex(n)}"); a(f"s_mov_b32 s{b+3}, 0x20000")
    a(f"s_cmp_ge_u32 s{S_WAVE}, 4"); a("s_cbranch_scc1 L_helpers")

    a.c("---- compute wave setup")
    if opt.prio: a(f"s_setprio {opt.prio}")
    a("v_and_b32 v1, 31, v0"); a("v_lshrrev_b32 v2, 5, v0")
    a(f"s_lshl_b32 s40, s{S_WAVE}, 12")
    a("v_lshrrev_b32 v3, 1, v1"); a("v_and_b32 v3, 7, v3"); a("v_xor_b32 v3, v3, v2"); a("v_lshlrev_b32 v3, 4, v3")
    a("v_lshl_add_u32 v3, v1, 7, v3"); a(f"v_add_u32 v{V_AR}, s40, v3")
    for s in range(1, 4): a(f"v_xor_b32 v{V_AR+s}, {32*s}, v{V_AR}")
    a("v_bfe_u32 v5, v0, 2, 2")
    a("v_lshl_add_u32 v4, v2, 3, v5"); a("v_lshlrev_b32 v4, 8, v4")
    a("v_bfe_u32 v6, v0, 4, 1"); a("v_lshl_add_u32 v4, v6, 5, v4")
    a("v_and_b32 v6, 1, v0"); a("v_lshl_add_u32 v4, v6, 4, v4")
    a("v_bfe_u32 v6, v0, 1, 1"); a("v_lshl_add_u32 v4, v6, 3, v4")
    a("v_add_u32 v4, 16384, v4")
    for t in range(4):
        a(f"v_xor_b32 v6, {t}, v5"); a(f"v_lshl_add_u32 v{V_AW+t}, v6, 6, v4")
    a("s_waitcnt lgkmcnt(0)")
    a(f"s_lshl_b32 s40, s{S_CL}, 7")
    a(f"s_load_dwordx2 s[{S_TAG}:{S_TAG+1}], s[{SRD_WS}:{SRD_WS+1}], s40")
    for i in range(64): a(f"v_mov_b32 v{V_ACC+i}, 0")
    for i in range(64): a(f"v_mov_b32 v{V_OUT+i}, 0")
    a(f"s_mov_b32 s{S_SLOT}, 0"); a(f"s_mov_b32 s56, {SLOT}")
    a(f"s_mov_b32 s{S_C}, 0x3e0293ee")
    a("v_lshlrev_b32 v7, 4, v0")
    a("s_waitcnt lgkmcnt(0)")
    a(f"s_mul_i32 s{S_TAG}, s{S_TAG}, 0x9e3779b1"); a(f"s_add_u32 s{S_TAG}, s{S_TAG}, 0x7f4a7c15")
    a(f"s_mul_i32 s{S_TAG+1}, s{S_TAG+1}, 0x85ebca6b"); a(f"s_add_u32 s{S_TAG+1}, s{S_TAG+1}, 0xc2b2ae35")
    a("s_barrier")
    stamp()

    def rd_R(s, dst): a(f"ds_read_b128 {vr(V_R+4*dst,4)}, v{V_AR+s}")
    def rd_W(s, t):
        a(f"ds_read_b64_tr_b16 {vr(V_W+4*t,2)}, v{V_AW+t} offset:{s*4096}")
        a(f"ds_read_b64_tr_b16 {vr(V_W+4*t+2,2)}, v{V_AW+t} offset:{s*4096+1024}")
    def first_reads():
        rd_R(0, 0)
        for t in range(4): rd_W(0, t)
    def next_delta():
        a(f"s_add_u32 s{S_SLOT}, s{S_SLOT}, 1"); a(f"s_cmp_eq_u32 s{S_SLOT}, {NS}")
        a(f"s_cselect_b32 s{S_DELTA}, {hex((-(NS-1)*SLOT) & 0xffffffff)}, s56")
        a(f"s_cselect_b32 s{S_SLOT}, 0, s{S_SLOT}")
    def item(phase, zero_first=False, bar=True, hooks=None):
        hooks = hooks or {}
        for s in range(4):
            for t in range(4):
                a(f"s_waitcnt lgkmcnt({6 if t == 0 else 7})")
                acc = vr(V_ACC + 16*t, 16); C = "0" if (zero_first and s == 0) else acc
                W = vr(V_W + 4*t, 4); R = vr(V_R + 4*(s % 2), 4)
                if phase == 1: a(f"v_mfma_f32_32x32x16_bf16 {acc}, {W}, {R}, {C}")
                else:          a(f"v_mfma_f32_32x32x16_bf16 {acc}, {R}, {W}, {C}")
                ns = (s + 1) % 4
                if s == 3: a(f"v_add_u32 v{V_AW+t}, s{S_DELTA}, v{V_AW+t}")
                if t == 0: rd_R(ns, (s + 1) % 2)
                rd_W(ns, t)
                if s == 0 and t == 1: next_delta()
                if s == 0 and t == 2: a(f"v_add_u32 v{V_AR}, s{S_DELTA}, v{V_AR}")
                if t == 1 and s in (1, 2): a(f"v_add_u32 v{V_AR+s}, s{S_DELTA}, v{V_AR+s}")
                if t == 2 and s == 2: a(f"v_add_u32 v{V_AR+3}, s{S_DELTA}, v{V_AR+3}")
                if bar and s == opt.barstep and t == 3: a("s_barrier")
                if (s, t) in hooks: hooks[(s, t)]()

    first_reads()
    a(f"s_mov_b32 s{S_CNT}, 16")
    a.lab("L_p1")
    item(1)
    a(f"s_sub_u32 s{S_CNT}, s{S_CNT}, 1"); a(f"s_cmp_lg_u32 s{S_CNT}, 0"); a("s_cbranch_scc1 L_p1")
    stamp()
    a.c("---- scores")
    a("s_waitcnt lgkmcnt(0)")
    for t in range(4):
        for u in range(2):
            a(f"ds_read_b128 {vr(V_KF + 4*(2*t+u), 4)}, v{V_AR + (t % 2)*2 + u} offset:{(t//2)*16384}")
    next_delta()
    for s in range(4): a(f"v_add_u32 v{V_AR+s}, s{S_DELTA}, v{V_AR+s}")
    a(f"v_add_u32 v{V_AW}, s{S_DELTA}, v{V_AW}")
    a(f"v_lshlrev_b32 v6, 6, v5"); a(f"v_sub_u32 v4, v{V_AW}, v6")
    for t in range(4):
        a(f"s_add_u32 s40, s{S_KQ}, {t}"); a("s_and_b32 s40, s40, 3")
        a(f"v_xor_b32 v6, s40, v5"); a(f"v_lshl_add_u32 v{V_AW+t}, v6, 6, v4")
    for i in range(32): a(f"v_cvt_pk_bf16_f32 v{V_BF+i}, v{V_ACC+2*i}, v{V_ACC+2*i+1}")
    a("s_waitcnt lgkmcnt(0)")
    a("s_barrier")
    first_reads()
    for j in range(8):
        C = "0" if j == 0 else vr(V_S, 16)
        a(f"v_mfma_f32_32x32x16_bf16 {vr(V_S,16)}, {vr(V_KF+4*j,4)}, {vr(V_BF+4*j,4)}, {C}")
    a("s_nop 15")
    a.c("---- softmax over keys (16 regs x 2 halves)")
    S = lambda i: f"v{V_S+i}"
    a(f"v_max3_f32 v1, {S(0)}, {S(1)}, {S(2)}")
    for i in range(3, 15, 2): a(f"v_max3_f32 v1, v1, {S(i)}, {S(i+1)}")
    a(f"v_max_f32 v1, v1, {S(15)}")
    a("v_mov_b32 v2, v1"); a("s_nop 1"); a("v_permlane32_swap_b32 v1, v2"); a("s_nop 1")
    a("v_max_f32 v1, v1, v2"); a(f"v_mul_f32 v1, s{S_C}, v1")
    for i in range(16): a(f"v_fma_f32 {S(i)}, {S(i)}, s{S_C}, -v1")
    for i in range(16): a(f"v_exp_f32 {S(i)}, {S(i)}")
    a("s_nop 0")
    a(f"v_add_f32 v1, {S(0)}, {S(1)}"); a(f"v_add_f32 v2, {S(2)}, {S(3)}")
    for i in range(4, 16, 2):
        a(f"v_add_f32 v1, v1, {S(i)}"); a(f"v_add_f32 v2, v2, {S(i+1)}")
    a("v_add_f32 v1, v1, v2")
    a("v_mov_b32 v2, v1"); a("s_nop 1"); a("v_permlane32_swap_b32 v1, v2"); a("s_nop 1")
    a("v_add_f32 v1, v1, v2"); a("v_rcp_f32 v1, v1"); a("s_nop 0")
    for i in range(16): a(f"v_mul_f32 {S(i)}, {S(i)}, v1")
    for i in range(8): a(f"v_cvt_pk_bf16_f32 v{V_P+i}, {S(2*i)}, {S(2*i+1)}")
    a(f"s_lshl_b32 s40, s{S_CL}, 5"); a(f"s_add_u32 s40, s40, s{S_HG}")
    a(f"s_lshl_b32 s41, s40, 13"); a(f"s_lshl_b32 s42, s{S_WAVE}, 11"); a("s_add_u32 s41, s41, s42")
    a(f"s_add_u32 s41, s41, {hex(PBUF)}")
    a(f"buffer_store_dwordx4 {vr(V_P,4)}, v7, {srd(SRD_WS)}, s41 offen sc1")
    a(f"buffer_store_dwordx4 {vr(V_P+4,4)}, v7, {srd(SRD_WS)}, s41 offen offset:1024 sc1")
    a(f"s_lshl_b32 s42, s40, 7"); a(f"s_lshl_b32 s43, s{S_WAVE}, 3"); a("s_add_u32 s42, s42, s43")
    a(f"s_add_u32 s{S_OFFR}, s42, {hex(PFLAG)}")
    a(f"v_mov_b32 v2, s{S_TAG}"); a(f"v_mov_b32 v3, s{S_TAG+1}"); a("v_mov_b32 v1, 0")
    a(f"s_lshl_b32 s40, s{S_CL}, 5"); a(f"s_lshl_b32 s41, s{S_KQ}, 3"); a("s_add_u32 s40, s40, s41")
    a(f"s_lshl_b32 s40, s40, 13"); a(f"s_lshl_b32 s41, s{S_WAVE}, 11"); a("s_add_u32 s40, s40, s41")
    a(f"s_add_u32 s{S_PB}, s40, {hex(PBUF)}")
    stamp()
    def flagP():
        a("s_waitcnt vmcnt(0)")
        a(f"buffer_store_dwordx2 v[2:3], v1, {srd(SRD_WS)}, s{S_OFFR} offen sc1")
    def cvt_tile(t, lo=0, hi=8):
        for i in range(lo, hi): a(f"v_cvt_pk_bf16_f32 v{V_BF+8*t+i}, v{V_ACC+16*t+2*i}, v{V_ACC+16*t+2*i+1}")
    def pv(t, u, P):
        o = vr(V_OUT + 16*t, 16)
        a(f"v_mfma_f32_32x32x16_bf16 {o}, {vr(V_BF+8*t+4*u,4)}, {vr(P+4*u,4)}, {o}")
    a.c("---- phase 2, head 0 (peeled)")
    item(2, zero_first=True, hooks={opt.flagpos: flagP})
    item(2)
    a("s_nop 7")
    for t in range(4): cvt_tile(t)
    a(f"s_mov_b32 s{S_CNT}, 7")
    a.lab("L_p2")
    def loadP():
        a(f"buffer_load_dwordx4 {vr(V_P,4)}, v7, {srd(SRD_WS)}, s{S_PB} offen sc1")
        a(f"buffer_load_dwordx4 {vr(V_P+4,4)}, v7, {srd(SRD_WS)}, s{S_PB} offen offset:1024 sc1")
        a(f"s_add_u32 s{S_PB}, s{S_PB}, 8192")
        a(f"s_cmp_lg_u32 s{S_CNT}, 1"); a("s_cbranch_scc1 L_p2_nolast")
        a(f"buffer_load_dwordx4 {vr(V_PN,4)}, v7, {srd(SRD_WS)}, s{S_PB} offen sc1")
        a(f"buffer_load_dwordx4 {vr(V_PN+4,4)}, v7, {srd(SRD_WS)}, s{S_PB} offen offset:1024 sc1")
        a.lab("L_p2_nolast")
    item(2, zero_first=True, hooks={(opt.barstep, 3): loadP})
    item(2)
    a("s_waitcnt vmcnt(0)")
    for t in range(4):
        pv(t, 0, V_P)
        if t > 0: cvt_tile(t-1, 4, 8)
        pv(t, 1, V_P)
        cvt_tile(t, 0, 4)
    cvt_tile(3, 4, 8)
    a(f"s_sub_u32 s{S_CNT}, s{S_CNT}, 1"); a(f"s_cmp_lg_u32 s{S_CNT}, 0"); a("s_cbranch_scc1 L_p2")
    for t in (1, 2, 3, 0):
        pv(t, 0, V_PN); pv(t, 1, V_PN)
    stamp()
    a.c("---- split-K reduce-scatter between the 4 kq workgroups")
    a(f"s_lshl_b32 s40, s{S_CL}, 5"); a(f"s_add_u32 s40, s40, s{S_IDX}")
    a(f"s_lshl_b32 s41, s{S_KQ}, 2"); a(f"s_add_u32 s41, s41, s{S_WAVE}")
    a("s_waitcnt lgkmcnt(0)")
    for t in (1, 2, 3):
        a(f"s_add_u32 s42, s{S_KQ}, {t}"); a("s_and_b32 s42, s42, 3"); a("s_lshl_b32 s42, s42, 3"); a("s_add_u32 s42, s42, s40")
        a(f"s_lshl_b32 s{50+t}, s42, 7")
        a("s_lshl_b32 s42, s42, 15"); a("s_lshl_b32 s43, s41, 11"); a("s_add_u32 s42, s42, s43"); a(f"s_add_u32 s42, s42, {hex(XBUF)}")
        if t == 1: a("s_nop 3")
        for i in range(8): a(f"v_cvt_pk_bf16_f32 v{V_BF+8*t+i}, v{V_OUT+16*t+2*i}, v{V_OUT+16*t+2*i+1}")
        a(f"buffer_store_dwordx4 {vr(V_BF+8*t,4)}, v7, {srd(SRD_WS)}, s42 offen sc1")
        a(f"buffer_store_dwordx4 {vr(V_BF+8*t+4,4)}, v7, {srd(SRD_WS)}, s42 offen offset:1024 sc1")
    a("s_lshl_b32 s43, s41, 3"); a(f"s_add_u32 s43, s43, {hex(XFLAG)}")
    a("s_waitcnt vmcnt(0)")
    for t in (1, 2, 3):
        a(f"s_add_u32 s42, s{50+t}, s43")
        a(f"buffer_store_dwordx2 v[2:3], v1, {srd(SRD_WS)}, s42 offen sc1")
    stamp()
    a(f"s_lshl_b32 s42, s{S_KQ}, 3"); a("s_add_u32 s42, s42, s40")
    a("v_and_b32 v4, 3, v0"); a("v_min_u32 v4, 2, v4"); a(f"v_add_u32 v4, s{S_KQ}, v4"); a("v_add_u32 v4, 1, v4"); a("v_and_b32 v4, 3, v4")
    a(f"v_lshlrev_b32 v4, 5, v4")
    a(f"s_lshl_b32 s43, s42, 7"); a(f"s_lshl_b32 s44, s{S_WAVE}, 3"); a("s_add_u32 s43, s43, s44"); a(f"s_add_u32 s43, s43, {hex(XFLAG)}")
    a(f"s_mov_b32 s44, {opt.spin}")
    a.lab("L_xpoll")
    a(f"buffer_load_dwordx2 v[8:9], v4, {srd(SRD_WS)}, s43 offen sc1")
    a("s_sub_u32 s44, s44, 1"); a("s_cmp_eq_u32 s44, 0"); a("s_cbranch_scc1 L_xgo")
    a("s_waitcnt vmcnt(0)")
    a("v_cmp_eq_u64 vcc, v[8:9], v[2:3]")
    a("s_cmp_eq_u64 vcc, exec") ; a("s_cbranch_scc0 L_xpoll")
    a.lab("L_xgo")
    stamp()
    a("s_lshl_b32 s42, s42, 15"); a(f"s_lshl_b32 s43, s{S_WAVE}, 11"); a("s_add_u32 s42, s42, s43"); a(f"s_add_u32 s42, s42, {hex(XBUF)}")
    for j in range(3):
        a(f"s_add_u32 s43, s{S_KQ}, {j+1}"); a("s_and_b32 s43, s43, 3"); a("s_lshl_b32 s43, s43, 13"); a("s_add_u32 s43, s43, s42")
        a(f"buffer_load_dwordx4 {vr(V_KF+8*j,4)}, v7, {srd(SRD_WS)}, s43 offen sc1")
        a(f"buffer_load_dwordx4 {vr(V_KF+8*j+4,4)}, v7, {srd(SRD_WS)}, s43 offen offset:1024 sc1")
    a("v_and_b32 v4, 31, v0"); a("v_lshlrev_b32 v4, 12, v4"); a("v_lshrrev_b32 v5, 5, v0"); a("v_lshl_add_u32 v4, v5, 4, v4")
    a(f"s_lshl_b32 s40, s{S_RB}, 19"); a(f"s_lshl_b32 s41, s{S_WAVE}, 17"); a("s_add_u32 s40, s40, s41")
    a(f"s_lshl_b32 s41, s{S_BR}, 11"); a("s_add_u32 s40, s40, s41")
    a(f"s_lshl_b32 s41, s{S_IDX}, 8"); a("s_add_u32 s40, s40, s41")
    a(f"s_lshl_b32 s41, s{S_KQ}, 6"); a("s_add_u32 s40, s40, s41")
    for j in range(3):
        a(f"s_waitcnt vmcnt({4-2*j})")
        for i in range(8):
            a(f"v_lshlrev_b32 v5, 16, v{V_KF+8*j+i}"); a(f"v_and_b32 v6, 0xffff0000, v{V_KF+8*j+i}")
            a(f"v_add_f32 v{V_OUT+2*i}, v{V_OUT+2*i}, v5"); a(f"v_add_f32 v{V_OUT+2*i+1}, v{V_OUT+2*i+1}, v6")
    for i in range(8): a(f"v_cvt_pk_bf16_f32 v{V_BF+i}, v{V_OUT+2*i}, v{V_OUT+2*i+1}")
    a(f"buffer_store_dwordx4 {vr(V_BF,4)}, v4, {srd(SRD_OUT)}, s40 offen")
    a(f"buffer_store_dwordx4 {vr(V_BF+4,4)}, v4, {srd(SRD_OUT)}, s40 offen offset:32")
    a(f"s_or_b32 s40, s{S_KQ}, s{S_IDX}"); a(f"s_or_b32 s40, s40, s{S_WAVE}"); a("s_cmp_lg_u32 s40, 0"); a("s_cbranch_scc1 L_noep")
    a(f"s_lshl_b32 s40, s{S_CL}, 7")
    a(f"buffer_store_dwordx2 v[2:3], v1, {srd(SRD_WS)}, s40 offen")
    a.lab("L_noep")
    if opt.stamps:
        a("s_waitcnt vmcnt(0)")
        stamp()
        a(f"s_cmp_lg_u32 s{S_WAVE}, 0"); a("s_cbranch_scc1 L_end")
        a("s_waitcnt lgkmcnt(0)")
        n = nst[0]
        a(f"s_mul_i32 s40, s2, {n*8}"); a("s_add_u32 s40, s40, 0x8000000")
        a(f"s_add_u32 s42, s{SRD_WS}, s40"); a(f"s_addc_u32 s43, s{SRD_WS+1}, 0")
        for i in range(n):
            a(f"v_mov_b32 v8, s{S_ST+2*i}"); a(f"v_mov_b32 v9, s{S_ST+2*i+1}")
            a(f"global_store_dwordx2 v1, v[8:9], s[42:43] offset:{i*8}"); a("s_nop 1")
    a("s_endpgm")

    a.lab("L_helpers")
    a(f"s_cmp_eq_u32 s{S_WAVE}, 6"); a("s_cbranch_scc1 L_touch")
    a(f"s_cmp_eq_u32 s{S_WAVE}, 7"); a("s_cbranch_scc1 L_poll")
    a.c("---- loader waves")
    a(f"s_sub_u32 s40, s{S_WAVE}, 4")
    a("v_lshrrev_b32 v1, 3, v0"); a("v_and_b32 v2, 7, v0")
    a("v_lshrrev_b32 v3, 4, v0"); a("s_lshl_b32 s41, s40, 2"); a("v_add_u32 v4, s41, v3")
    a("v_xor_b32 v2, v2, v4"); a("v_lshlrev_b32 v2, 4, v2")
    a("s_lshl_b32 s41, s40, 3"); a("v_add_u32 v1, s41, v1")
    a("v_lshl_add_u32 v10, v1, 11, v2")
    a("v_lshl_add_u32 v11, v1, 8, v2")
    a("v_and_b32 v2, 15, v0"); a("v_lshlrev_b32 v4, 2, v3"); a("v_xor_b32 v2, v2, v4"); a("v_lshlrev_b32 v2, 4, v2")
    a("s_lshl_b32 s41, s40, 2"); a("v_add_u32 v1, s41, v3")
    a("v_lshl_add_u32 v12, v1, 13, v2")
    a("v_lshl_add_u32 v13, v1, 11, v2")
    a(f"s_lshl_b32 s{S_SLOT}, s40, 10")
    a(f"s_add_u32 s{S_DELTA}, s{S_SLOT}, {NS*SLOT}")
    a(f"s_lshl_b32 s{S_OFFR}, s{S_RB}, 18")
    a(f"s_lshl_b32 s{S_OFFW}, s{S_HG}, 8")
    a("s_waitcnt lgkmcnt(0)")
    def dma(vo, sr, sbase, lit, ldsoff, fl):
        a(f"s_add_u32 m0, s{S_SLOT}, {ldsoff}")
        a(f"s_add_u32 s41, s{sbase}, {hex(lit)}")
        a(f"buffer_load_dwordx4 v{vo}, {srd(sr)}, s41 offen {fl} lds")
    def adv_slot():
        a(f"s_add_u32 s{S_SLOT}, s{S_SLOT}, {SLOT}"); a(f"s_cmp_eq_u32 s{S_SLOT}, s{S_DELTA}")
        a(f"s_cselect_b32 s42, {NS*SLOT}, 0"); a(f"s_sub_u32 s{S_SLOT}, s{S_SLOT}, s42")
    fl = opt.dmaflags
    a(f"s_mov_b32 s{S_CNT}, 0")
    a.lab("L_ld1")
    for m in range(8):
        dma(10, SRD_X, S_OFFR, m*16*2048, m*2048, fl)
        dma(12, SRD_WQ, S_OFFW, m*8*8192, 16384 + m*2048, fl)
    adv_slot()
    a(f"s_add_u32 s{S_OFFR}, s{S_OFFR}, 128"); a(f"s_add_u32 s{S_OFFW}, s{S_OFFW}, {64*8192}")
    a(f"s_add_u32 s{S_CNT}, s{S_CNT}, 1")
    a(f"s_cmp_lt_u32 s{S_CNT}, 3"); a("s_cbranch_scc1 L_ld1")
    a("s_waitcnt vmcnt(32)"); a("s_barrier")
    a(f"s_cmp_lt_u32 s{S_CNT}, 16"); a("s_cbranch_scc1 L_ld1")
    a(f"s_lshl_b32 s{S_OFFR}, s{S_RB}, 20"); a(f"s_lshl_b32 s41, s{S_HG}, 13"); a(f"s_add_u32 s{S_OFFR}, s{S_OFFR}, s41")
    for c2 in range(2):
        for m in range(8):
            dma(11, SRD_K, S_OFFR, (m//2)*262144 + (m % 2)*4096 + c2*128, c2*16384 + m*2048, fl)
    adv_slot()
    a("s_waitcnt vmcnt(32)"); a("s_barrier")
    a(f"s_lshl_b32 s{S_OFFR}, s{S_RB}, 20"); a(f"s_lshl_b32 s41, s{S_KQ}, 16"); a(f"s_add_u32 s{S_OFFR}, s{S_OFFR}, s41")
    a(f"s_lshl_b32 s{S_OFFW}, s{S_KQ}, 21"); a(f"s_lshl_b32 s41, s{S_IDX}, 8"); a(f"s_add_u32 s{S_OFFW}, s{S_OFFW}, s41")
    a(f"s_mov_b32 s{S_CNT}, 0")
    a.lab("L_ld2")
    for m in range(8):
        dma(11, SRD_V, S_OFFR, (m//2)*262144 + (m % 2)*4096, m*2048, fl)
        dma(13, SRD_WO, S_OFFW, m*8*2048, 16384 + m*2048, fl)
    adv_slot()
    a(f"s_and_b32 s42, s{S_CNT}, 1"); a(f"s_mul_i32 s42, s42, {8192-256}"); a("s_add_u32 s42, s42, 128")
    a(f"s_add_u32 s{S_OFFR}, s{S_OFFR}, s42"); a(f"s_add_u32 s{S_OFFW}, s{S_OFFW}, {64*2048}")
    a(f"s_add_u32 s{S_CNT}, s{S_CNT}, 1")
    a("s_waitcnt vmcnt(32)"); a("s_barrier")
    a(f"s_cmp_lt_u32 s{S_CNT}, 16"); a("s_cbranch_scc1 L_ld2")
    a("s_waitcnt vmcnt(16)"); a("s_barrier")
    a("s_waitcnt vmcnt(0)"); a("s_barrier")
    a("s_endpgm")

    a.lab("L_touch")
    D = opt.dist
    if not opt.touch:
        a("s_endpgm")
    else:
        tf = opt.touchflags
        a("v_lshrrev_b32 v1, 2, v0")
        a(f"s_lshl_b32 s40, s{S_IDX}, 4"); a("v_add_u32 v2, s40, v1")
        a("v_lshlrev_b32 v10, 11, v2")
        a("v_lshrrev_b32 v3, 5, v2"); a("v_and_b32 v4, 31, v2"); a("v_lshlrev_b32 v3, 18, v3"); a("v_lshl_add_u32 v11, v4, 8, v3")
        a(f"s_lshl_b32 s40, s{S_RB}, 4"); a("v_add_u32 v2, s40, v1")
        a("v_bfe_u32 v3, v0, 1, 1"); a("v_lshlrev_b32 v3, 7, v3")
        a("v_lshl_add_u32 v12, v2, 13, v3"); a("v_lshl_add_u32 v13, v2, 11, v3")
        a("v_lshlrev_b32 v14, 7, v1")
        a(f"s_lshl_b32 s{S_OFFR}, s{S_RB}, 18"); a(f"s_lshl_b32 s{S_OFFW}, s{S_HG}, 8")
        a(f"s_lshl_b32 s{S_PB}, s{S_RB}, 20"); a(f"s_lshl_b32 s41, s{S_HG}, 13"); a(f"s_add_u32 s{S_PB}, s{S_PB}, s41")
        a(f"s_mov_b32 s{S_CNT}, 0")
        a("s_waitcnt lgkmcnt(0)")
        a.lab("L_t1")
        a(f"s_cmp_lt_u32 s{S_CNT}, {D-1}"); a("s_cbranch_scc1 L_t1n"); a("s_barrier"); a.lab("L_t1n")
        a(f"buffer_load_dword v20, v12, {srd(SRD_WQ)}, s{S_OFFW} offen {tf}")
        a(f"buffer_load_dword v21, v10, {srd(SRD_X)}, s{S_OFFR} offen {tf}")
        a(f"s_lshr_b32 s41, s{S_CNT}, 2"); a("s_lshl_b32 s41, s41, 18"); a(f"s_and_b32 s42, s{S_CNT}, 3"); a("s_lshl_b32 s42, s42, 11")
        a("s_add_u32 s41, s41, s42"); a(f"s_add_u32 s41, s41, s{S_PB}")
        a(f"buffer_load_dword v22, v14, {srd(SRD_K)}, s41 offen {tf}")
        a(f"s_add_u32 s{S_OFFR}, s{S_OFFR}, 128"); a(f"s_add_u32 s{S_OFFW}, s{S_OFFW}, {64*8192}")
        a("s_waitcnt vmcnt(30)")
        a(f"s_add_u32 s{S_CNT}, s{S_CNT}, 1"); a(f"s_cmp_lt_u32 s{S_CNT}, 16"); a("s_cbranch_scc1 L_t1")
        a("s_barrier")
        a(f"s_lshl_b32 s{S_OFFR}, s{S_RB}, 20"); a(f"s_lshl_b32 s41, s{S_KQ}, 16"); a(f"s_add_u32 s{S_OFFR}, s{S_OFFR}, s41")
        a(f"s_lshl_b32 s{S_OFFW}, s{S_KQ}, 21"); a(f"s_lshl_b32 s41, s{S_IDX}, 8"); a(f"s_add_u32 s{S_OFFW}, s{S_OFFW}, s41")
        a(f"s_mov_b32 s{S_CNT}, 0")
        a.lab("L_t2")
        a("s_barrier")
        a(f"buffer_load_dword v20, v13, {srd(SRD_WO)}, s{S_OFFW} offen {tf}")
        a(f"buffer_load_dword v21, v11, {srd(SRD_V)}, s{S_OFFR} offen {tf}")
        a(f"s_and_b32 s42, s{S_CNT}, 1"); a(f"s_mul_i32 s42, s42, {8192-256}"); a("s_add_u32 s42, s42, 128")
        a(f"s_add_u32 s{S_OFFR}, s{S_OFFR}, s42"); a(f"s_add_u32 s{S_OFFW}, s{S_OFFW}, {64*2048}")
        a("s_waitcnt vmcnt(30)")
        a(f"s_add_u32 s{S_CNT}, s{S_CNT}, 1"); a(f"s_cmp_lt_u32 s{S_CNT}, 16"); a("s_cbranch_scc1 L_t2")
        a("s_endpgm")

    a.lab("L_poll")
    a("s_waitcnt lgkmcnt(0)")
    a(f"s_lshl_b32 s40, s{S_CL}, 7")
    a(f"s_load_dwordx2 s[{S_TAG}:{S_TAG+1}], s[{SRD_WS}:{SRD_WS+1}], s40")
    a("v_bfe_u32 v1, v0, 2, 3"); a("v_and_b32 v2, 3, v0"); a("v_lshlrev_b32 v2, 3, v2"); a("v_lshl_add_u32 v4, v1, 7, v2")
    a(f"s_lshl_b32 s40, s{S_CL}, 5"); a(f"s_lshl_b32 s41, s{S_KQ}, 3"); a("s_add_u32 s40, s40, s41")
    a("s_lshl_b32 s40, s40, 7"); a(f"s_add_u32 s43, s40, {hex(PFLAG)}")
    a("s_waitcnt lgkmcnt(0)")
    a(f"s_mul_i32 s{S_TAG}, s{S_TAG}, 0x9e3779b1"); a(f"s_add_u32 s{S_TAG}, s{S_TAG}, 0x7f4a7c15")
    a(f"s_mul_i32 s{S_TAG+1}, s{S_TAG+1}, 0x85ebca6b"); a(f"s_add_u32 s{S_TAG+1}, s{S_TAG+1}, 0xc2b2ae35")
    a(f"v_mov_b32 v2, s{S_TAG}"); a(f"v_mov_b32 v3, s{S_TAG+1}")
    a(f"s_mov_b32 s{S_CNT}, 20")
    a.lab("L_pb"); a("s_barrier"); a(f"s_sub_u32 s{S_CNT}, s{S_CNT}, 1"); a(f"s_cmp_lg_u32 s{S_CNT}, 0"); a("s_cbranch_scc1 L_pb")
    a(f"s_mov_b32 s44, {opt.spin}")
    a.lab("L_ppoll")
    a(f"buffer_load_dwordx2 v[8:9], v4, {srd(SRD_WS)}, s43 offen sc1")
    a("s_sub_u32 s44, s44, 1"); a("s_cmp_eq_u32 s44, 0"); a("s_cbranch_scc1 L_pgo")
    a("s_waitcnt vmcnt(0)")
    a("v_cmp_eq_u64 vcc, v[8:9], v[2:3]")
    a("s_cmp_eq_u64 vcc, exec"); a("s_cbranch_scc0 L_ppoll")
    a.lab("L_pgo")
    a("s_barrier")
    a.lab("L_end")
    a("s_endpgm")
    a.raw('.section .rodata,"a"'); a.raw(".p2align 6"); a.raw(f".amdhsa_kernel {NAME}_kernel")
    for l in ("next_free_vgpr 256", "next_free_sgpr 102", "accum_offset 256", "group_segment_fixed_size 0", "kernarg_size 104",
              "user_sgpr_count 2", "user_sgpr_kernarg_segment_ptr 1", "system_sgpr_workgroup_id_x 1"):
        a.raw("  .amdhsa_" + l)
    a.raw(".end_amdhsa_kernel")
    return a.text(), nst[0]

def parse(argv):
    ap = argparse.ArgumentParser()
    ap.add_argument("-o", default="cdna_kernels/" + NAME + ".s")
    ap.add_argument("--stamps", action="store_true")
    ap.add_argument("--prio", type=int, default=0)
    ap.add_argument("--barstep", type=int, default=1)
    ap.add_argument("--flagpos", type=lambda s: tuple(map(int, s.split(","))), default=(3, 3))
    ap.add_argument("--spin", type=int, default=100000)
    ap.add_argument("--dist", type=int, default=7)
    ap.add_argument("--touch", type=int, default=1)
    ap.add_argument("--dmaflags", default="")
    ap.add_argument("--touchflags", default="")
    return ap.parse_args(argv)

if __name__ == "__main__":
    opt = parse(sys.argv[1:])
    t, n = gen(opt)
    open(opt.o, "w").write(t)
    print("wrote", opt.o, "stamps", n)
```

```python
import sys, argparse
NAME = "concat_heads__mha_block_cached__mha_block_cached__near_ridge"

class Asm:
    def __init__(self): self.L = []
    def __call__(self, s):
        for pat in getattr(self, "drop", []):
            if pat in s: return
        self.L.append("    " + s)
    def lab(self, s): self.L.append(s + ":")
    def c(self, s): self.L.append("    ; " + s)
    def raw(self, s): self.L.append(s)
    def text(self): return "\n".join(self.L) + "\n"

EPOCH = 0; PFLAG = 4096; XFLAG = 65536; PBUF = 0x100000; XBUF = 0x400000; WS_REC = 0xC00000
SLOT = 32768; NS = 5
S_BR, S_KQ, S_RB, S_IDX, S_WAVE = 3, 4, 5, 6, 7
SRD_X, SRD_K, SRD_V, SRD_WQ, SRD_WO, SRD_WS, SRD_OUT = 8, 12, 16, 20, 24, 28, 32
S_TAG = 36
S_CL = 38
S_HG = 39
S_T0, S_T1, S_T2, S_T3 = 40, 41, 42, 43
S_CNT = 44; S_SLOT = 45; S_DELTA = 46; S_OFFR = 47; S_OFFW = 48; S_PB = 49; S_C = 50
S_ST = 60
def srd(b): return f"s[{b}:{b+3}]"
V_AR = 8; V_AW = 12; V_R = 16; V_W = 24; V_P = 40; V_BF = 48; V_KF = 80; V_PN = 80; V_S = 112; V_ACC = 128; V_OUT = 192
def vr(b, n): return f"v[{b}:{b+n-1}]"

def gen(opt):
    a = Asm()
    a.drop = []
    if opt.nodma: a.drop.append(" lds")
    if opt.nolds: a.drop += ["ds_read"]
    if opt.nomfma: a.drop += ["v_mfma"]
    a.raw(f"; @launch grid=(256,1,1) block=(512,1,1) lds={SLOT*NS}")
    a.raw('.amdgcn_target "amdgcn-amd-amdhsa--gfx950"')
    a.raw(".text"); a.raw(f".globl {NAME}_kernel"); a.raw(".p2align 8"); a.raw(f".type {NAME}_kernel,@function")
    a.lab(f"{NAME}_kernel")
    nst = [0]
    def stamp():
        if opt.stamps:
            r = S_ST + 2 * nst[0]; nst[0] += 1
            a(f"{'s_memtime' if opt.cyc else 's_memrealtime'} s[{r}:{r+1}]")
    stamp()
    a("s_cmp_ge_u32 s2, 256"); a("s_cbranch_scc1 L_end")
    a("s_and_b32 s40, s2, 7")
    a(f"s_lshr_b32 s{S_BR}, s40, 2"); a(f"s_and_b32 s{S_KQ}, s40, 3")
    a(f"s_mul_i32 s41, s{S_BR}, 40")
    a("s_add_u32 s42, s0, s41"); a("s_addc_u32 s43, s1, 0")
    a(f"s_load_dwordx2 s[{SRD_X}:{SRD_X+1}], s[42:43], 0")
    a(f"s_load_dwordx2 s[{SRD_WQ}:{SRD_WQ+1}], s[42:43], 24")
    a(f"s_load_dwordx2 s[{SRD_K}:{SRD_K+1}], s[42:43], 8")
    a(f"s_load_dwordx2 s[{SRD_V}:{SRD_V+1}], s[42:43], 16")
    a(f"s_load_dwordx2 s[{SRD_WO}:{SRD_WO+1}], s[42:43], 32")
    a(f"s_load_dwordx2 s[{SRD_WS}:{SRD_WS+1}], s[0:1], 96")
    a(f"s_load_dwordx2 s[{SRD_OUT}:{SRD_OUT+1}], s[0:1], 80")
    a(f"s_lshr_b32 s{S_RB}, s2, 6"); a(f"s_bfe_u32 s{S_IDX}, s2, 0x30003")
    a("v_lshrrev_b32 v1, 6, v0"); a("v_and_b32 v0, 63, v0")
    a(f"s_lshl_b32 s{S_CL}, s{S_BR}, 2"); a(f"s_add_u32 s{S_CL}, s{S_CL}, s{S_RB}")
    a(f"v_readfirstlane_b32 s{S_WAVE}, v1")
    a(f"s_lshl_b32 s{S_HG}, s{S_KQ}, 3"); a(f"s_add_u32 s{S_HG}, s{S_HG}, s{S_IDX}")
    for b, n in ((SRD_X, 0x100000), (SRD_K, 0x400000), (SRD_V, 0x400000), (SRD_WQ, 0x800000), (SRD_WO, 0x800000), (SRD_WS, WS_REC), (SRD_OUT, 0x200000)):
        a(f"s_mov_b32 s{b+2}, {hex(n)}"); a(f"s_mov_b32 s{b+3}, 0x20000")
    a(f"s_cmp_ge_u32 s{S_WAVE}, 4"); a("s_cbranch_scc1 L_helpers")

    a.c("---- compute wave setup")
    if opt.prio: a(f"s_setprio {opt.prio}")
    a("v_and_b32 v1, 31, v0"); a("v_lshrrev_b32 v2, 5, v0")
    a(f"s_lshl_b32 s40, s{S_WAVE}, 12")
    a("v_lshrrev_b32 v3, 1, v1"); a("v_and_b32 v3, 7, v3"); a("v_xor_b32 v3, v3, v2"); a("v_lshlrev_b32 v3, 4, v3")
    a("v_lshl_add_u32 v3, v1, 7, v3"); a(f"v_add_u32 v{V_AR}, s40, v3")
    for s in range(1, 4): a(f"v_xor_b32 v{V_AR+s}, {32*s}, v{V_AR}")
    a("v_bfe_u32 v5, v0, 2, 2")
    a("v_lshl_add_u32 v4, v2, 3, v5"); a("v_lshlrev_b32 v4, 8, v4")
    a("v_bfe_u32 v6, v0, 4, 1"); a("v_lshl_add_u32 v4, v6, 5, v4")
    a("v_and_b32 v6, 1, v0"); a("v_lshl_add_u32 v4, v6, 4, v4")
    a("v_bfe_u32 v6, v0, 1, 1"); a("v_lshl_add_u32 v4, v6, 3, v4")
    a("v_add_u32 v4, 16384, v4")
    for t in range(4):
        a(f"v_xor_b32 v6, {t}, v5"); a(f"v_lshl_add_u32 v{V_AW+t}, v6, 6, v4")
    a("s_waitcnt lgkmcnt(0)")
    a(f"s_lshl_b32 s40, s{S_CL}, 7")
    a(f"s_load_dwordx2 s[{S_TAG}:{S_TAG+1}], s[{SRD_WS}:{SRD_WS+1}], s40")
    for i in range(64): a(f"v_mov_b32 v{V_ACC+i}, 0")
    for i in range(64): a(f"v_mov_b32 v{V_OUT+i}, 0")
    a(f"s_mov_b32 s{S_SLOT}, 0"); a(f"s_mov_b32 s56, {SLOT}")
    a(f"s_mov_b32 s{S_C}, 0x3e0293ee")
    a("v_lshlrev_b32 v7, 4, v0")
    a("s_waitcnt lgkmcnt(0)")
    a(f"s_mul_i32 s{S_TAG}, s{S_TAG}, 0x9e3779b1"); a(f"s_add_u32 s{S_TAG}, s{S_TAG}, 0x7f4a7c15")
    a(f"s_mul_i32 s{S_TAG+1}, s{S_TAG+1}, 0x85ebca6b"); a(f"s_add_u32 s{S_TAG+1}, s{S_TAG+1}, 0xc2b2ae35")
    a("s_barrier")
    stamp()

    def rd_R(s, dst): a(f"ds_read_b128 {vr(V_R+4*dst,4)}, v{V_AR+s}")
    def rd_W(s, t):
        a(f"ds_read_b64_tr_b16 {vr(V_W+4*t,2)}, v{V_AW+t} offset:{s*4096}")
        a(f"ds_read_b64_tr_b16 {vr(V_W+4*t+2,2)}, v{V_AW+t} offset:{s*4096+1024}")
    def first_reads():
        rd_R(0, 0)
        for t in range(4): rd_W(0, t)
    def next_delta():
        a(f"s_add_u32 s{S_SLOT}, s{S_SLOT}, 1"); a(f"s_cmp_eq_u32 s{S_SLOT}, {NS}")
        a(f"s_cselect_b32 s{S_DELTA}, {hex((-(NS-1)*SLOT) & 0xffffffff)}, s56")
        a(f"s_cselect_b32 s{S_SLOT}, 0, s{S_SLOT}")
    def item(phase, zero_first=False, bar=True, hooks=None):
        hooks = hooks or {}
        for s in range(4):
            for t in range(4):
                a(f"s_waitcnt lgkmcnt({6 if t == 0 else 7})")
                acc = vr(V_ACC + 16*t, 16); C = "0" if (zero_first and s == 0) else acc
                W = vr(V_W + 4*t, 4); R = vr(V_R + 4*(s % 2), 4)
                if phase == 1: a(f"v_mfma_f32_32x32x16_bf16 {acc}, {W}, {R}, {C}")
                else:          a(f"v_mfma_f32_32x32x16_bf16 {acc}, {R}, {W}, {C}")
                ns = (s + 1) % 4
                if s == 3: a(f"v_add_u32 v{V_AW+t}, s{S_DELTA}, v{V_AW+t}")
                if t == 0: rd_R(ns, (s + 1) % 2)
                rd_W(ns, t)
                if s == 0 and t == 1: next_delta()
                if s == 0 and t == 2: a(f"v_add_u32 v{V_AR}, s{S_DELTA}, v{V_AR}")
                if t == 1 and s in (1, 2): a(f"v_add_u32 v{V_AR+s}, s{S_DELTA}, v{V_AR+s}")
                if t == 2 and s == 2: a(f"v_add_u32 v{V_AR+3}, s{S_DELTA}, v{V_AR+3}")
                if bar and s == opt.barstep and t == 3: a("s_barrier")
                if (s, t) in hooks: hooks[(s, t)]()

    first_reads()
    a(f"s_mov_b32 s{S_CNT}, 16")
    a.lab("L_p1")
    item(1)
    a(f"s_sub_u32 s{S_CNT}, s{S_CNT}, 1"); a(f"s_cmp_lg_u32 s{S_CNT}, 0"); a("s_cbranch_scc1 L_p1")
    stamp()
    a.c("---- scores")
    a("s_waitcnt lgkmcnt(0)")
    for t in range(4):
        for u in range(2):
            a(f"ds_read_b128 {vr(V_KF + 4*(2*t+u), 4)}, v{V_AR + (t % 2)*2 + u} offset:{(t//2)*16384}")
    next_delta()
    for s in range(4): a(f"v_add_u32 v{V_AR+s}, s{S_DELTA}, v{V_AR+s}")
    a(f"v_add_u32 v{V_AW}, s{S_DELTA}, v{V_AW}")
    a(f"v_lshlrev_b32 v6, 6, v5"); a(f"v_sub_u32 v4, v{V_AW}, v6")
    for t in range(4):
        a(f"s_add_u32 s40, s{S_KQ}, {t}"); a("s_and_b32 s40, s40, 3")
        a(f"v_xor_b32 v6, s40, v5"); a(f"v_lshl_add_u32 v{V_AW+t}, v6, 6, v4")
    for i in range(32): a(f"v_cvt_pk_bf16_f32 v{V_BF+i}, v{V_ACC+2*i}, v{V_ACC+2*i+1}")
    a("s_waitcnt lgkmcnt(0)")
    a("s_barrier")
    first_reads()
    for j in range(8):
        C = "0" if j == 0 else vr(V_S, 16)
        a(f"v_mfma_f32_32x32x16_bf16 {vr(V_S,16)}, {vr(V_KF+4*j,4)}, {vr(V_BF+4*j,4)}, {C}")
    a("s_nop 15")
    a.c("---- softmax over keys (16 regs x 2 halves)")
    S = lambda i: f"v{V_S+i}"
    a(f"v_max3_f32 v1, {S(0)}, {S(1)}, {S(2)}")
    for i in range(3, 15, 2): a(f"v_max3_f32 v1, v1, {S(i)}, {S(i+1)}")
    a(f"v_max_f32 v1, v1, {S(15)}")
    a("v_mov_b32 v2, v1"); a("s_nop 1"); a("v_permlane32_swap_b32 v1, v2"); a("s_nop 1")
    a("v_max_f32 v1, v1, v2"); a(f"v_mul_f32 v1, s{S_C}, v1")
    for i in range(16): a(f"v_fma_f32 {S(i)}, {S(i)}, s{S_C}, -v1")
    for i in range(16): a(f"v_exp_f32 {S(i)}, {S(i)}")
    a("s_nop 0")
    a(f"v_add_f32 v1, {S(0)}, {S(1)}"); a(f"v_add_f32 v2, {S(2)}, {S(3)}")
    for i in range(4, 16, 2):
        a(f"v_add_f32 v1, v1, {S(i)}"); a(f"v_add_f32 v2, v2, {S(i+1)}")
    a("v_add_f32 v1, v1, v2")
    a("v_mov_b32 v2, v1"); a("s_nop 1"); a("v_permlane32_swap_b32 v1, v2"); a("s_nop 1")
    a("v_add_f32 v1, v1, v2"); a("v_rcp_f32 v1, v1"); a("s_nop 0")
    for i in range(16): a(f"v_mul_f32 {S(i)}, {S(i)}, v1")
    for i in range(8): a(f"v_cvt_pk_bf16_f32 v{V_P+i}, {S(2*i)}, {S(2*i+1)}")
    a(f"s_lshl_b32 s40, s{S_CL}, 5"); a(f"s_add_u32 s40, s40, s{S_HG}")
    a(f"s_lshl_b32 s41, s40, 13"); a(f"s_lshl_b32 s42, s{S_WAVE}, 11"); a("s_add_u32 s41, s41, s42")
    a(f"s_add_u32 s41, s41, {hex(PBUF)}")
    a(f"buffer_store_dwordx4 {vr(V_P,4)}, v7, {srd(SRD_WS)}, s41 offen sc1")
    a(f"buffer_store_dwordx4 {vr(V_P+4,4)}, v7, {srd(SRD_WS)}, s41 offen offset:1024 sc1")
    a(f"s_lshl_b32 s42, s40, 7"); a(f"s_lshl_b32 s43, s{S_WAVE}, 3"); a("s_add_u32 s42, s42, s43")
    a(f"s_add_u32 s{S_OFFR}, s42, {hex(PFLAG)}")
    a(f"v_mov_b32 v2, s{S_TAG}"); a(f"v_mov_b32 v3, s{S_TAG+1}"); a("v_mov_b32 v1, 0")
    a(f"s_lshl_b32 s40, s{S_CL}, 5"); a(f"s_lshl_b32 s41, s{S_KQ}, 3"); a("s_add_u32 s40, s40, s41")
    a(f"s_lshl_b32 s40, s40, 13"); a(f"s_lshl_b32 s41, s{S_WAVE}, 11"); a("s_add_u32 s40, s40, s41")
    a(f"s_add_u32 s{S_PB}, s40, {hex(PBUF)}")
    stamp()
    def flagP():
        a("s_waitcnt vmcnt(0)")
        a(f"buffer_store_dwordx2 v[2:3], v1, {srd(SRD_WS)}, s{S_OFFR} offen sc1")
    def cvt_tile(t, lo=0, hi=8):
        for i in range(lo, hi): a(f"v_cvt_pk_bf16_f32 v{V_BF+8*t+i}, v{V_ACC+16*t+2*i}, v{V_ACC+16*t+2*i+1}")
    def pv(t, u, P):
        o = vr(V_OUT + 16*t, 16)
        a(f"v_mfma_f32_32x32x16_bf16 {o}, {vr(V_BF+8*t+4*u,4)}, {vr(P+4*u,4)}, {o}")
    a.c("---- phase 2, head 0 (peeled)")
    item(2, zero_first=True, hooks={opt.flagpos: flagP})
    item(2)
    a("s_nop 7")
    for t in range(4): cvt_tile(t)
    a(f"s_mov_b32 s{S_CNT}, 7")
    a.lab("L_p2")
    def loadP():
        a(f"buffer_load_dwordx4 {vr(V_P,4)}, v7, {srd(SRD_WS)}, s{S_PB} offen sc1")
        a(f"buffer_load_dwordx4 {vr(V_P+4,4)}, v7, {srd(SRD_WS)}, s{S_PB} offen offset:1024 sc1")
        a(f"s_add_u32 s{S_PB}, s{S_PB}, 8192")
        a(f"s_cmp_lg_u32 s{S_CNT}, 1"); a("s_cbranch_scc1 L_p2_nolast")
        a(f"buffer_load_dwordx4 {vr(V_PN,4)}, v7, {srd(SRD_WS)}, s{S_PB} offen sc1")
        a(f"buffer_load_dwordx4 {vr(V_PN+4,4)}, v7, {srd(SRD_WS)}, s{S_PB} offen offset:1024 sc1")
        a.lab("L_p2_nolast")
    item(2, zero_first=True, hooks={(opt.barstep, 3): loadP})
    item(2)
    a("s_waitcnt vmcnt(0)")
    for t in range(4):
        pv(t, 0, V_P)
        if t > 0: cvt_tile(t-1, 4, 8)
        pv(t, 1, V_P)
        cvt_tile(t, 0, 4)
    cvt_tile(3, 4, 8)
    a(f"s_sub_u32 s{S_CNT}, s{S_CNT}, 1"); a(f"s_cmp_lg_u32 s{S_CNT}, 0"); a("s_cbranch_scc1 L_p2")
    for t in (1, 2, 3, 0):
        pv(t, 0, V_PN); pv(t, 1, V_PN)
    stamp()
    a.c("---- split-K reduce-scatter between the 4 kq workgroups")
    a(f"s_lshl_b32 s40, s{S_CL}, 5"); a(f"s_add_u32 s40, s40, s{S_IDX}")
    a(f"s_lshl_b32 s41, s{S_KQ}, 2"); a(f"s_add_u32 s41, s41, s{S_WAVE}")
    a("s_waitcnt lgkmcnt(0)")
    for t in (1, 2, 3):
        a(f"s_add_u32 s42, s{S_KQ}, {t}"); a("s_and_b32 s42, s42, 3"); a("s_lshl_b32 s42, s42, 3"); a("s_add_u32 s42, s42, s40")
        a(f"s_lshl_b32 s{50+t}, s42, 7")
        a("s_lshl_b32 s42, s42, 15"); a("s_lshl_b32 s43, s41, 11"); a("s_add_u32 s42, s42, s43"); a(f"s_add_u32 s42, s42, {hex(XBUF)}")
        if t == 1: a("s_nop 3")
        for i in range(8): a(f"v_cvt_pk_bf16_f32 v{V_BF+8*t+i}, v{V_OUT+16*t+2*i}, v{V_OUT+16*t+2*i+1}")
        a(f"buffer_store_dwordx4 {vr(V_BF+8*t,4)}, v7, {srd(SRD_WS)}, s42 offen sc1")
        a(f"buffer_store_dwordx4 {vr(V_BF+8*t+4,4)}, v7, {srd(SRD_WS)}, s42 offen offset:1024 sc1")
    a("s_lshl_b32 s43, s41, 3"); a(f"s_add_u32 s43, s43, {hex(XFLAG)}")
    a("s_waitcnt vmcnt(0)")
    for t in (1, 2, 3):
        a(f"s_add_u32 s42, s{50+t}, s43")
        a(f"buffer_store_dwordx2 v[2:3], v1, {srd(SRD_WS)}, s42 offen sc1")
    stamp()
    a(f"s_lshl_b32 s42, s{S_KQ}, 3"); a("s_add_u32 s42, s42, s40")
    a("v_and_b32 v4, 3, v0"); a("v_min_u32 v4, 2, v4"); a(f"v_add_u32 v4, s{S_KQ}, v4"); a("v_add_u32 v4, 1, v4"); a("v_and_b32 v4, 3, v4")
    a(f"v_lshlrev_b32 v4, 5, v4")
    a(f"s_lshl_b32 s43, s42, 7"); a(f"s_lshl_b32 s44, s{S_WAVE}, 3"); a("s_add_u32 s43, s43, s44"); a(f"s_add_u32 s43, s43, {hex(XFLAG)}")
    a(f"s_mov_b32 s44, {opt.spin}")
    a.lab("L_xpoll")
    a(f"buffer_load_dwordx2 v[8:9], v4, {srd(SRD_WS)}, s43 offen sc1")
    a("s_sub_u32 s44, s44, 1"); a("s_cmp_eq_u32 s44, 0"); a("s_cbranch_scc1 L_xgo")
    a("s_waitcnt vmcnt(0)")
    a("v_cmp_eq_u64 vcc, v[8:9], v[2:3]")
    a("s_cmp_eq_u64 vcc, exec") ; a("s_cbranch_scc0 L_xpoll")
    a.lab("L_xgo")
    stamp()
    a("s_lshl_b32 s42, s42, 15"); a(f"s_lshl_b32 s43, s{S_WAVE}, 11"); a("s_add_u32 s42, s42, s43"); a(f"s_add_u32 s42, s42, {hex(XBUF)}")
    for j in range(3):
        a(f"s_add_u32 s43, s{S_KQ}, {j+1}"); a("s_and_b32 s43, s43, 3"); a("s_lshl_b32 s43, s43, 13"); a("s_add_u32 s43, s43, s42")
        a(f"buffer_load_dwordx4 {vr(V_KF+8*j,4)}, v7, {srd(SRD_WS)}, s43 offen sc1")
        a(f"buffer_load_dwordx4 {vr(V_KF+8*j+4,4)}, v7, {srd(SRD_WS)}, s43 offen offset:1024 sc1")
    a("v_and_b32 v4, 31, v0"); a("v_lshlrev_b32 v4, 12, v4"); a("v_lshrrev_b32 v5, 5, v0"); a("v_lshl_add_u32 v4, v5, 4, v4")
    a(f"s_lshl_b32 s40, s{S_RB}, 19"); a(f"s_lshl_b32 s41, s{S_WAVE}, 17"); a("s_add_u32 s40, s40, s41")
    a(f"s_lshl_b32 s41, s{S_BR}, 11"); a("s_add_u32 s40, s40, s41")
    a(f"s_lshl_b32 s41, s{S_IDX}, 8"); a("s_add_u32 s40, s40, s41")
    a(f"s_lshl_b32 s41, s{S_KQ}, 6"); a("s_add_u32 s40, s40, s41")
    for j in range(3):
        a(f"s_waitcnt vmcnt({4-2*j})")
        for i in range(8):
            a(f"v_lshlrev_b32 v5, 16, v{V_KF+8*j+i}"); a(f"v_and_b32 v6, 0xffff0000, v{V_KF+8*j+i}")
            a(f"v_add_f32 v{V_OUT+2*i}, v{V_OUT+2*i}, v5"); a(f"v_add_f32 v{V_OUT+2*i+1}, v{V_OUT+2*i+1}, v6")
    for i in range(8): a(f"v_cvt_pk_bf16_f32 v{V_BF+i}, v{V_OUT+2*i}, v{V_OUT+2*i+1}")
    a(f"buffer_store_dwordx4 {vr(V_BF,4)}, v4, {srd(SRD_OUT)}, s40 offen")
    a(f"buffer_store_dwordx4 {vr(V_BF+4,4)}, v4, {srd(SRD_OUT)}, s40 offen offset:32")
    a(f"s_or_b32 s40, s{S_KQ}, s{S_IDX}"); a(f"s_or_b32 s40, s40, s{S_WAVE}"); a("s_cmp_lg_u32 s40, 0"); a("s_cbranch_scc1 L_noep")
    a(f"s_lshl_b32 s40, s{S_CL}, 7")
    a(f"buffer_store_dwordx2 v[2:3], v1, {srd(SRD_WS)}, s40 offen")
    a.lab("L_noep")
    if opt.stamps:
        a("s_waitcnt vmcnt(0)")
        stamp()
        a(f"s_cmp_lg_u32 s{S_WAVE}, 0"); a("s_cbranch_scc1 L_end")
        a("s_waitcnt lgkmcnt(0)")
        n = nst[0]
        a(f"s_mul_i32 s40, s2, {n*8}"); a("s_add_u32 s40, s40, 0x8000000")
        a(f"s_add_u32 s42, s{SRD_WS}, s40"); a(f"s_addc_u32 s43, s{SRD_WS+1}, 0")
        for i in range(n):
            a(f"v_mov_b32 v8, s{S_ST+2*i}"); a(f"v_mov_b32 v9, s{S_ST+2*i+1}")
            a(f"global_store_dwordx2 v1, v[8:9], s[42:43] offset:{i*8}"); a("s_nop 1")
    a("s_endpgm")

    a.lab("L_helpers")
    a(f"s_cmp_eq_u32 s{S_WAVE}, 6"); a("s_cbranch_scc1 L_touch")
    a(f"s_cmp_eq_u32 s{S_WAVE}, 7"); a("s_cbranch_scc1 L_poll")
    a.c("---- loader waves")
    a(f"s_sub_u32 s40, s{S_WAVE}, 4")
    a("v_lshrrev_b32 v1, 3, v0"); a("v_and_b32 v2, 7, v0")
    a("v_lshrrev_b32 v3, 4, v0"); a("s_lshl_b32 s41, s40, 2"); a("v_add_u32 v4, s41, v3")
    a("v_xor_b32 v2, v2, v4"); a("v_lshlrev_b32 v2, 4, v2")
    a("s_lshl_b32 s41, s40, 3"); a("v_add_u32 v1, s41, v1")
    a("v_lshl_add_u32 v10, v1, 11, v2")
    a("v_lshl_add_u32 v11, v1, 8, v2")
    a("v_and_b32 v2, 15, v0"); a("v_lshlrev_b32 v4, 2, v3"); a("v_xor_b32 v2, v2, v4"); a("v_lshlrev_b32 v2, 4, v2")
    a("s_lshl_b32 s41, s40, 2"); a("v_add_u32 v1, s41, v3")
    a("v_lshl_add_u32 v12, v1, 13, v2")
    a("v_lshl_add_u32 v13, v1, 11, v2")
    a(f"s_lshl_b32 s{S_SLOT}, s40, 10")
    a(f"s_add_u32 s{S_DELTA}, s{S_SLOT}, {NS*SLOT}")
    a(f"s_lshl_b32 s{S_OFFR}, s{S_RB}, 18")
    a(f"s_lshl_b32 s{S_OFFW}, s{S_HG}, 8")
    a("s_waitcnt lgkmcnt(0)")
    def dma(vo, sr, sbase, lit, ldsoff, fl):
        a(f"s_add_u32 m0, s{S_SLOT}, {ldsoff}")
        a(f"s_add_u32 s41, s{sbase}, {hex(lit)}")
        a(f"buffer_load_dwordx4 v{vo}, {srd(sr)}, s41 offen {fl} lds")
    def adv_slot():
        a(f"s_add_u32 s{S_SLOT}, s{S_SLOT}, {SLOT}"); a(f"s_cmp_eq_u32 s{S_SLOT}, s{S_DELTA}")
        a(f"s_cselect_b32 s42, {NS*SLOT}, 0"); a(f"s_sub_u32 s{S_SLOT}, s{S_SLOT}, s42")
    fl = opt.dmaflags
    a(f"s_mov_b32 s{S_CNT}, 0")
    a.lab("L_ld1")
    for m in range(8):
        dma(10, SRD_X, S_OFFR, m*16*2048, m*2048, fl)
        dma(12, SRD_WQ, S_OFFW, m*8*8192, 16384 + m*2048, fl)
    adv_slot()
    if opt.samek:
        a(f"s_xor_b32 s{S_OFFR}, s{S_OFFR}, 128"); a(f"s_xor_b32 s{S_OFFW}, s{S_OFFW}, {64*8192}")
    else:
        a(f"s_add_u32 s{S_OFFR}, s{S_OFFR}, 128"); a(f"s_add_u32 s{S_OFFW}, s{S_OFFW}, {64*8192}")
    a(f"s_add_u32 s{S_CNT}, s{S_CNT}, 1")
    a(f"s_cmp_lt_u32 s{S_CNT}, 3"); a("s_cbranch_scc1 L_ld1")
    a("s_waitcnt vmcnt(32)"); a("s_barrier")
    a(f"s_cmp_lt_u32 s{S_CNT}, 16"); a("s_cbranch_scc1 L_ld1")
    a(f"s_lshl_b32 s{S_OFFR}, s{S_RB}, 20"); a(f"s_lshl_b32 s41, s{S_HG}, 13"); a(f"s_add_u32 s{S_OFFR}, s{S_OFFR}, s41")
    for c2 in range(2):
        for m in range(8):
            dma(11, SRD_K, S_OFFR, (m//2)*262144 + (m % 2)*4096 + c2*128, c2*16384 + m*2048, fl)
    adv_slot()
    a("s_waitcnt vmcnt(32)"); a("s_barrier")
    a(f"s_lshl_b32 s{S_OFFR}, s{S_RB}, 20"); a(f"s_lshl_b32 s41, s{S_KQ}, 16"); a(f"s_add_u32 s{S_OFFR}, s{S_OFFR}, s41")
    a(f"s_lshl_b32 s{S_OFFW}, s{S_KQ}, 21"); a(f"s_lshl_b32 s41, s{S_IDX}, 8"); a(f"s_add_u32 s{S_OFFW}, s{S_OFFW}, s41")
    a(f"s_mov_b32 s{S_CNT}, 0")
    a.lab("L_ld2")
    for m in range(8):
        dma(11, SRD_V, S_OFFR, (m//2)*262144 + (m % 2)*4096, m*2048, fl)
        dma(13, SRD_WO, S_OFFW, m*8*2048, 16384 + m*2048, fl)
    adv_slot()
    a(f"s_and_b32 s42, s{S_CNT}, 1"); a(f"s_mul_i32 s42, s42, {8192-256}"); a("s_add_u32 s42, s42, 128")
    if opt.samek:
        a(f"s_xor_b32 s{S_OFFR}, s{S_OFFR}, 128"); a(f"s_xor_b32 s{S_OFFW}, s{S_OFFW}, {64*2048}")
    else:
        a(f"s_add_u32 s{S_OFFR}, s{S_OFFR}, s42"); a(f"s_add_u32 s{S_OFFW}, s{S_OFFW}, {64*2048}")
    a(f"s_add_u32 s{S_CNT}, s{S_CNT}, 1")
    a("s_waitcnt vmcnt(32)"); a("s_barrier")
    a(f"s_cmp_lt_u32 s{S_CNT}, 16"); a("s_cbranch_scc1 L_ld2")
    a("s_waitcnt vmcnt(16)"); a("s_barrier")
    a("s_waitcnt vmcnt(0)"); a("s_barrier")
    a("s_endpgm")

    a.lab("L_touch")
    D = opt.dist
    if not opt.touch:
        a("s_endpgm")
    else:
        tf = opt.touchflags
        a("v_lshrrev_b32 v1, 2, v0")
        a(f"s_lshl_b32 s40, s{S_IDX}, 4"); a("v_add_u32 v2, s40, v1")
        a("v_lshlrev_b32 v10, 11, v2")
        a("v_lshrrev_b32 v3, 5, v2"); a("v_and_b32 v4, 31, v2"); a("v_lshlrev_b32 v3, 18, v3"); a("v_lshl_add_u32 v11, v4, 8, v3")
        a(f"s_lshl_b32 s40, s{S_RB}, 4"); a("v_add_u32 v2, s40, v1")
        a("v_bfe_u32 v3, v0, 1, 1"); a("v_lshlrev_b32 v3, 7, v3")
        a("v_lshl_add_u32 v12, v2, 13, v3"); a("v_lshl_add_u32 v13, v2, 11, v3")
        a("v_lshlrev_b32 v14, 7, v1")
        a(f"s_lshl_b32 s{S_OFFR}, s{S_RB}, 18"); a(f"s_lshl_b32 s{S_OFFW}, s{S_HG}, 8")
        a(f"s_lshl_b32 s{S_PB}, s{S_RB}, 20"); a(f"s_lshl_b32 s41, s{S_HG}, 13"); a(f"s_add_u32 s{S_PB}, s{S_PB}, s41")
        a(f"s_mov_b32 s{S_CNT}, 0")
        a("s_waitcnt lgkmcnt(0)")
        a.lab("L_t1")
        a(f"s_cmp_lt_u32 s{S_CNT}, {D-1}"); a("s_cbranch_scc1 L_t1n"); a("s_barrier"); a.lab("L_t1n")
        a(f"buffer_load_dword v20, v12, {srd(SRD_WQ)}, s{S_OFFW} offen {tf}")
        a(f"buffer_load_dword v21, v10, {srd(SRD_X)}, s{S_OFFR} offen {tf}")
        a(f"s_lshr_b32 s41, s{S_CNT}, 2"); a("s_lshl_b32 s41, s41, 18"); a(f"s_and_b32 s42, s{S_CNT}, 3"); a("s_lshl_b32 s42, s42, 11")
        a("s_add_u32 s41, s41, s42"); a(f"s_add_u32 s41, s41, s{S_PB}")
        a(f"buffer_load_dword v22, v14, {srd(SRD_K)}, s41 offen {tf}")
        a(f"s_add_u32 s{S_OFFR}, s{S_OFFR}, 128"); a(f"s_add_u32 s{S_OFFW}, s{S_OFFW}, {64*8192}")
        a("s_waitcnt vmcnt(30)")
        a(f"s_add_u32 s{S_CNT}, s{S_CNT}, 1"); a(f"s_cmp_lt_u32 s{S_CNT}, 16"); a("s_cbranch_scc1 L_t1")
        a("s_barrier")
        a(f"s_lshl_b32 s{S_OFFR}, s{S_RB}, 20"); a(f"s_lshl_b32 s41, s{S_KQ}, 16"); a(f"s_add_u32 s{S_OFFR}, s{S_OFFR}, s41")
        a(f"s_lshl_b32 s{S_OFFW}, s{S_KQ}, 21"); a(f"s_lshl_b32 s41, s{S_IDX}, 8"); a(f"s_add_u32 s{S_OFFW}, s{S_OFFW}, s41")
        a(f"s_mov_b32 s{S_CNT}, 0")
        a.lab("L_t2")
        a("s_barrier")
        a(f"buffer_load_dword v20, v13, {srd(SRD_WO)}, s{S_OFFW} offen {tf}")
        a(f"buffer_load_dword v21, v11, {srd(SRD_V)}, s{S_OFFR} offen {tf}")
        a(f"s_and_b32 s42, s{S_CNT}, 1"); a(f"s_mul_i32 s42, s42, {8192-256}"); a("s_add_u32 s42, s42, 128")
        a(f"s_add_u32 s{S_OFFR}, s{S_OFFR}, s42"); a(f"s_add_u32 s{S_OFFW}, s{S_OFFW}, {64*2048}")
        a("s_waitcnt vmcnt(30)")
        a(f"s_add_u32 s{S_CNT}, s{S_CNT}, 1"); a(f"s_cmp_lt_u32 s{S_CNT}, 16"); a("s_cbranch_scc1 L_t2")
        a("s_endpgm")

    a.lab("L_poll")
    a("s_waitcnt lgkmcnt(0)")
    a(f"s_lshl_b32 s40, s{S_CL}, 7")
    a(f"s_load_dwordx2 s[{S_TAG}:{S_TAG+1}], s[{SRD_WS}:{SRD_WS+1}], s40")
    a("v_bfe_u32 v1, v0, 2, 3"); a("v_and_b32 v2, 3, v0"); a("v_lshlrev_b32 v2, 3, v2"); a("v_lshl_add_u32 v4, v1, 7, v2")
    a(f"s_lshl_b32 s40, s{S_CL}, 5"); a(f"s_lshl_b32 s41, s{S_KQ}, 3"); a("s_add_u32 s40, s40, s41")
    a("s_lshl_b32 s40, s40, 7"); a(f"s_add_u32 s43, s40, {hex(PFLAG)}")
    a("s_waitcnt lgkmcnt(0)")
    a(f"s_mul_i32 s{S_TAG}, s{S_TAG}, 0x9e3779b1"); a(f"s_add_u32 s{S_TAG}, s{S_TAG}, 0x7f4a7c15")
    a(f"s_mul_i32 s{S_TAG+1}, s{S_TAG+1}, 0x85ebca6b"); a(f"s_add_u32 s{S_TAG+1}, s{S_TAG+1}, 0xc2b2ae35")
    a(f"v_mov_b32 v2, s{S_TAG}"); a(f"v_mov_b32 v3, s{S_TAG+1}")
    a(f"s_mov_b32 s{S_CNT}, 20")
    a.lab("L_pb"); a("s_barrier"); a(f"s_sub_u32 s{S_CNT}, s{S_CNT}, 1"); a(f"s_cmp_lg_u32 s{S_CNT}, 0"); a("s_cbranch_scc1 L_pb")
    a(f"s_mov_b32 s44, {opt.spin}")
    a.lab("L_ppoll")
    a(f"buffer_load_dwordx2 v[8:9], v4, {srd(SRD_WS)}, s43 offen sc1")
    a("s_sub_u32 s44, s44, 1"); a("s_cmp_eq_u32 s44, 0"); a("s_cbranch_scc1 L_pgo")
    a("s_waitcnt vmcnt(0)")
    a("v_cmp_eq_u64 vcc, v[8:9], v[2:3]")
    a("s_cmp_eq_u64 vcc, exec"); a("s_cbranch_scc0 L_ppoll")
    a.lab("L_pgo")
    a("s_barrier")
    a.lab("L_end")
    a("s_endpgm")
    a.raw('.section .rodata,"a"'); a.raw(".p2align 6"); a.raw(f".amdhsa_kernel {NAME}_kernel")
    for l in ("next_free_vgpr 256", "next_free_sgpr 102", "accum_offset 256", "group_segment_fixed_size 0", "kernarg_size 104",
              "user_sgpr_count 2", "user_sgpr_kernarg_segment_ptr 1", "system_sgpr_workgroup_id_x 1"):
        a.raw("  .amdhsa_" + l)
    a.raw(".end_amdhsa_kernel")
    return a.text(), nst[0]

def parse(argv):
    ap = argparse.ArgumentParser()
    ap.add_argument("-o", default="cdna_kernels/" + NAME + ".s")
    ap.add_argument("--stamps", action="store_true")
    ap.add_argument("--prio", type=int, default=0)
    ap.add_argument("--barstep", type=int, default=1)
    ap.add_argument("--flagpos", type=lambda s: tuple(map(int, s.split(","))), default=(3, 3))
    ap.add_argument("--spin", type=int, default=100000)
    ap.add_argument("--dist", type=int, default=7)
    ap.add_argument("--touch", type=int, default=1)
    ap.add_argument("--dmaflags", default="")
    ap.add_argument("--touchflags", default="")
    ap.add_argument("--nodma", action="store_true")
    ap.add_argument("--samek", action="store_true")
    ap.add_argument("--cyc", action="store_true")
    ap.add_argument("--nolds", action="store_true")
    ap.add_argument("--nomfma", action="store_true")
    return ap.parse_args(argv)

if __name__ == "__main__":
    opt = parse(sys.argv[1:])
    t, n = gen(opt)
    open(opt.o, "w").write(t)
    print("wrote", opt.o, "stamps", n)
```

```python
import sys, argparse
NAME = "concat_heads__mha_block_cached__mha_block_cached__near_ridge"

class Asm:
    def __init__(self): self.L = []
    def __call__(self, s):
        for pat in getattr(self, "drop", []):
            if pat in s: return
        self.L.append("    " + s)
    def lab(self, s): self.L.append(s + ":")
    def c(self, s): self.L.append("    ; " + s)
    def raw(self, s): self.L.append(s)
    def text(self): return "\n".join(self.L) + "\n"

EPOCH = 0; PFLAG = 4096; XFLAG = 65536; PBUF = 0x100000; XBUF = 0x400000; WS_REC = 0xC00000
SLOT = 32768; NS = 5
S_BR, S_KQ, S_RB, S_IDX, S_WAVE = 3, 4, 5, 6, 7
SRD_X, SRD_K, SRD_V, SRD_WQ, SRD_WO, SRD_WS, SRD_OUT = 8, 12, 16, 20, 24, 28, 32
S_TAG = 36
S_CL = 38
S_HG = 39
S_T0, S_T1, S_T2, S_T3 = 40, 41, 42, 43
S_CNT = 44; S_SLOT = 45; S_DELTA = 46; S_OFFR = 47; S_OFFW = 48; S_PB = 49; S_C = 50
S_ST = 60
def srd(b): return f"s[{b}:{b+3}]"
V_AR = 8; V_AW = 12; V_R = 16; V_W = 24; V_P = 40; V_BF = 48; V_KF = 80; V_PN = 80; V_S = 112; V_ACC = 128; V_OUT = 192
def vr(b, n): return f"v[{b}:{b+n-1}]"

def gen(opt):
    a = Asm()
    a.drop = []
    if opt.nodma: a.drop.append(" lds")
    if opt.nolds: a.drop += ["ds_read"]
    if opt.nomfma: a.drop += ["v_mfma"]
    a.raw(f"; @launch grid=(256,1,1) block=(512,1,1) lds={SLOT*NS}")
    a.raw('.amdgcn_target "amdgcn-amd-amdhsa--gfx950"')
    a.raw(".text"); a.raw(f".globl {NAME}_kernel"); a.raw(".p2align 8"); a.raw(f".type {NAME}_kernel,@function")
    a.lab(f"{NAME}_kernel")
    nst = [0]
    def stamp():
        if opt.stamps:
            r = S_ST + 2 * nst[0]; nst[0] += 1
            a(f"{'s_memtime' if opt.cyc else 's_memrealtime'} s[{r}:{r+1}]")
    stamp()
    if opt.fixdur: a("s_memrealtime s[90:91]")
    a("s_cmp_ge_u32 s2, 256"); a("s_cbranch_scc1 L_end")
    a("s_and_b32 s40, s2, 7")
    a(f"s_lshr_b32 s{S_BR}, s40, 2"); a(f"s_and_b32 s{S_KQ}, s40, 3")
    a(f"s_mul_i32 s41, s{S_BR}, 40")
    a("s_add_u32 s42, s0, s41"); a("s_addc_u32 s43, s1, 0")
    a(f"s_load_dwordx2 s[{SRD_X}:{SRD_X+1}], s[42:43], 0")
    a(f"s_load_dwordx2 s[{SRD_WQ}:{SRD_WQ+1}], s[42:43], 24")
    a(f"s_load_dwordx2 s[{SRD_K}:{SRD_K+1}], s[42:43], 8")
    a(f"s_load_dwordx2 s[{SRD_V}:{SRD_V+1}], s[42:43], 16")
    a(f"s_load_dwordx2 s[{SRD_WO}:{SRD_WO+1}], s[42:43], 32")
    a(f"s_load_dwordx2 s[{SRD_WS}:{SRD_WS+1}], s[0:1], 96")
    a(f"s_load_dwordx2 s[{SRD_OUT}:{SRD_OUT+1}], s[0:1], 80")
    a(f"s_lshr_b32 s{S_RB}, s2, 6"); a(f"s_bfe_u32 s{S_IDX}, s2, 0x30003")
    a("v_lshrrev_b32 v1, 6, v0"); a("v_and_b32 v0, 63, v0")
    a(f"s_lshl_b32 s{S_CL}, s{S_BR}, 2"); a(f"s_add_u32 s{S_CL}, s{S_CL}, s{S_RB}")
    a(f"v_readfirstlane_b32 s{S_WAVE}, v1")
    a(f"s_lshl_b32 s{S_HG}, s{S_KQ}, 3"); a(f"s_add_u32 s{S_HG}, s{S_HG}, s{S_IDX}")
    for b, n in ((SRD_X, 0x100000), (SRD_K, 0x400000), (SRD_V, 0x400000), (SRD_WQ, 0x800000), (SRD_WO, 0x800000), (SRD_WS, WS_REC), (SRD_OUT, 0x200000)):
        a(f"s_mov_b32 s{b+2}, {hex(n)}"); a(f"s_mov_b32 s{b+3}, 0x20000")
    a(f"s_cmp_ge_u32 s{S_WAVE}, 4"); a("s_cbranch_scc1 L_helpers")

    a.c("---- compute wave setup")
    if opt.prio: a(f"s_setprio {opt.prio}")
    a("v_and_b32 v1, 31, v0"); a("v_lshrrev_b32 v2, 5, v0")
    a(f"s_lshl_b32 s40, s{S_WAVE}, 12")
    a("v_lshrrev_b32 v3, 1, v1"); a("v_and_b32 v3, 7, v3"); a("v_xor_b32 v3, v3, v2"); a("v_lshlrev_b32 v3, 4, v3")
    a("v_lshl_add_u32 v3, v1, 7, v3"); a(f"v_add_u32 v{V_AR}, s40, v3")
    for s in range(1, 4): a(f"v_xor_b32 v{V_AR+s}, {32*s}, v{V_AR}")
    a("v_bfe_u32 v5, v0, 2, 2")
    a("v_lshl_add_u32 v4, v2, 3, v5"); a("v_lshlrev_b32 v4, 8, v4")
    a("v_bfe_u32 v6, v0, 4, 1"); a("v_lshl_add_u32 v4, v6, 5, v4")
    a("v_and_b32 v6, 1, v0"); a("v_lshl_add_u32 v4, v6, 4, v4")
    a("v_bfe_u32 v6, v0, 1, 1"); a("v_lshl_add_u32 v4, v6, 3, v4")
    a("v_add_u32 v4, 16384, v4")
    for t in range(4):
        a(f"v_xor_b32 v6, {t}, v5"); a(f"v_lshl_add_u32 v{V_AW+t}, v6, 6, v4")
    a("s_waitcnt lgkmcnt(0)")
    a(f"s_lshl_b32 s40, s{S_CL}, 7")
    a(f"s_load_dwordx2 s[{S_TAG}:{S_TAG+1}], s[{SRD_WS}:{SRD_WS+1}], s40")
    for i in range(64): a(f"v_mov_b32 v{V_ACC+i}, 0")
    for i in range(64): a(f"v_mov_b32 v{V_OUT+i}, 0")
    a(f"s_mov_b32 s{S_SLOT}, 0"); a(f"s_mov_b32 s56, {SLOT}")
    a(f"s_mov_b32 s{S_C}, 0x3e0293ee")
    a("v_lshlrev_b32 v7, 4, v0")
    a("s_waitcnt lgkmcnt(0)")
    a(f"s_mul_i32 s{S_TAG}, s{S_TAG}, 0x9e3779b1"); a(f"s_add_u32 s{S_TAG}, s{S_TAG}, 0x7f4a7c15")
    a(f"s_mul_i32 s{S_TAG+1}, s{S_TAG+1}, 0x85ebca6b"); a(f"s_add_u32 s{S_TAG+1}, s{S_TAG+1}, 0xc2b2ae35")
    a("s_barrier")
    stamp()

    def rd_R(s, dst): a(f"ds_read_b128 {vr(V_R+4*dst,4)}, v{V_AR+s}")
    def rd_W(s, t):
        a(f"ds_read_b64_tr_b16 {vr(V_W+4*t,2)}, v{V_AW+t} offset:{s*4096}")
        a(f"ds_read_b64_tr_b16 {vr(V_W+4*t+2,2)}, v{V_AW+t} offset:{s*4096+1024}")
    def first_reads():
        rd_R(0, 0)
        for t in range(4): rd_W(0, t)
    def next_delta():
        a(f"s_add_u32 s{S_SLOT}, s{S_SLOT}, 1"); a(f"s_cmp_eq_u32 s{S_SLOT}, {NS}")
        a(f"s_cselect_b32 s{S_DELTA}, {hex((-(NS-1)*SLOT) & 0xffffffff)}, s56")
        a(f"s_cselect_b32 s{S_SLOT}, 0, s{S_SLOT}")
    def item(phase, zero_first=False, bar=True, hooks=None):
        hooks = hooks or {}
        for s in range(4):
            for t in range(4):
                a(f"s_waitcnt lgkmcnt({6 if t == 0 else 7})")
                acc = vr(V_ACC + 16*t, 16); C = "0" if (zero_first and s == 0) else acc
                W = vr(V_W + 4*t, 4); R = vr(V_R + 4*(s % 2), 4)
                if phase == 1: a(f"v_mfma_f32_32x32x16_bf16 {acc}, {W}, {R}, {C}")
                else:          a(f"v_mfma_f32_32x32x16_bf16 {acc}, {R}, {W}, {C}")
                ns = (s + 1) % 4
                if s == 3: a(f"v_add_u32 v{V_AW+t}, s{S_DELTA}, v{V_AW+t}")
                if t == 0: rd_R(ns, (s + 1) % 2)
                rd_W(ns, t)
                if s == 0 and t == 1: next_delta()
                if s == 0 and t == 2: a(f"v_add_u32 v{V_AR}, s{S_DELTA}, v{V_AR}")
                if t == 1 and s in (1, 2): a(f"v_add_u32 v{V_AR+s}, s{S_DELTA}, v{V_AR+s}")
                if t == 2 and s == 2: a(f"v_add_u32 v{V_AR+3}, s{S_DELTA}, v{V_AR+3}")
                if bar and s == opt.barstep and t == 3: a("s_barrier")
                if (s, t) in hooks: hooks[(s, t)]()

    first_reads()
    a(f"s_mov_b32 s{S_CNT}, 16")
    a.lab("L_p1")
    item(1)
    a(f"s_sub_u32 s{S_CNT}, s{S_CNT}, 1"); a(f"s_cmp_lg_u32 s{S_CNT}, 0"); a("s_cbranch_scc1 L_p1")
    stamp()
    a.c("---- scores")
    a("s_waitcnt lgkmcnt(0)")
    for t in range(4):
        for u in range(2):
            a(f"ds_read_b128 {vr(V_KF + 4*(2*t+u), 4)}, v{V_AR + (t % 2)*2 + u} offset:{(t//2)*16384}")
    next_delta()
    for s in range(4): a(f"v_add_u32 v{V_AR+s}, s{S_DELTA}, v{V_AR+s}")
    a(f"v_add_u32 v{V_AW}, s{S_DELTA}, v{V_AW}")
    a(f"v_lshlrev_b32 v6, 6, v5"); a(f"v_sub_u32 v4, v{V_AW}, v6")
    for t in range(4):
        a(f"s_add_u32 s40, s{S_KQ}, {t}"); a("s_and_b32 s40, s40, 3")
        a(f"v_xor_b32 v6, s40, v5"); a(f"v_lshl_add_u32 v{V_AW+t}, v6, 6, v4")
    for i in range(32): a(f"v_cvt_pk_bf16_f32 v{V_BF+i}, v{V_ACC+2*i}, v{V_ACC+2*i+1}")
    a("s_waitcnt lgkmcnt(0)")
    a("s_barrier")
    first_reads()
    for j in range(8):
        C = "0" if j == 0 else vr(V_S, 16)
        a(f"v_mfma_f32_32x32x16_bf16 {vr(V_S,16)}, {vr(V_KF+4*j,4)}, {vr(V_BF+4*j,4)}, {C}")
    a("s_nop 15")
    a.c("---- softmax over keys (16 regs x 2 halves)")
    S = lambda i: f"v{V_S+i}"
    a(f"v_max3_f32 v1, {S(0)}, {S(1)}, {S(2)}")
    for i in range(3, 15, 2): a(f"v_max3_f32 v1, v1, {S(i)}, {S(i+1)}")
    a(f"v_max_f32 v1, v1, {S(15)}")
    a("v_mov_b32 v2, v1"); a("s_nop 1"); a("v_permlane32_swap_b32 v1, v2"); a("s_nop 1")
    a("v_max_f32 v1, v1, v2"); a(f"v_mul_f32 v1, s{S_C}, v1")
    for i in range(16): a(f"v_fma_f32 {S(i)}, {S(i)}, s{S_C}, -v1")
    for i in range(16): a(f"v_exp_f32 {S(i)}, {S(i)}")
    a("s_nop 0")
    a(f"v_add_f32 v1, {S(0)}, {S(1)}"); a(f"v_add_f32 v2, {S(2)}, {S(3)}")
    for i in range(4, 16, 2):
        a(f"v_add_f32 v1, v1, {S(i)}"); a(f"v_add_f32 v2, v2, {S(i+1)}")
    a("v_add_f32 v1, v1, v2")
    a("v_mov_b32 v2, v1"); a("s_nop 1"); a("v_permlane32_swap_b32 v1, v2"); a("s_nop 1")
    a("v_add_f32 v1, v1, v2"); a("v_rcp_f32 v1, v1"); a("s_nop 0")
    for i in range(16): a(f"v_mul_f32 {S(i)}, {S(i)}, v1")
    for i in range(8): a(f"v_cvt_pk_bf16_f32 v{V_P+i}, {S(2*i)}, {S(2*i+1)}")
    a(f"s_lshl_b32 s40, s{S_CL}, 5"); a(f"s_add_u32 s40, s40, s{S_HG}")
    a(f"s_lshl_b32 s41, s40, 13"); a(f"s_lshl_b32 s42, s{S_WAVE}, 11"); a("s_add_u32 s41, s41, s42")
    a(f"s_add_u32 s41, s41, {hex(PBUF)}")
    a(f"buffer_store_dwordx4 {vr(V_P,4)}, v7, {srd(SRD_WS)}, s41 offen sc1")
    a(f"buffer_store_dwordx4 {vr(V_P+4,4)}, v7, {srd(SRD_WS)}, s41 offen offset:1024 sc1")
    a(f"s_lshl_b32 s42, s40, 7"); a(f"s_lshl_b32 s43, s{S_WAVE}, 3"); a("s_add_u32 s42, s42, s43")
    a(f"s_add_u32 s{S_OFFR}, s42, {hex(PFLAG)}")
    a(f"v_mov_b32 v2, s{S_TAG}"); a(f"v_mov_b32 v3, s{S_TAG+1}"); a("v_mov_b32 v1, 0")
    a(f"s_lshl_b32 s40, s{S_CL}, 5"); a(f"s_lshl_b32 s41, s{S_KQ}, 3"); a("s_add_u32 s40, s40, s41")
    a(f"s_lshl_b32 s40, s40, 13"); a(f"s_lshl_b32 s41, s{S_WAVE}, 11"); a("s_add_u32 s40, s40, s41")
    a(f"s_add_u32 s{S_PB}, s40, {hex(PBUF)}")
    stamp()
    def flagP():
        a("s_waitcnt vmcnt(0)")
        a(f"buffer_store_dwordx2 v[2:3], v1, {srd(SRD_WS)}, s{S_OFFR} offen sc1")
    def cvt_tile(t, lo=0, hi=8):
        for i in range(lo, hi): a(f"v_cvt_pk_bf16_f32 v{V_BF+8*t+i}, v{V_ACC+16*t+2*i}, v{V_ACC+16*t+2*i+1}")
    def pv(t, u, P):
        o = vr(V_OUT + 16*t, 16)
        a(f"v_mfma_f32_32x32x16_bf16 {o}, {vr(V_BF+8*t+4*u,4)}, {vr(P+4*u,4)}, {o}")
    a.c("---- phase 2, head 0 (peeled)")
    item(2, zero_first=True, hooks={opt.flagpos: flagP})
    item(2)
    a("s_nop 7")
    for t in range(4): cvt_tile(t)
    a(f"s_mov_b32 s{S_CNT}, 7")
    a.lab("L_p2")
    def loadP():
        a(f"buffer_load_dwordx4 {vr(V_P,4)}, v7, {srd(SRD_WS)}, s{S_PB} offen sc1")
        a(f"buffer_load_dwordx4 {vr(V_P+4,4)}, v7, {srd(SRD_WS)}, s{S_PB} offen offset:1024 sc1")
        a(f"s_add_u32 s{S_PB}, s{S_PB}, 8192")
        a(f"s_cmp_lg_u32 s{S_CNT}, 1"); a("s_cbranch_scc1 L_p2_nolast")
        a(f"buffer_load_dwordx4 {vr(V_PN,4)}, v7, {srd(SRD_WS)}, s{S_PB} offen sc1")
        a(f"buffer_load_dwordx4 {vr(V_PN+4,4)}, v7, {srd(SRD_WS)}, s{S_PB} offen offset:1024 sc1")
        a.lab("L_p2_nolast")
    item(2, zero_first=True, hooks={(opt.barstep, 3): loadP})
    item(2)
    a("s_waitcnt vmcnt(0)")
    for t in range(4):
        pv(t, 0, V_P)
        if t > 0: cvt_tile(t-1, 4, 8)
        pv(t, 1, V_P)
        cvt_tile(t, 0, 4)
    cvt_tile(3, 4, 8)
    a(f"s_sub_u32 s{S_CNT}, s{S_CNT}, 1"); a(f"s_cmp_lg_u32 s{S_CNT}, 0"); a("s_cbranch_scc1 L_p2")
    for t in (1, 2, 3, 0):
        pv(t, 0, V_PN); pv(t, 1, V_PN)
    stamp()
    a.c("---- split-K reduce-scatter between the 4 kq workgroups")
    a(f"s_lshl_b32 s40, s{S_CL}, 5"); a(f"s_add_u32 s40, s40, s{S_IDX}")
    a(f"s_lshl_b32 s41, s{S_KQ}, 2"); a(f"s_add_u32 s41, s41, s{S_WAVE}")
    a("s_waitcnt lgkmcnt(0)")
    for t in (1, 2, 3):
        a(f"s_add_u32 s42, s{S_KQ}, {t}"); a("s_and_b32 s42, s42, 3"); a("s_lshl_b32 s42, s42, 3"); a("s_add_u32 s42, s42, s40")
        a(f"s_lshl_b32 s{50+t}, s42, 7")
        a("s_lshl_b32 s42, s42, 15"); a("s_lshl_b32 s43, s41, 11"); a("s_add_u32 s42, s42, s43"); a(f"s_add_u32 s42, s42, {hex(XBUF)}")
        if t == 1: a("s_nop 3")
        for i in range(8): a(f"v_cvt_pk_bf16_f32 v{V_BF+8*t+i}, v{V_OUT+16*t+2*i}, v{V_OUT+16*t+2*i+1}")
        a(f"buffer_store_dwordx4 {vr(V_BF+8*t,4)}, v7, {srd(SRD_WS)}, s42 offen sc1")
        a(f"buffer_store_dwordx4 {vr(V_BF+8*t+4,4)}, v7, {srd(SRD_WS)}, s42 offen offset:1024 sc1")
    a("s_lshl_b32 s43, s41, 3"); a(f"s_add_u32 s43, s43, {hex(XFLAG)}")
    a("s_waitcnt vmcnt(0)")
    for t in (1, 2, 3):
        a(f"s_add_u32 s42, s{50+t}, s43")
        a(f"buffer_store_dwordx2 v[2:3], v1, {srd(SRD_WS)}, s42 offen sc1")
    stamp()
    a(f"s_lshl_b32 s42, s{S_KQ}, 3"); a("s_add_u32 s42, s42, s40")
    a("v_and_b32 v4, 3, v0"); a("v_min_u32 v4, 2, v4"); a(f"v_add_u32 v4, s{S_KQ}, v4"); a("v_add_u32 v4, 1, v4"); a("v_and_b32 v4, 3, v4")
    a(f"v_lshlrev_b32 v4, 5, v4")
    a(f"s_lshl_b32 s43, s42, 7"); a(f"s_lshl_b32 s44, s{S_WAVE}, 3"); a("s_add_u32 s43, s43, s44"); a(f"s_add_u32 s43, s43, {hex(XFLAG)}")
    a(f"s_mov_b32 s44, {opt.spin}")
    a.lab("L_xpoll")
    a(f"buffer_load_dwordx2 v[8:9], v4, {srd(SRD_WS)}, s43 offen sc1")
    a("s_sub_u32 s44, s44, 1"); a("s_cmp_eq_u32 s44, 0"); a("s_cbranch_scc1 L_xgo")
    a("s_waitcnt vmcnt(0)")
    a("v_cmp_eq_u64 vcc, v[8:9], v[2:3]")
    a("s_cmp_eq_u64 vcc, exec") ; a("s_cbranch_scc0 L_xpoll")
    a.lab("L_xgo")
    stamp()
    a("s_lshl_b32 s42, s42, 15"); a(f"s_lshl_b32 s43, s{S_WAVE}, 11"); a("s_add_u32 s42, s42, s43"); a(f"s_add_u32 s42, s42, {hex(XBUF)}")
    for j in range(3):
        a(f"s_add_u32 s43, s{S_KQ}, {j+1}"); a("s_and_b32 s43, s43, 3"); a("s_lshl_b32 s43, s43, 13"); a("s_add_u32 s43, s43, s42")
        a(f"buffer_load_dwordx4 {vr(V_KF+8*j,4)}, v7, {srd(SRD_WS)}, s43 offen sc1")
        a(f"buffer_load_dwordx4 {vr(V_KF+8*j+4,4)}, v7, {srd(SRD_WS)}, s43 offen offset:1024 sc1")
    a("v_and_b32 v4, 31, v0"); a("v_lshlrev_b32 v4, 12, v4"); a("v_lshrrev_b32 v5, 5, v0"); a("v_lshl_add_u32 v4, v5, 4, v4")
    a(f"s_lshl_b32 s40, s{S_RB}, 19"); a(f"s_lshl_b32 s41, s{S_WAVE}, 17"); a("s_add_u32 s40, s40, s41")
    a(f"s_lshl_b32 s41, s{S_BR}, 11"); a("s_add_u32 s40, s40, s41")
    a(f"s_lshl_b32 s41, s{S_IDX}, 8"); a("s_add_u32 s40, s40, s41")
    a(f"s_lshl_b32 s41, s{S_KQ}, 6"); a("s_add_u32 s40, s40, s41")
    for j in range(3):
        a(f"s_waitcnt vmcnt({4-2*j})")
        for i in range(8):
            a(f"v_lshlrev_b32 v5, 16, v{V_KF+8*j+i}"); a(f"v_and_b32 v6, 0xffff0000, v{V_KF+8*j+i}")
            a(f"v_add_f32 v{V_OUT+2*i}, v{V_OUT+2*i}, v5"); a(f"v_add_f32 v{V_OUT+2*i+1}, v{V_OUT+2*i+1}, v6")
    for i in range(8): a(f"v_cvt_pk_bf16_f32 v{V_BF+i}, v{V_OUT+2*i}, v{V_OUT+2*i+1}")
    a(f"buffer_store_dwordx4 {vr(V_BF,4)}, v4, {srd(SRD_OUT)}, s40 offen")
    a(f"buffer_store_dwordx4 {vr(V_BF+4,4)}, v4, {srd(SRD_OUT)}, s40 offen offset:32")
    a(f"s_or_b32 s40, s{S_KQ}, s{S_IDX}"); a(f"s_or_b32 s40, s40, s{S_WAVE}"); a("s_cmp_lg_u32 s40, 0"); a("s_cbranch_scc1 L_noep")
    a(f"s_lshl_b32 s40, s{S_CL}, 7")
    a(f"buffer_store_dwordx2 v[2:3], v1, {srd(SRD_WS)}, s40 offen")
    a.lab("L_noep")
    if opt.fixdur:
        a.lab("L_fix")
        a("s_memrealtime s[92:93]"); a("s_waitcnt lgkmcnt(0)"); a("s_sub_u32 s92, s92, s90")
        a(f"s_cmp_lt_u32 s92, {opt.fixdur}"); a("s_cbranch_scc1 L_fix")
    if opt.stamps:
        a("s_waitcnt vmcnt(0)")
        stamp()
        a(f"s_cmp_lg_u32 s{S_WAVE}, 0"); a("s_cbranch_scc1 L_end")
        a("s_waitcnt lgkmcnt(0)")
        n = nst[0]
        a(f"s_mul_i32 s40, s2, {n*8}"); a("s_add_u32 s40, s40, 0x8000000")
        a(f"s_add_u32 s42, s{SRD_WS}, s40"); a(f"s_addc_u32 s43, s{SRD_WS+1}, 0")
        for i in range(n):
            a(f"v_mov_b32 v8, s{S_ST+2*i}"); a(f"v_mov_b32 v9, s{S_ST+2*i+1}")
            a(f"global_store_dwordx2 v1, v[8:9], s[42:43] offset:{i*8}"); a("s_nop 1")
    a("s_endpgm")

    a.lab("L_helpers")
    a(f"s_cmp_eq_u32 s{S_WAVE}, 6"); a("s_cbranch_scc1 L_touch")
    a(f"s_cmp_eq_u32 s{S_WAVE}, 7"); a("s_cbranch_scc1 L_poll")
    a.c("---- loader waves")
    a(f"s_sub_u32 s40, s{S_WAVE}, 4")
    a("v_lshrrev_b32 v1, 3, v0"); a("v_and_b32 v2, 7, v0")
    a("v_lshrrev_b32 v3, 4, v0"); a("s_lshl_b32 s41, s40, 2"); a("v_add_u32 v4, s41, v3")
    a("v_xor_b32 v2, v2, v4"); a("v_lshlrev_b32 v2, 4, v2")
    a("s_lshl_b32 s41, s40, 3"); a("v_add_u32 v1, s41, v1")
    a("v_lshl_add_u32 v10, v1, 11, v2")
    a("v_lshl_add_u32 v11, v1, 8, v2")
    a("v_and_b32 v2, 15, v0"); a("v_lshlrev_b32 v4, 2, v3"); a("v_xor_b32 v2, v2, v4"); a("v_lshlrev_b32 v2, 4, v2")
    a("s_lshl_b32 s41, s40, 2"); a("v_add_u32 v1, s41, v3")
    a("v_lshl_add_u32 v12, v1, 13, v2")
    a("v_lshl_add_u32 v13, v1, 11, v2")
    a(f"s_lshl_b32 s{S_SLOT}, s40, 10")
    a(f"s_add_u32 s{S_DELTA}, s{S_SLOT}, {NS*SLOT}")
    a(f"s_lshl_b32 s{S_OFFR}, s{S_RB}, 18")
    a(f"s_lshl_b32 s{S_OFFW}, s{S_HG}, 8")
    a("s_waitcnt lgkmcnt(0)")
    def dma(vo, sr, sbase, lit, ldsoff, fl):
        a(f"s_add_u32 m0, s{S_SLOT}, {ldsoff}")
        a(f"s_add_u32 s41, s{sbase}, {hex(lit)}")
        a(f"buffer_load_dwordx4 v{vo}, {srd(sr)}, s41 offen {fl} lds")
    def adv_slot():
        a(f"s_add_u32 s{S_SLOT}, s{S_SLOT}, {SLOT}"); a(f"s_cmp_eq_u32 s{S_SLOT}, s{S_DELTA}")
        a(f"s_cselect_b32 s42, {NS*SLOT}, 0"); a(f"s_sub_u32 s{S_SLOT}, s{S_SLOT}, s42")
    fl = opt.dmaflags
    a(f"s_mov_b32 s{S_CNT}, 0")
    a.lab("L_ld1")
    for m in range(8):
        dma(10, SRD_X, S_OFFR, m*16*2048, m*2048, fl)
        dma(12, SRD_WQ, S_OFFW, m*8*8192, 16384 + m*2048, fl)
    adv_slot()
    if opt.samek:
        a(f"s_xor_b32 s{S_OFFR}, s{S_OFFR}, 128"); a(f"s_xor_b32 s{S_OFFW}, s{S_OFFW}, {64*8192}")
    else:
        a(f"s_add_u32 s{S_OFFR}, s{S_OFFR}, 128"); a(f"s_add_u32 s{S_OFFW}, s{S_OFFW}, {64*8192}")
    a(f"s_add_u32 s{S_CNT}, s{S_CNT}, 1")
    a(f"s_cmp_lt_u32 s{S_CNT}, 3"); a("s_cbranch_scc1 L_ld1")
    a("s_waitcnt vmcnt(32)"); a("s_barrier")
    a(f"s_cmp_lt_u32 s{S_CNT}, 16"); a("s_cbranch_scc1 L_ld1")
    a(f"s_lshl_b32 s{S_OFFR}, s{S_RB}, 20"); a(f"s_lshl_b32 s41, s{S_HG}, 13"); a(f"s_add_u32 s{S_OFFR}, s{S_OFFR}, s41")
    for c2 in range(2):
        for m in range(8):
            dma(11, SRD_K, S_OFFR, (m//2)*262144 + (m % 2)*4096 + c2*128, c2*16384 + m*2048, fl)
    adv_slot()
    a("s_waitcnt vmcnt(32)"); a("s_barrier")
    a(f"s_lshl_b32 s{S_OFFR}, s{S_RB}, 20"); a(f"s_lshl_b32 s41, s{S_KQ}, 16"); a(f"s_add_u32 s{S_OFFR}, s{S_OFFR}, s41")
    a(f"s_lshl_b32 s{S_OFFW}, s{S_KQ}, 21"); a(f"s_lshl_b32 s41, s{S_IDX}, 8"); a(f"s_add_u32 s{S_OFFW}, s{S_OFFW}, s41")
    a(f"s_mov_b32 s{S_CNT}, 0")
    a.lab("L_ld2")
    for m in range(8):
        dma(11, SRD_V, S_OFFR, (m//2)*262144 + (m % 2)*4096, m*2048, fl)
        dma(13, SRD_WO, S_OFFW, m*8*2048, 16384 + m*2048, fl)
    adv_slot()
    a(f"s_and_b32 s42, s{S_CNT}, 1"); a(f"s_mul_i32 s42, s42, {8192-256}"); a("s_add_u32 s42, s42, 128")
    if opt.samek:
        a(f"s_xor_b32 s{S_OFFR}, s{S_OFFR}, 128"); a(f"s_xor_b32 s{S_OFFW}, s{S_OFFW}, {64*2048}")
    else:
        a(f"s_add_u32 s{S_OFFR}, s{S_OFFR}, s42"); a(f"s_add_u32 s{S_OFFW}, s{S_OFFW}, {64*2048}")
    a(f"s_add_u32 s{S_CNT}, s{S_CNT}, 1")
    a("s_waitcnt vmcnt(32)"); a("s_barrier")
    a(f"s_cmp_lt_u32 s{S_CNT}, 16"); a("s_cbranch_scc1 L_ld2")
    a("s_waitcnt vmcnt(16)"); a("s_barrier")
    a("s_waitcnt vmcnt(0)"); a("s_barrier")
    a("s_endpgm")

    a.lab("L_touch")
    D = opt.dist
    if not opt.touch:
        a("s_endpgm")
    else:
        tf = opt.touchflags
        a("v_lshrrev_b32 v1, 2, v0")
        a(f"s_lshl_b32 s40, s{S_IDX}, 4"); a("v_add_u32 v2, s40, v1")
        a("v_lshlrev_b32 v10, 11, v2")
        a("v_lshrrev_b32 v3, 5, v2"); a("v_and_b32 v4, 31, v2"); a("v_lshlrev_b32 v3, 18, v3"); a("v_lshl_add_u32 v11, v4, 8, v3")
        a(f"s_lshl_b32 s40, s{S_RB}, 4"); a("v_add_u32 v2, s40, v1")
        a("v_bfe_u32 v3, v0, 1, 1"); a("v_lshlrev_b32 v3, 7, v3")
        a("v_lshl_add_u32 v12, v2, 13, v3"); a("v_lshl_add_u32 v13, v2, 11, v3")
        a("v_lshlrev_b32 v14, 7, v1")
        a(f"s_lshl_b32 s{S_OFFR}, s{S_RB}, 18"); a(f"s_lshl_b32 s{S_OFFW}, s{S_HG}, 8")
        a(f"s_lshl_b32 s{S_PB}, s{S_RB}, 20"); a(f"s_lshl_b32 s41, s{S_HG}, 13"); a(f"s_add_u32 s{S_PB}, s{S_PB}, s41")
        a(f"s_mov_b32 s{S_CNT}, 0")
        a("s_waitcnt lgkmcnt(0)")
        a.lab("L_t1")
        a(f"s_cmp_lt_u32 s{S_CNT}, {D-1}"); a("s_cbranch_scc1 L_t1n"); a("s_barrier"); a.lab("L_t1n")
        a(f"buffer_load_dword v20, v12, {srd(SRD_WQ)}, s{S_OFFW} offen {tf}")
        a(f"buffer_load_dword v21, v10, {srd(SRD_X)}, s{S_OFFR} offen {tf}")
        a(f"s_lshr_b32 s41, s{S_CNT}, 2"); a("s_lshl_b32 s41, s41, 18"); a(f"s_and_b32 s42, s{S_CNT}, 3"); a("s_lshl_b32 s42, s42, 11")
        a("s_add_u32 s41, s41, s42"); a(f"s_add_u32 s41, s41, s{S_PB}")
        a(f"buffer_load_dword v22, v14, {srd(SRD_K)}, s41 offen {tf}")
        a(f"s_add_u32 s{S_OFFR}, s{S_OFFR}, 128"); a(f"s_add_u32 s{S_OFFW}, s{S_OFFW}, {64*8192}")
        a("s_waitcnt vmcnt(30)")
        a(f"s_add_u32 s{S_CNT}, s{S_CNT}, 1"); a(f"s_cmp_lt_u32 s{S_CNT}, 16"); a("s_cbranch_scc1 L_t1")
        a("s_barrier")
        a(f"s_lshl_b32 s{S_OFFR}, s{S_RB}, 20"); a(f"s_lshl_b32 s41, s{S_KQ}, 16"); a(f"s_add_u32 s{S_OFFR}, s{S_OFFR}, s41")
        a(f"s_lshl_b32 s{S_OFFW}, s{S_KQ}, 21"); a(f"s_lshl_b32 s41, s{S_IDX}, 8"); a(f"s_add_u32 s{S_OFFW}, s{S_OFFW}, s41")
        a(f"s_mov_b32 s{S_CNT}, 0")
        a.lab("L_t2")
        a("s_barrier")
        a(f"buffer_load_dword v20, v13, {srd(SRD_WO)}, s{S_OFFW} offen {tf}")
        a(f"buffer_load_dword v21, v11, {srd(SRD_V)}, s{S_OFFR} offen {tf}")
        a(f"s_and_b32 s42, s{S_CNT}, 1"); a(f"s_mul_i32 s42, s42, {8192-256}"); a("s_add_u32 s42, s42, 128")
        a(f"s_add_u32 s{S_OFFR}, s{S_OFFR}, s42"); a(f"s_add_u32 s{S_OFFW}, s{S_OFFW}, {64*2048}")
        a("s_waitcnt vmcnt(30)")
        a(f"s_add_u32 s{S_CNT}, s{S_CNT}, 1"); a(f"s_cmp_lt_u32 s{S_CNT}, 16"); a("s_cbranch_scc1 L_t2")
        a("s_endpgm")

    a.lab("L_poll")
    a("s_waitcnt lgkmcnt(0)")
    a(f"s_lshl_b32 s40, s{S_CL}, 7")
    a(f"s_load_dwordx2 s[{S_TAG}:{S_TAG+1}], s[{SRD_WS}:{SRD_WS+1}], s40")
    a("v_bfe_u32 v1, v0, 2, 3"); a("v_and_b32 v2, 3, v0"); a("v_lshlrev_b32 v2, 3, v2"); a("v_lshl_add_u32 v4, v1, 7, v2")
    a(f"s_lshl_b32 s40, s{S_CL}, 5"); a(f"s_lshl_b32 s41, s{S_KQ}, 3"); a("s_add_u32 s40, s40, s41")
    a("s_lshl_b32 s40, s40, 7"); a(f"s_add_u32 s43, s40, {hex(PFLAG)}")
    a("s_waitcnt lgkmcnt(0)")
    a(f"s_mul_i32 s{S_TAG}, s{S_TAG}, 0x9e3779b1"); a(f"s_add_u32 s{S_TAG}, s{S_TAG}, 0x7f4a7c15")
    a(f"s_mul_i32 s{S_TAG+1}, s{S_TAG+1}, 0x85ebca6b"); a(f"s_add_u32 s{S_TAG+1}, s{S_TAG+1}, 0xc2b2ae35")
    a(f"v_mov_b32 v2, s{S_TAG}"); a(f"v_mov_b32 v3, s{S_TAG+1}")
    a(f"s_mov_b32 s{S_CNT}, 20")
    a.lab("L_pb"); a("s_barrier"); a(f"s_sub_u32 s{S_CNT}, s{S_CNT}, 1"); a(f"s_cmp_lg_u32 s{S_CNT}, 0"); a("s_cbranch_scc1 L_pb")
    a(f"s_mov_b32 s44, {opt.spin}")
    a.lab("L_ppoll")
    a(f"buffer_load_dwordx2 v[8:9], v4, {srd(SRD_WS)}, s43 offen sc1")
    a("s_sub_u32 s44, s44, 1"); a("s_cmp_eq_u32 s44, 0"); a("s_cbranch_scc1 L_pgo")
    a("s_waitcnt vmcnt(0)")
    a("v_cmp_eq_u64 vcc, v[8:9], v[2:3]")
    a("s_cmp_eq_u64 vcc, exec"); a("s_cbranch_scc0 L_ppoll")
    a.lab("L_pgo")
    a("s_barrier")
    a.lab("L_end")
    a("s_endpgm")
    a.raw('.section .rodata,"a"'); a.raw(".p2align 6"); a.raw(f".amdhsa_kernel {NAME}_kernel")
    for l in ("next_free_vgpr 256", "next_free_sgpr 102", "accum_offset 256", "group_segment_fixed_size 0", "kernarg_size 104",
              "user_sgpr_count 2", "user_sgpr_kernarg_segment_ptr 1", "system_sgpr_workgroup_id_x 1"):
        a.raw("  .amdhsa_" + l)
    a.raw(".end_amdhsa_kernel")
    return a.text(), nst[0]

def parse(argv):
    ap = argparse.ArgumentParser()
    ap.add_argument("-o", default="cdna_kernels/" + NAME + ".s")
    ap.add_argument("--stamps", action="store_true")
    ap.add_argument("--prio", type=int, default=0)
    ap.add_argument("--barstep", type=int, default=1)
    ap.add_argument("--flagpos", type=lambda s: tuple(map(int, s.split(","))), default=(3, 3))
    ap.add_argument("--spin", type=int, default=100000)
    ap.add_argument("--dist", type=int, default=7)
    ap.add_argument("--touch", type=int, default=1)
    ap.add_argument("--dmaflags", default="")
    ap.add_argument("--touchflags", default="")
    ap.add_argument("--nodma", action="store_true")
    ap.add_argument("--fixdur", type=int, default=0)
    ap.add_argument("--samek", action="store_true")
    ap.add_argument("--cyc", action="store_true")
    ap.add_argument("--nolds", action="store_true")
    ap.add_argument("--nomfma", action="store_true")
    return ap.parse_args(argv)

if __name__ == "__main__":
    opt = parse(sys.argv[1:])
    t, n = gen(opt)
    open(opt.o, "w").write(t)
    print("wrote", opt.o, "stamps", n)
```

```python
import sys, argparse
NAME = "concat_heads__mha_block_cached__mha_block_cached__near_ridge"

class Asm:
    def __init__(self): self.L = []; self.drop = []
    def __call__(self, s):
        for pat in self.drop:
            if pat in s: return
        self.L.append("    " + s)
    def lab(self, s): self.L.append(s + ":")
    def c(self, s): self.L.append("    ; " + s)
    def raw(self, s): self.L.append(s)
    def text(self): return "\n".join(self.L) + "\n"

EPOCH = 0; PFLAG = 4096; XFLAG = 65536; PBUF = 0x100000; XBUF = 0x400000; WS_REC = 0xC00000
SLOT = 32768; NS = 5
S_BR, S_KQ, S_RB, S_IDX, S_WAVE = 3, 4, 5, 6, 7
SRD_X, SRD_K, SRD_V, SRD_WQ, SRD_WO, SRD_WS, SRD_OUT = 8, 12, 16, 20, 24, 28, 32
S_TAG = 36; S_CL = 38; S_HQ = 39
S_C = 50; S_PB = 49; S_OFFR = 47; S_OFFW = 48; S_W = 45
S_WM, S_WN = 56, 57; S_UP = 58; S_DN = 59; S_FL = 60
S_ST = 62
def srd(b): return f"s[{b}:{b+3}]"
def vr(b, n): return f"v[{b}:{b+n-1}]"
V_AR = 8; V_AW = 12; V_R = 16; V_W = 32; V_BF = 64; V_P = 96; V_TAG = 112; V_Z = 114; V_T = 115
V_ACC = 128; V_OUT = 192; V_KF = 192; V_SP = 224
MF = "v_mfma_f32_16x16x32_bf16"

def gen(opt):
    a = Asm()
    if opt.nodma: a.drop.append(" lds")
    if opt.nolds: a.drop += ["ds_read_b128 v[1", "ds_read_b128 v[2", "ds_read_b64_tr"]
    if opt.nomfma: a.drop += ["v_mfma"]
    a.raw(f"; @launch grid=(256,1,1) block=(512,1,1) lds={SLOT*NS}")
    a.raw('.amdgcn_target "amdgcn-amd-amdhsa--gfx950"')
    a.raw(".text"); a.raw(f".globl {NAME}_kernel"); a.raw(".p2align 8"); a.raw(f".type {NAME}_kernel,@function")
    a.lab(f"{NAME}_kernel")
    nst = [0]
    def stamp_s():
        if not opt.stamps: return None
        if nst[0] >= 20: return None
        r = S_ST + 2 * nst[0]; nst[0] += 1
        return f"{'s_memtime' if opt.cyc else 's_memrealtime'} s[{r}:{r+1}]"
    def stamp():
        s = stamp_s()
        if s: a(s)
    stamp()
    if opt.fixdur or opt.lstamps: a("s_memrealtime s[90:91]")
    a("s_cmp_ge_u32 s2, 256"); a("s_cbranch_scc1 L_end")
    a(f"s_bfe_u32 s{S_BR}, s2, 0x10002")
    a(f"s_mul_i32 s41, s{S_BR}, 40")
    a("s_add_u32 s42, s0, s41"); a("s_addc_u32 s43, s1, 0")
    a(f"s_load_dwordx2 s[{SRD_X}:{SRD_X+1}], s[42:43], 0")
    a(f"s_load_dwordx2 s[{SRD_WQ}:{SRD_WQ+1}], s[42:43], 24")
    a(f"s_load_dwordx2 s[{SRD_K}:{SRD_K+1}], s[42:43], 8")
    a(f"s_load_dwordx2 s[{SRD_V}:{SRD_V+1}], s[42:43], 16")
    a(f"s_load_dwordx2 s[{SRD_WO}:{SRD_WO+1}], s[42:43], 32")
    a(f"s_load_dwordx2 s[{SRD_WS}:{SRD_WS+1}], s[0:1], 96")
    a(f"s_load_dwordx2 s[{SRD_OUT}:{SRD_OUT+1}], s[0:1], 80")
    a("v_lshrrev_b32 v1, 6, v0"); a("v_and_b32 v0, 63, v0")
    a(f"s_and_b32 s{S_KQ}, s2, 3")
    a(f"v_readfirstlane_b32 s{S_WAVE}, v1")
    a(f"s_lshr_b32 s{S_RB}, s2, 6"); a(f"s_bfe_u32 s{S_IDX}, s2, 0x30003")
    a(f"s_lshl_b32 s{S_CL}, s{S_BR}, 2"); a(f"s_add_u32 s{S_CL}, s{S_CL}, s{S_RB}")
    a(f"s_lshl_b32 s{S_HQ}, s{S_RB}, 1"); a(f"s_add_u32 s{S_HQ}, s{S_HQ}, s{S_IDX}"); a(f"s_and_b32 s{S_HQ}, s{S_HQ}, 7")
    for b, n in ((SRD_X, 0x100000), (SRD_WQ, 0x800000), (SRD_K, 0x400000), (SRD_V, 0x400000), (SRD_WO, 0x800000), (SRD_WS, WS_REC), (SRD_OUT, 0x200000)):
        a(f"s_mov_b32 s{b+2}, {hex(n)}"); a(f"s_mov_b32 s{b+3}, 0x20000")
    a(f"s_cmp_lt_u32 s{S_WAVE}, 4"); a("s_cbranch_scc1 L_compute")
    a(f"s_cmp_ge_u32 s{S_WAVE}, 6"); a("s_cbranch_scc1 L_aux")

    a.c("---- loader waves")
    a(f"s_sub_u32 s40, s{S_WAVE}, 4")
    a("v_lshrrev_b32 v3, 4, v0"); a("v_and_b32 v2, 15, v0")
    a("v_lshlrev_b32 v4, 2, v3"); a("v_xor_b32 v2, v2, v4"); a("v_xor_b32 v5, 2, v2")
    a("v_lshlrev_b32 v2, 4, v2"); a("v_lshlrev_b32 v5, 4, v5")
    a("s_lshl_b32 s41, s40, 2"); a("v_add_u32 v1, s41, v3")
    a("v_lshl_add_u32 v12, v1, 13, v2"); a("v_lshl_add_u32 v13, v1, 13, v5")
    a("v_lshl_add_u32 v14, v1, 11, v2"); a("v_lshl_add_u32 v15, v1, 11, v5")
    a("v_lshrrev_b32 v1, 3, v0"); a("v_and_b32 v2, 7, v0")
    a("v_add_u32 v4, s41, v3"); a("v_xor_b32 v2, v2, v4"); a("v_lshlrev_b32 v2, 4, v2")
    a("s_lshl_b32 s41, s40, 3"); a("v_add_u32 v1, s41, v1")
    a("v_lshl_add_u32 v10, v1, 11, v2"); a("v_lshl_add_u32 v11, v1, 8, v2")
    a(f"s_lshl_b32 s{S_W}, s40, 10")
    a(f"s_lshl_b32 s50, s{S_RB}, 2"); a(f"s_lshl_b32 s51, s{S_HQ}, 1"); a("s_add_u32 s50, s50, s51")
    a(f"s_lshl_b32 s52, s{S_RB}, 18")
    a(f"s_lshl_b32 s51, s{S_KQ}, 3"); a(f"s_add_u32 s51, s51, s{S_HQ}")
    a("s_lshl_b32 s53, s51, 8")
    a(f"s_lshl_b32 s56, s{S_RB}, 20"); a("s_lshl_b32 s41, s51, 13"); a("s_add_u32 s57, s56, s41")
    a(f"s_lshl_b32 s41, s{S_KQ}, 16"); a("s_add_u32 s58, s56, s41")
    a(f"s_lshl_b32 s59, s{S_KQ}, 21"); a(f"s_lshl_b32 s41, s{S_IDX}, 8"); a("s_add_u32 s59, s59, s41")
    a("v_lshlrev_b32 v16, 7, v0")
    a("v_lshrrev_b32 v17, 1, v0"); a("v_lshlrev_b32 v17, 11, v17"); a("v_and_b32 v18, 1, v0"); a("v_lshl_add_u32 v17, v18, 7, v17")
    a("s_lshl_b32 s61, s40, 18"); a("s_lshl_b32 s62, s40, 16")
    if opt.lstamps: a("s_memrealtime s[92:93]")
    def lst():
        if opt.lstamps:
            a("s_memrealtime s[92:93]"); a("s_waitcnt lgkmcnt(0)"); a("s_mov_b32 m0, s94"); a("v_writelane_b32 v30, s92, m0"); a("s_add_u32 s94, s94, 1")
    fl = opt.dmaflags
    def dma(vo, sr, sbase, lit, ldsoff):
        a(f"s_add_u32 m0, s{S_W}, {ldsoff}")
        a(f"s_add_u32 s41, s{sbase}, {hex(lit)}")
        a(f"buffer_load_dwordx4 v{vo}, {srd(sr)}, s41 offen {fl} lds")
    def headoff(i): a(f"s_add_u32 s54, s{S_HQ}, {(i >> 2) + 2 * (i & 3)}"); a("s_and_b32 s54, s54, 7")
    def prep(k):
        if k < 16:
            g, j = k >> 2, k & 3
            a(f"s_add_u32 s54, s50, {[0,2,1,3][g] + 4*j}"); a("s_and_b32 s54, s54, 15")
            if opt.samek: a("s_and_b32 s54, s54, 1")
            a(f"s_lshl_b32 s55, s54, 7"); a(f"s_add_u32 s{S_OFFR}, s52, s55")
            a(f"s_lshl_b32 s55, s54, 19"); a(f"s_add_u32 s{S_OFFW}, s53, s55")
        elif k > 16 and (k - 17) % 2 == 0:
            headoff((k - 17) >> 1)
            if opt.samek: a("s_mov_b32 s54, 0")
            a("s_lshl_b32 s55, s54, 13"); a(f"s_add_u32 s{S_OFFR}, s58, s55")
            a("s_lshl_b32 s55, s54, 18"); a(f"s_add_u32 s{S_OFFW}, s59, s55")
    touches = {}
    for spec in opt.tsched.split(",") if opt.tsched else []:
        touches.setdefault(int(spec[2:]), []).append(spec[:2])
    ktd = list(map(int, opt.ktd.split(","))) if opt.ktd else []
    def ops(k):
        so = (k % NS) * SLOT
        T = [("t", t) for t in touches.get(k, [])]
        if k in ktd: T += [("c", [j for j, kk in enumerate(ktd) if kk == k], 0), ("c", None, 1)]
        if k < 16:
            return [("d", 12 + (m & 1), SRD_WQ, S_OFFW, m*8*8192, so + 16384 + m*2048) for m in range(8)] + T + \
                   [("d", 10, SRD_X, S_OFFR, m*16*2048, so + m*2048) for m in range(8)]
        if k == 16:
            return [("d", 11, SRD_K, 57, (m//2)*262144 + (m % 2)*4096 + c2*128, so + c2*16384 + m*2048) for c2 in range(2) for m in range(8)] + T
        c2 = (k - 17) & 1
        return [("d", 14 + (m & 1), SRD_WO, S_OFFW, m*8*2048 + c2*64*2048, so + 16384 + m*2048) for m in range(8)] + T + \
               [("d", 11, SRD_V, S_OFFR, (m//2)*262144 + (m % 2)*4096 + c2*128, so + m*2048) for m in range(8)]
    def emit(op):
        if op[0] == "d": dma(*op[1:]); return
        if op[0] == "c":
            if op[1] is not None:
                mask = sum(1 << j for j in op[1])
                a(f"s_lshr_b32 s41, {mask}, s{S_IDX}"); a("s_and_b32 s41, s41, 1")
                a("s_add_u32 s41, s57, s61");
                a(f"s_mov_b32 s63, {mask}"); a(f"s_bitcmp1_b32 s63, s{S_IDX}")
                a("s_cselect_b32 s63, s41, 0x7ff00000")
                a(f"buffer_load_dword v20, v16, {srd(SRD_K)}, s63 offen")
            else:
                a(f"s_add_u32 s63, s63, {2*262144}")
                a(f"buffer_load_dword v20, v16, {srd(SRD_K)}, s63 offen")
            return
        kind = op[1]; half = int(kind[1])
        if kind[0] == "K":
            a(f"s_add_u32 s41, s57, {half*2*262144}"); a("s_add_u32 s41, s41, s61")
            a(f"buffer_load_dword v20, v16, {srd(SRD_K)}, s41 offen")
        elif kind[0] == "V":
            headoff(0); a("s_lshl_b32 s55, s54, 13"); a("s_add_u32 s41, s58, s55"); a(f"s_add_u32 s41, s41, {half*2*262144}"); a("s_add_u32 s41, s41, s61")
            a(f"buffer_load_dword v20, v16, {srd(SRD_V)}, s41 offen")
        elif kind[0] in "WZ":
            headoff(0 if kind[0] == "W" else 4); a("s_lshl_b32 s55, s54, 18"); a("s_add_u32 s41, s59, s55"); a(f"s_add_u32 s41, s41, {half*64*2048}"); a("s_add_u32 s41, s41, s62")
            a(f"buffer_load_dword v20, v17, {srd(SRD_WO)}, s41 offen")
    prep(0)
    a("s_waitcnt lgkmcnt(0)")
    if opt.lstamps:
        a("v_mov_b32 v30, 0"); a("s_mov_b32 s94, 3")
        a("v_writelane_b32 v30, s90, 0"); a("v_writelane_b32 v30, s92, 1")
        a("s_memrealtime s[92:93]"); a("s_waitcnt lgkmcnt(0)"); a("v_writelane_b32 v30, s92, 2")
    n_ops = [len(ops(k)) for k in range(33)]
    for k in range(33):
        if k: prep(k)
        L = ops(k)
        qq = opt.q0 if k == 2 else (opt.q1 if k <= 17 else opt.q2)
        q = len(L) if (k < 2 or qq >= 16) else qq
        for op in L[:q]: emit(op)
        if k >= 2:
            a(f"s_waitcnt vmcnt({n_ops[k-1] + q})"); lst(); a("s_barrier")
        for op in L[q:]: emit(op)
    a(f"s_waitcnt vmcnt({n_ops[32]})"); lst(); a("s_barrier")
    a("s_waitcnt vmcnt(0)"); lst(); a("s_barrier")
    if opt.lstamps:
        a(f"s_cmp_lg_u32 s{S_WAVE}, 4"); a("s_cbranch_scc1 L_end")
        a("s_mul_i32 s40, s2, 512"); a("s_add_u32 s40, s40, 0x8000000")
        a(f"s_add_u32 s42, s{SRD_WS}, s40"); a(f"s_addc_u32 s43, s{SRD_WS+1}, 0")
        a("v_lshlrev_b32 v1, 3, v0"); a("v_mov_b32 v31, 0")
        a("global_store_dwordx2 v1, v[30:31], s[42:43]")
    a("s_endpgm")

    def tag_hash():
        a(f"s_mul_i32 s{S_TAG}, s{S_TAG}, 0x9e3779b1"); a(f"s_add_u32 s{S_TAG}, s{S_TAG}, 0x7f4a7c15")
        a(f"s_mul_i32 s{S_TAG+1}, s{S_TAG+1}, 0x85ebca6b"); a(f"s_add_u32 s{S_TAG+1}, s{S_TAG+1}, 0xc2b2ae35")

    a.lab("L_aux")
    a(f"s_cmp_eq_u32 s{S_WAVE}, 6"); a("s_cbranch_scc1 L_end")
    a("s_waitcnt lgkmcnt(0)")
    a(f"s_lshl_b32 s40, s{S_CL}, 7")
    a(f"s_load_dwordx2 s[{S_TAG}:{S_TAG+1}], s[{SRD_WS}:{SRD_WS+1}], s40")
    a("v_bfe_u32 v1, v0, 2, 3"); a("v_and_b32 v2, 3, v0"); a("v_lshlrev_b32 v2, 3, v2"); a("v_lshl_add_u32 v4, v1, 7, v2")
    a(f"s_lshl_b32 s40, s{S_CL}, 5"); a(f"s_lshl_b32 s41, s{S_KQ}, 3"); a("s_add_u32 s40, s40, s41")
    a("s_lshl_b32 s40, s40, 7"); a(f"s_add_u32 s43, s40, {hex(PFLAG)}")
    a("s_waitcnt lgkmcnt(0)")
    tag_hash()
    a(f"v_mov_b32 v2, s{S_TAG}"); a(f"v_mov_b32 v3, s{S_TAG+1}")
    a(f"s_mov_b32 s44, {opt.gate + 1}")
    a.lab("L_pb"); a("s_barrier"); a("s_sub_u32 s44, s44, 1"); a("s_cmp_lg_u32 s44, 0"); a("s_cbranch_scc1 L_pb")
    a(f"s_mov_b32 s44, {opt.spin}")
    a.lab("L_ppoll")
    a(f"buffer_load_dwordx2 v[8:9], v4, {srd(SRD_WS)}, s43 offen sc1")
    a("s_sub_u32 s44, s44, 1"); a("s_cmp_eq_u32 s44, 0"); a("s_cbranch_scc1 L_pgo")
    a("s_waitcnt vmcnt(0)")
    a("v_cmp_eq_u64 vcc, v[8:9], v[2:3]")
    a("s_cmp_eq_u64 vcc, exec"); a("s_cbranch_scc1 L_pgo")
    a("s_sleep 2"); a("s_branch L_ppoll")
    a.lab("L_pgo")
    a("s_barrier")
    a.lab("L_end")
    a("s_endpgm")

    a.lab("L_compute")
    if opt.prio: a(f"s_setprio {opt.prio}")
    a(f"s_lshr_b32 s{S_WM}, s{S_WAVE}, 1"); a(f"s_and_b32 s{S_WN}, s{S_WAVE}, 1")
    a("v_and_b32 v1, 15, v0"); a("v_lshrrev_b32 v2, 4, v0")
    a("v_lshrrev_b32 v3, 1, v1"); a("v_xor_b32 v4, v3, v2"); a("v_lshlrev_b32 v4, 4, v4"); a("v_lshl_add_u32 v4, v1, 7, v4")
    a(f"s_lshl_b32 s40, s{S_WM}, 13"); a(f"s_lshl_b32 s41, s{S_WN}, 12"); a("s_add_u32 s42, s40, s41"); a("s_xor_b32 s43, s42, 4096")
    a(f"v_add_u32 v{V_AR}, s42, v4"); a(f"v_add_u32 v{V_AR+1}, s43, v4")
    a(f"v_xor_b32 v{V_AR+2}, 64, v{V_AR}"); a(f"v_xor_b32 v{V_AR+3}, 64, v{V_AR+1}")
    a("v_lshrrev_b32 v5, 1, v2"); a("v_xor_b32 v5, v5, v3"); a("v_lshlrev_b32 v5, 4, v5"); a("v_lshl_add_u32 v5, v1, 7, v5")
    a("v_and_b32 v6, 1, v2"); a("v_lshl_add_u32 v5, v6, 3, v5")
    KSLOT = (16 % NS) * SLOT
    a(f"s_lshl_b32 s44, s{S_WN}, 14"); a(f"s_add_u32 s44, s44, {KSLOT}")
    a("s_add_u32 s42, s42, s44"); a("s_add_u32 s43, s43, s44")
    a(f"v_add_u32 v{V_T}, s42, v5"); a(f"v_add_u32 v{V_T+1}, s43, v5")
    a("v_bfe_u32 v5, v0, 2, 2"); a("v_lshl_add_u32 v4, v2, 3, v5"); a("v_lshlrev_b32 v4, 8, v4")
    a("v_and_b32 v3, 3, v0"); a("v_lshl_add_u32 v4, v3, 3, v4"); a("v_add_u32 v4, 16384, v4")
    a("v_lshlrev_b32 v5, 1, v5"); a("v_or_b32 v5, v5, v6")
    a(f"s_lshl_b32 s40, s{S_WN}, 2")
    for b in range(4):
        a(f"s_add_u32 s41, s40, {b}"); a("v_xor_b32 v3, s41, v5"); a(f"v_lshl_add_u32 v{V_AW+b}, v3, 5, v4")
    for b in range(4):
        a(f"s_add_u32 s41, s{S_KQ}, {b}"); a("s_and_b32 s41, s41, 3"); a(f"s_xor_b32 s41, s41, {b}"); a(f"s_lshl_b32 s{52+b}, s41, 5")
    a("v_lshlrev_b32 v7, 4, v0"); a(f"v_mov_b32 v{V_Z}, 0")
    a(f"s_mov_b32 s{S_UP}, 0x10000"); a(f"s_mov_b32 s{S_DN}, 0xfffe0000"); a(f"s_mov_b32 s{S_C}, 0x3e0293ee")
    a("s_waitcnt lgkmcnt(0)")
    a(f"s_lshl_b32 s40, s{S_CL}, 7")
    a(f"s_load_dwordx2 s[{S_TAG}:{S_TAG+1}], s[{SRD_WS}:{SRD_WS+1}], s40")
    a(f"s_lshl_b32 s40, s{S_CL}, 5"); a(f"s_lshl_b32 s41, s{S_KQ}, 3"); a("s_add_u32 s40, s40, s41")
    a(f"s_lshl_b32 s{S_PB}, s40, 13"); a(f"s_add_u32 s{S_PB}, s{S_PB}, {hex(PBUF)}")
    a(f"s_lshl_b32 s41, s{S_WAVE}, 11"); a("s_xor_b32 s42, s41, 2048")
    a(f"v_add_u32 v{V_T+2}, s41, v7"); a(f"v_add_u32 v{V_T+3}, s42, v7")
    a(f"s_add_u32 s40, s40, s{S_HQ}"); a("s_lshl_b32 s40, s40, 7"); a(f"s_lshl_b32 s41, s{S_WAVE}, 3"); a("s_add_u32 s40, s40, s41")
    a(f"s_add_u32 s{S_FL}, s40, {hex(PFLAG)}")
    a("s_waitcnt lgkmcnt(0)")
    tag_hash()
    a(f"v_mov_b32 v{V_TAG}, s{S_TAG}"); a(f"v_mov_b32 v{V_TAG+1}, s{S_TAG+1}")
    a("s_barrier")
    stamp()

    def rel(k): return ((k % NS) & 1) * SLOT if (k % NS) < 4 else 0
    def upd(k):
        s = k % NS
        return {1: S_UP, 3: S_UP, 4: S_DN}.get(s)
    def rdR(k, s, aa): return f"ds_read_b128 {vr(V_R+4*aa,4)}, v{V_AR + 2*s + (aa >> 1)} offset:{rel(k) + (aa & 1)*2048}"
    def rdW(k, s, b, z):
        return f"ds_read_b64_tr_b16 {vr(V_W + 16*s + 4*b + 2*z, 2)}, v{V_AW+b} offset:{rel(k) + s*8192 + z*1024}"
    if opt.spread:
        WPOS = {(0,0): [(0,0)], (0,1): [(0,1)], (0,2): [(1,0)], (1,0): [(1,1)], (1,1): [(2,0)], (1,2): [(2,1)], (2,0): [(3,0)], (2,1): [(3,1)]}
    else:
        WPOS = {(0,0): [(0,0),(0,1)], (0,1): [(1,0),(1,1)], (1,0): [(2,0),(2,1)], (1,1): [(3,0),(3,1)]}
    SEQ = []
    for aa in range(4):
        for b in range(4):
            for (wb, z) in WPOS.get((aa, b), []): SEQ.append(((aa, b), "W", (wb, z)))
            if b == 3: SEQ.append(((aa, b), "R", aa))
    def first_reads(k):
        for g, kind, ix in SEQ:
            a(rdW(k, 0, *ix) if kind == "W" else rdR(k, 0, ix))
    def waits(issuing):
        res = {}
        done = -1
        for aa in range(4):
            for b in range(4):
                need = []
                if b == 0: need.append(("R", aa))
                if aa == 0: need += [("W", (b, 0)), ("W", (b, 1))]
                if not need: continue
                last = max(i for i, (g, kind, ix) in enumerate(SEQ) if (kind, ix) in need)
                if aa == 0 and b in opt.wmerge.get(b, [b]):
                    pass
                if last <= done: continue
                if aa == 0:
                    upto = {0: opt.w0, 1: opt.w0, 2: 3, 3: 3}[b] if b <= opt.w0 or True else 3
                    upto = opt.w0 if b <= opt.w0 else 3
                    need2 = need + [("W", (bb, z)) for bb in range(upto + 1) for z in (0, 1)]
                    last = max(i for i, (g, kind, ix) in enumerate(SEQ) if (kind, ix) in need2)
                newer = len(SEQ) - 1 - last
                cur = sum(1 for (g, kind, ix) in SEQ if g < (aa, b)) if issuing else 0
                res[(aa, b)] = min(newer + cur, 15)
                done = last
        return res
    WT = {True: waits(True), False: waits(False)}
    def acc(aa, b): return vr(V_ACC + 16*aa + 4*b, 4)
    def item_gaps(k, phase, zero, nxt, bar=True):
        G = []
        for s in range(2):
            tk, ts = (k, 1) if s == 0 else (nxt, 0)
            for aa in range(4):
                for b in range(4):
                    pre, post = [], []
                    w = WT[tk is not None].get((aa, b))
                    if w is not None: pre.append(f"s_waitcnt lgkmcnt({w})")
                    W = vr(V_W + 16*s + 4*b, 4); R = vr(V_R + 4*aa, 4)
                    C = "0" if (zero and s == 0) else acc(aa, b)
                    m = f"{MF} {acc(aa,b)}, {W}, {R}, {C}" if phase == 1 else f"{MF} {acc(aa,b)}, {R}, {W}, {C}"
                    if tk is not None:
                        for g, kind, ix in SEQ:
                            if g == (aa, b): post.append(rdW(tk, ts, *ix) if kind == "W" else rdR(tk, ts, ix))
                    u = upd(k)
                    if u is not None and nxt is not None:
                        if s == 0 and aa == 3 and b < 3: post.append(f"v_add_u32 v{V_AW+b}, s{u}, v{V_AW+b}")
                        if s == 0 and aa == 2 and b == 2: post += [f"v_add_u32 v{V_AR}, s{u}, v{V_AR}", f"v_add_u32 v{V_AR+1}, s{u}, v{V_AR+1}"]
                        if s == 0 and aa == 3 and b == 2: post.append(f"v_add_u32 v{V_AW+3}, s{u}, v{V_AW+3}")
                        if s == 1 and aa == 3 and b < 2: post.append(f"v_add_u32 v{V_AR+2+b}, s{u}, v{V_AR+2+b}")
                    if bar and s == 0 and aa == 3 and b == 3: post.append("s_barrier")
                    G.append([pre, m, post])
        return G
    def inject(G, start, opsl, cap=2):
        i = start
        for op in opsl:
            while i < len(G) and len(G[i][2]) + (len(G[i+1][0]) if i + 1 < len(G) else 0) >= cap: i += 1
            assert i < len(G), "inject overflow"
            G[i][2].append(op)
        return i
    def emitG(G):
        for pre, m, post in G:
            for x in pre: a(x)
            a(m)
            for x in post: a(x)

    first_reads(0)
    for k in range(16):
        emitG(item_gaps(k, 1, k == 0, k + 1 if k < 15 else None))
    stamp()
    a.c("---- scores")
    kf = lambda bb, kt, u: V_KF + 16*bb + 8*kt + 4*u
    sp = lambda bb, kt, qt: V_SP + 16*bb + 8*kt + 4*qt
    for bb in range(2):
        for uz in range(1, 4): a(f"v_xor_b32 v{V_T+4+3*bb+uz-1}, {32*uz}, v{V_T+bb}")
    kaddr = lambda bb, u, z: (V_T + bb) if (u == 0 and z == 0) else (V_T + 4 + 3*bb + 2*u + z - 1)
    for bb in (1, 0):
        for kt in range(2):
            for u in range(2):
                for z in range(2):
                    a(f"ds_read_b64 {vr(kf(bb,kt,u) + 2*z, 2)}, v{kaddr(bb,u,z)} offset:{kt*2048}")
    for kk in (15, 16):
        u = upd(kk)
        if u is not None:
            for r in list(range(V_AR, V_AR+4)) + list(range(V_AW, V_AW+4)): a(f"v_add_u32 v{r}, s{u}, v{r}")
    for b in range(4): a(f"v_xor_b32 v{V_AW+b}, s{52+b}, v{V_AW+b}")
    for i in list(range(16, 32)) + list(range(16)): a(f"v_cvt_pk_bf16_f32 v{V_BF+i}, v{V_ACC+2*i}, v{V_ACC+2*i+1}")
    a("s_waitcnt lgkmcnt(8)")
    def smf(bb):
        for u in range(2):
            for kt in range(2):
                for qt in range(2):
                    C = "0" if u == 0 else vr(sp(bb,kt,qt), 4)
                    a(f"{MF} {vr(sp(bb,kt,qt),4)}, {vr(kf(bb,kt,u),4)}, {vr(V_BF + 8*(2*bb+qt) + 4*u, 4)}, {C}")
    smf(1)
    a("s_waitcnt lgkmcnt(0)")
    smf(0)
    a(f"s_lshl_b32 s40, s{S_WM}, 13"); a(f"s_lshl_b32 s41, s{S_WN}, 14"); a("s_add_u32 s40, s40, s41"); a(f"s_add_u32 s40, s40, {KSLOT}")
    a("v_add_u32 v1, s40, v7"); a("v_xor_b32 v2, 0x4000, v1")
    for j in range(4): a(f"ds_write_b128 v1, {vr(V_SP + 16 + 4*j, 4)} offset:{j*1024}")
    a("s_waitcnt lgkmcnt(0)")
    a("s_barrier")
    for j in range(4): a(f"ds_read_b128 {vr(V_KF + 4*j, 4)}, v2 offset:{j*1024}")
    first_reads(17)
    S = lambda kt, qt, i: f"v{sp(0,kt,qt) + i}"
    sm = []
    for i in range(16): sm.append(f"v_add_f32 v{V_SP+i}, v{V_SP+i}, v{V_KF+i}")
    M = [1, 3]; T = [2, 4]
    for qt in range(2):
        m = f"v{M[qt]}"
        sm += [f"v_max3_f32 {m}, {S(0,qt,0)}, {S(0,qt,1)}, {S(0,qt,2)}", f"v_max3_f32 {m}, {m}, {S(0,qt,3)}, {S(1,qt,0)}",
               f"v_max3_f32 {m}, {m}, {S(1,qt,1)}, {S(1,qt,2)}", f"v_max_f32 {m}, {m}, {S(1,qt,3)}"]
    def xl(op):
        o = []
        for sw in ("v_permlane16_swap_b32", "v_permlane32_swap_b32"):
            o += ["v_mov_b32 v2, v1", "v_mov_b32 v4, v3", "s_nop 0", f"{sw} v1, v2", f"{sw} v3, v4", f"{op} v1, v1, v2", f"{op} v3, v3, v4"]
        return o
    sm += xl("v_max_f32")
    sm += [f"v_mul_f32 v1, s{S_C}, v1", f"v_mul_f32 v3, s{S_C}, v3"]
    for qt in range(2):
        for kt in range(2):
            for i in range(4): sm.append(f"v_fma_f32 {S(kt,qt,i)}, {S(kt,qt,i)}, s{S_C}, -v{M[qt]}")
    for qt in range(2):
        for kt in range(2):
            for i in range(4): sm.append(f"v_exp_f32 {S(kt,qt,i)}, {S(kt,qt,i)}")
    for qt in range(2):
        m = f"v{M[qt]}"; t = f"v{T[qt]}"
        sm += [f"v_add_f32 {m}, {S(0,qt,0)}, {S(0,qt,1)}", f"v_add_f32 {t}, {S(0,qt,2)}, {S(0,qt,3)}",
               f"v_add_f32 {m}, {m}, {S(1,qt,0)}", f"v_add_f32 {t}, {t}, {S(1,qt,1)}",
               f"v_add_f32 {m}, {m}, {S(1,qt,2)}", f"v_add_f32 {t}, {t}, {S(1,qt,3)}", f"v_add_f32 {m}, {m}, {t}"]
    sm += xl("v_add_f32")
    sm += ["v_rcp_f32 v1, v1", "v_rcp_f32 v3, v3"]
    for qt in range(2):
        for kt in range(2):
            for i in range(4): sm.append(f"v_mul_f32 {S(kt,qt,i)}, {S(kt,qt,i)}, v{M[qt]}")
    for qt in range(2):
        for kt in range(2):
            for h in range(2): sm.append(f"v_cvt_pk_bf16_f32 v{V_P + 4*qt + 2*kt + h}, {S(kt,qt,2*h)}, {S(kt,qt,2*h+1)}")
    sm += [f"s_lshl_b32 s40, s{S_HQ}, 13", f"s_add_u32 s40, s40, s{S_PB}",
           f"buffer_store_dwordx4 {vr(V_P,4)}, v{V_T+2}, {srd(SRD_WS)}, s40 offen sc1",
           f"buffer_store_dwordx4 {vr(V_P+4,4)}, v{V_T+2}, {srd(SRD_WS)}, s40 offen offset:1024 sc1"]
    flag_ops = ["s_waitcnt vmcnt(0)", f"buffer_store_dwordx2 {vr(V_TAG,2)}, v{V_Z}, {srd(SRD_WS)}, s{S_FL} offen sc1"]
    a("s_waitcnt lgkmcnt(12)")
    npre = len(sm) if opt.smpre < 0 else opt.smpre
    for x in sm[:npre]: a(x)
    stamp()

    bf = lambda bb, nt: V_BF + 16*bb + 4*nt
    out = lambda bb, qt, nt: V_OUT + 16*nt + 8*bb + 4*qt
    def cvt_ops(bb, nt):
        t0 = V_ACC + 16*(2*bb) + 4*nt; t1 = V_ACC + 16*(2*bb+1) + 4*nt; d = bf(bb, nt)
        return [f"v_cvt_pk_bf16_f32 v{d}, v{t0}, v{t0+1}", f"v_cvt_pk_bf16_f32 v{d+1}, v{t0+2}, v{t0+3}",
                f"v_cvt_pk_bf16_f32 v{d+2}, v{t1}, v{t1+1}", f"v_cvt_pk_bf16_f32 v{d+3}, v{t1+2}, v{t1+3}"]
    def pv_m(bb, qt, nt, P, zero):
        o = vr(out(bb,qt,nt), 4)
        return f"{MF} {o}, {vr(bf(bb,nt),4)}, {vr(P + 8*bb + 4*qt, 4)}, {'0' if zero else o}"
    def loadP(i, P):
        h = (i >> 2) + 2 * (i & 3)
        return [f"s_add_u32 s40, s{S_HQ}, {h}", "s_and_b32 s40, s40, 7", "s_lshl_b32 s40, s40, 13", f"s_add_u32 s40, s40, s{S_PB}"] + \
               [f"buffer_load_dwordx4 {vr(P + 8*bb + 4*qt, 4)}, v{V_T+2+bb}, {srd(SRD_WS)}, s40 offen offset:{qt*1024} sc1" for bb in range(2) for qt in range(2)]
    PN = V_W
    for i in range(8):
        kA, kB = 17 + 2*i, 18 + 2*i
        G = item_gaps(kA, 2, True, kB) + item_gaps(kB, 2, False, kB + 1 if i < 7 else None, bar=(i < 7))
        if i == 0:
            pos = inject(G, 0, sm[npre:], cap=opt.cap)
            fp = max(pos + opt.flagdelay, 0)
            assert fp < 32 + 15, "flag must precede B_18"
            G[fp][2].extend(flag_ops)
        else:
            inject(G, 16, loadP(i - 1, V_P))
        if i == 7: inject(G, 48, loadP(7, PN))
        emitG(G)
        if opt.hstamps: stamp()
        order = [(bb, nt) for bb in range(2) for nt in range(4)]
        if i == 0:
            a("s_nop 3")
            for bb, nt in order:
                for x in cvt_ops(bb, nt): a(x)
        else:
            a(f"s_waitcnt vmcnt({4 if i == 7 else 0})")
            prev = []
            for bb, nt in order:
                a(pv_m(bb, 0, nt, V_P, i == 1))
                for x in prev[2:]: a(x)
                a(pv_m(bb, 1, nt, V_P, i == 1))
                prev = cvt_ops(bb, nt)
                for x in prev[:2]: a(x)
            for x in prev[2:]: a(x)
        if opt.hstamps: stamp()
    a("s_waitcnt vmcnt(0)")
    a(f"s_lshl_b32 s40, s{S_CL}, 5"); a(f"s_add_u32 s40, s40, s{S_IDX}")
    a(f"s_lshl_b32 s41, s{S_KQ}, 2"); a(f"s_add_u32 s41, s41, s{S_WAVE}")
    a("s_lshl_b32 s43, s41, 11"); a(f"s_add_u32 s43, s43, {hex(XBUF)}")
    for t in (1, 2, 3):
        a(f"s_add_u32 s42, s{S_KQ}, {t}"); a("s_and_b32 s42, s42, 3"); a("s_lshl_b32 s42, s42, 3"); a("s_add_u32 s42, s42, s40")
        a(f"s_lshl_b32 s{50+t}, s42, 7"); a("s_lshl_b32 s42, s42, 15"); a(f"s_add_u32 s{44+t}, s42, s43")
    def send(t):
        d = V_ACC + 8*t
        o = [f"v_cvt_pk_bf16_f32 v{d+j}, v{V_OUT+16*t+2*j}, v{V_OUT+16*t+2*j+1}" for j in range(8)]
        o += [f"buffer_store_dwordx4 {vr(d,4)}, v7, {srd(SRD_WS)}, s{44+t} offen sc1",
              f"buffer_store_dwordx4 {vr(d+4,4)}, v7, {srd(SRD_WS)}, s{44+t} offen offset:1024 sc1"]
        return o
    G = [[[], pv_m(bb, qt, nt, PN, False), []] for nt in (1, 2, 3, 0) for bb in range(2) for qt in range(2)]
    G[3][2].append("s_nop 0")
    for g in range(4, 8): G[g][2].append("s_nop 0")
    p = inject(G, 8, send(1)[:8] , cap=2)
    emitG(G)
    stamp()
    for x in send(1)[8:] + send(2) + send(3): a(x)
    a("s_lshl_b32 s43, s41, 3"); a(f"s_add_u32 s43, s43, {hex(XFLAG)}")
    a(f"s_lshl_b32 s42, s{S_KQ}, 3"); a("s_add_u32 s42, s42, s40")
    a("v_and_b32 v4, 3, v0"); a("v_min_u32 v4, 2, v4"); a(f"v_add_u32 v4, s{S_KQ}, v4"); a("v_add_u32 v4, 1, v4"); a("v_and_b32 v4, 3, v4")
    a("v_lshlrev_b32 v4, 5, v4")
    for t in (1, 2, 3):
        a(f"s_waitcnt vmcnt({2*(3-t) + (t-1)})")
        a(f"s_add_u32 s44, s{50+t}, s43")
        a(f"buffer_store_dwordx2 {vr(V_TAG,2)}, v{V_Z}, {srd(SRD_WS)}, s44 offen sc1")
    stamp()
    a(f"s_lshl_b32 s43, s42, 7"); a(f"s_lshl_b32 s44, s{S_WAVE}, 3"); a("s_add_u32 s43, s43, s44"); a(f"s_add_u32 s43, s43, {hex(XFLAG)}")
    a(f"s_mov_b32 s44, {opt.spin}")
    a.lab("L_xpoll")
    a(f"buffer_load_dwordx2 v[8:9], v4, {srd(SRD_WS)}, s43 offen sc1")
    a("s_sub_u32 s44, s44, 1"); a("s_cmp_eq_u32 s44, 0"); a("s_cbranch_scc1 L_xgo")
    a("s_waitcnt vmcnt(0)")
    a(f"v_cmp_eq_u64 vcc, v[8:9], {vr(V_TAG,2)}")
    a("s_cmp_eq_u64 vcc, exec") ; a("s_cbranch_scc0 L_xpoll")
    a.lab("L_xgo")
    stamp()
    a("s_lshl_b32 s42, s42, 15"); a(f"s_lshl_b32 s43, s{S_WAVE}, 11"); a("s_add_u32 s42, s42, s43"); a(f"s_add_u32 s42, s42, {hex(XBUF)}")
    RX = V_BF
    for j in range(3):
        a(f"s_add_u32 s43, s{S_KQ}, {j+1}"); a("s_and_b32 s43, s43, 3"); a("s_lshl_b32 s43, s43, 13"); a("s_add_u32 s43, s43, s42")
        a(f"buffer_load_dwordx4 {vr(RX+8*j,4)}, v7, {srd(SRD_WS)}, s43 offen sc1")
        a(f"buffer_load_dwordx4 {vr(RX+8*j+4,4)}, v7, {srd(SRD_WS)}, s43 offen offset:1024 sc1")
    a("v_and_b32 v4, 15, v0"); a("v_lshlrev_b32 v4, 12, v4"); a("v_lshrrev_b32 v5, 4, v0"); a("v_lshl_add_u32 v4, v5, 3, v4")
    a(f"s_lshl_b32 s40, s{S_RB}, 19"); a(f"s_lshl_b32 s41, s{S_WAVE}, 17"); a("s_add_u32 s40, s40, s41")
    a(f"s_lshl_b32 s41, s{S_BR}, 11"); a("s_add_u32 s40, s40, s41")
    a(f"s_lshl_b32 s41, s{S_IDX}, 8"); a("s_add_u32 s40, s40, s41")
    a(f"s_lshl_b32 s41, s{S_WN}, 7"); a("s_add_u32 s40, s40, s41")
    a(f"s_lshl_b32 s41, s{S_KQ}, 5"); a("s_add_u32 s40, s40, s41")
    a("s_xor_b32 s41, s40, 0x20000"); a("s_add_u32 s42, s40, 0x10000"); a("s_add_u32 s43, s41, 0x10000")
    for j in range(3):
        a(f"s_waitcnt vmcnt({4-2*j})")
        for i in range(8):
            a(f"v_lshlrev_b32 v5, 16, v{RX+8*j+i}"); a(f"v_and_b32 v6, 0xffff0000, v{RX+8*j+i}")
            a(f"v_add_f32 v{V_OUT+2*i}, v{V_OUT+2*i}, v5"); a(f"v_add_f32 v{V_OUT+2*i+1}, v{V_OUT+2*i+1}, v6")
    for i in range(8): a(f"v_cvt_pk_bf16_f32 v{V_P+i}, v{V_OUT+2*i}, v{V_OUT+2*i+1}")
    for j, so in enumerate((40, 42, 41, 43)):
        a(f"buffer_store_dwordx2 {vr(V_P+2*j,2)}, v4, {srd(SRD_OUT)}, s{so} offen {opt.outflags}")
    a(f"s_or_b32 s40, s{S_KQ}, s{S_IDX}"); a(f"s_or_b32 s40, s40, s{S_WAVE}"); a("s_cmp_lg_u32 s40, 0"); a("s_cbranch_scc1 L_noep")
    a(f"s_lshl_b32 s40, s{S_CL}, 7")
    a(f"buffer_store_dwordx2 {vr(V_TAG,2)}, v{V_Z}, {srd(SRD_WS)}, s40 offen")
    a.lab("L_noep")
    if opt.fixdur:
        a.lab("L_fix")
        a("s_memrealtime s[92:93]"); a("s_waitcnt lgkmcnt(0)"); a("s_sub_u32 s92, s92, s90")
        a(f"s_cmp_lt_u32 s92, {opt.fixdur}"); a("s_cbranch_scc1 L_fix")
    if opt.stamps:
        a("s_waitcnt vmcnt(0)")
        stamp()
        a(f"s_cmp_lg_u32 s{S_WAVE}, 0"); a("s_cbranch_scc1 L_end2")
        a("s_waitcnt lgkmcnt(0)")
        n = nst[0]
        a(f"s_mul_i32 s40, s2, {n*8}"); a("s_add_u32 s40, s40, 0x8000000")
        a(f"s_add_u32 s42, s{SRD_WS}, s40"); a(f"s_addc_u32 s43, s{SRD_WS+1}, 0")
        for i in range(n):
            a(f"v_mov_b32 v8, s{S_ST+2*i}"); a(f"v_mov_b32 v9, s{S_ST+2*i+1}")
            a(f"global_store_dwordx2 v{V_Z}, v[8:9], s[42:43] offset:{i*8}"); a("s_nop 1")
        a.lab("L_end2")
    a("s_endpgm")
    a.raw('.section .rodata,"a"'); a.raw(".p2align 6"); a.raw(f".amdhsa_kernel {NAME}_kernel")
    for l in ("next_free_vgpr 256", "next_free_sgpr 102", "accum_offset 256", "group_segment_fixed_size 0", "kernarg_size 104",
              "user_sgpr_count 2", "user_sgpr_kernarg_segment_ptr 1", "system_sgpr_workgroup_id_x 1"):
        a.raw("  .amdhsa_" + l)
    a.raw(".end_amdhsa_kernel")
    return a.text(), nst[0]

def parse(argv):
    ap = argparse.ArgumentParser()
    ap.add_argument("-o", default="cdna_kernels/" + NAME + ".s")
    for f in ("stamps", "cyc", "lstamps", "nodma", "nolds", "nomfma", "samek", "hstamps"): ap.add_argument("--" + f, action="store_true")
    ap.add_argument("--prio", type=int, default=0)
    ap.add_argument("--spin", type=int, default=100000)
    ap.add_argument("--fixdur", type=int, default=0)
    ap.add_argument("--q0", type=int, default=2)
    ap.add_argument("--q1", type=int, default=4)
    ap.add_argument("--q2", type=int, default=16)
    ap.add_argument("--gate", type=int, default=21)
    ap.add_argument("--smpre", type=int, default=-1)
    ap.add_argument("--cap", type=int, default=2)
    ap.add_argument("--flagdelay", type=int, default=24)
    ap.add_argument("--tsched", default="")
    ap.add_argument("--spread", type=int, default=1)
    ap.add_argument("--w0", type=int, default=1)
    ap.add_argument("--ktd", default="")
    ap.add_argument("--early", type=int, default=0)
    ap.add_argument("--dmaflags", default="")
    ap.add_argument("--outflags", default="")
    return ap.parse_args(argv)

if __name__ == "__main__":
    opt = parse(sys.argv[1:])
    opt.wmerge = {}
    t, n = gen(opt)
    open(opt.o, "w").write(t)
    print("wrote", opt.o, "stamps", n, "lines", t.count("\n"))
```

```python
import re
RV = re.compile(r"\bv\[(\d+):(\d+)\]|\bv(\d+)\b")
def vregs(tok):
    s = set()
    for m in RV.finditer(tok):
        if m.group(1): s.update(range(int(m.group(1)), int(m.group(2)) + 1))
        else: s.add(int(m.group(3)))
    return s
def split(ins):
    ins = ins.split(";")[0].strip()
    p = ins.split(None, 1)
    op = p[0]; ops = [x.strip() for x in p[1].split(",")] if len(p) > 1 else []
    return op, ops
TRANS = ("v_exp_f32", "v_rcp_f32", "v_log_f32", "v_rsq_f32", "v_sqrt_f32")
def info(ins):
    op, ops = split(ins)
    d = dict(op=op, kind="s", wr=set(), rd=set(), c=set(), ab=set())
    if op.startswith("v_mfma"):
        d.update(kind="mfma", wr=vregs(ops[0]), ab=vregs(ops[1]) | vregs(ops[2]), c=vregs(ops[3]))
        d["rd"] = d["ab"] | d["c"]
    elif op.startswith("ds_read"):
        d.update(kind="ldsr", wr=vregs(ops[0]), rd=vregs(ops[1]))
    elif op.startswith("ds_write"):
        d.update(kind="ldsw", rd=vregs(ops[0]) | vregs(ops[1]))
    elif op.startswith("buffer_load") or op.startswith("global_load"):
        if " lds" in ins: d.update(kind="vml", rd=vregs(ops[0]))
        else: d.update(kind="vml", wr=vregs(ops[0]), rd=vregs(ops[1]))
    elif op.startswith("buffer_store"):
        d.update(kind="vms", rd=vregs(ops[0]) | vregs(ops[1]), data=vregs(ops[0]))
    elif op.startswith("global_store"):
        d.update(kind="vms", rd=vregs(ops[0]) | vregs(ops[1]), data=vregs(ops[1]))
    elif op.startswith("v_permlane"):
        r = vregs(ops[0]) | vregs(ops[1]); d.update(kind="valu", wr=r, rd=r, perm=True)
    elif op.startswith("v_cmp"):
        d.update(kind="valu", rd=set().union(*[vregs(o) for o in ops[1:]]))
    elif op.startswith("v_readfirstlane") or op.startswith("v_readlane"):
        d.update(kind="valu", rd=vregs(ops[1]), lane=True)
    elif op.startswith("v_"):
        d.update(kind="valu", wr=vregs(ops[0]), rd=set().union(*[vregs(o) for o in ops[1:]]) if len(ops) > 1 else set())
        if op in ("v_fmac_f32",): d["rd"] |= d["wr"]
        if op in TRANS: d["trans"] = True
    return d

def auto_wait(L):
    out = []; lds = []; vm = []
    for ins in L:
        if ins.endswith(":") or ins.lstrip().startswith(";"): out.append(ins); continue
        if ins.startswith("PEND "):
            lds.append(info(ins[5:])["wr"]); continue
        if ins == "WAITLDSW":
            idx = max((i for i, r in enumerate(lds) if not r), default=-1)
            if idx >= 0:
                n = min(len(lds) - 1 - idx, 15); out.append(f"s_waitcnt lgkmcnt({n})"); del lds[:len(lds) - n]
            continue
        d = info(ins)
        if d["op"] == "s_waitcnt":
            m = re.search(r"lgkmcnt\((\d+)\)", ins)
            if m: n = int(m.group(1)); lds = lds[len(lds)-n:] if n < len(lds) and n else ([] if n == 0 else lds)
            m = re.search(r"vmcnt\((\d+)\)", ins)
            if m: n = int(m.group(1)); vm = vm[len(vm)-n:] if n < len(vm) and n else ([] if n == 0 else vm)
            out.append(ins); continue
        use = d["rd"] | d["wr"]
        for q, name, cap in ((lds, "lgkmcnt", 15), (vm, "vmcnt", 63)):
            idx = max((i for i, r in enumerate(q) if r & use), default=-1)
            if idx >= 0:
                n = min(len(q) - 1 - idx, cap)
                out.append(f"s_waitcnt {name}({n})")
                del q[:len(q) - n]
        if d["kind"] == "ldsr": lds.append(d["wr"])
        elif d["kind"] == "ldsw": lds.append(set())
        elif d["kind"] == "vml": vm.append(d["wr"])
        elif d["kind"] == "vms": vm.append(set())
        out.append(ins)
    return out

def states(ins):
    op, ops = split(ins)
    if op == "s_nop": return int(ops[0]) + 1
    return 1

def hazard_fix(L, passes=4, report=None):
    XR = {4: 8, 8: 12}[passes]; CW = {4: 3, 8: 7}[passes]
    out = []; hist = []
    pos = 0
    for ins in L:
        if ins.endswith(":") or ins.lstrip().startswith(";"): out.append(ins); continue
        d = info(ins)
        need = 0
        for p, h in hist[-24:]:
            dist = pos - p - 1
            req = 0
            if h["kind"] == "mfma":
                if d["kind"] == "mfma":
                    if h["wr"] & d["ab"]: req = XR
                    elif h["wr"] & d["c"] and h["wr"] != d["c"]: req = XR - 2
                    elif h["wr"] & d["wr"] and not (h["wr"] & d["c"]): req = XR
                elif d["kind"] != "s":
                    if h["wr"] & (d["rd"] | d["wr"]): req = XR
                    if d["kind"] == "valu" and h["c"] & d["wr"]: req = max(req, CW)
            elif h["kind"] == "valu":
                if d["kind"] == "mfma" and h["wr"] & d["rd"]: req = 2
                if d.get("perm") and h["wr"] & d["rd"]: req = 2
                if d.get("lane") and h["wr"] & d["rd"]: req = 1
                if h.get("trans") and d["kind"] == "valu" and not d.get("trans") and h["wr"] & d["rd"]: req = max(req, 1)
            elif h["kind"] == "vms" and len(h["data"]) >= 3:
                if d["kind"] == "valu" and h["data"] & d["wr"]: req = 2
                elif h["data"] & d["wr"]: req = 1
            need = max(need, req - dist)
        if need > 0:
            if report is not None: report.append((ins, need))
            out.append(f"s_nop {need-1}"); pos += need
        hist.append((pos, d)); pos += states(ins)
        out.append(ins)
    return out
```

```python
import sys, argparse
from passes import auto_wait, hazard_fix
NAME = "concat_heads__mha_block_cached__mha_block_cached__near_ridge"

class Asm:
    def __init__(self): self.L = []; self.drop = []
    def __call__(self, s):
        for pat in self.drop:
            if pat in s: return
        self.L.append(s)
    def lab(self, s): self.L.append(s + ":")
    def c(self, s): self.L.append("; " + s)

EPOCH = 0; PFLAG = 4096; XFLAG = 65536; PBUF = 0x100000; XBUF = 0x400000; WS_REC = 0x1400000
SLOT = 32768; KSLOT = 4 * SLOT
S_BR, S_KQ, S_RB, S_IDX, S_WAVE = 3, 4, 5, 6, 7
SRD_X, SRD_K, SRD_V, SRD_WQ, SRD_WO, SRD_WS, SRD_OUT = 8, 12, 16, 20, 24, 28, 32
S_TAG = 36; S_CL = 38; S_HQ = 39
S_C = 50; S_PB = 49; S_OFFR = 47; S_OFFW = 48; S_W = 45
S_WM, S_WN = 56, 57; S_UP = 58; S_DN1 = 59; S_FL = 60; S_DN2 = 61
S_ST = 62; S_HT = 46
def srd(b): return f"s[{b}:{b+3}]"
def vr(b, n): return f"v[{b}:{b+n-1}]"
V_AR = 8; V_AW = 12; V_R = 16; V_W = 32; V_BF = 64; V_P = 96; V_TAG = 112; V_Z = 114; V_T = 115
V_ACC = 128; V_OUT = 192; V_KF = 192; V_SP = 224
MF = "v_mfma_f32_16x16x32_bf16"
def slot(n): return n % 4 if n < 16 else (n - 16) % 5

def gen(opt):
    a = Asm()
    if opt.nodma: a.drop.append(" lds")
    if opt.nolds: a.drop += ["ds_read_b128 v[1", "ds_read_b128 v[2", "ds_read_b64_tr"]
    if opt.nomfma: a.drop += ["v_mfma"]
    head = ["; Fused double MHA block: Q-proj + scores + softmax | V*Wo + P*(V*Wo) | split-K reduce-scatter (gfx950)",
            f"; @launch grid=(256,1,1) block=(512,1,1) lds={SLOT*5}",
            '.amdgcn_target "amdgcn-amd-amdhsa--gfx950"', ".text", f".globl {NAME}_kernel", ".p2align 8", f".type {NAME}_kernel,@function"]
    a.lab(f"{NAME}_kernel")
    nst = [0]
    def stamp_s():
        if not opt.stamps or nst[0] >= 20: return None
        r = S_ST + 2 * nst[0]; nst[0] += 1
        return f"{'s_memtime' if opt.cyc else 's_memrealtime'} s[{r}:{r+1}]"
    def stamp():
        s = stamp_s()
        if s: a(s)
    stamp()
    if opt.fixdur or opt.lstamps: a("s_memrealtime s[98:99]")
    a("s_cmp_ge_u32 s2, 256"); a("s_cbranch_scc1 L_end")
    a(f"s_bfe_u32 s{S_BR}, s2, 0x10002")
    a(f"s_mul_i32 s41, s{S_BR}, 40")
    a("s_add_u32 s42, s0, s41"); a("s_addc_u32 s43, s1, 0")
    for b, o in ((SRD_X, 0), (SRD_WQ, 24), (SRD_K, 8), (SRD_V, 16), (SRD_WO, 32)): a(f"s_load_dwordx2 s[{b}:{b+1}], s[42:43], {o}")
    a(f"s_load_dwordx2 s[{SRD_WS}:{SRD_WS+1}], s[0:1], 96")
    a(f"s_load_dwordx2 s[{SRD_OUT}:{SRD_OUT+1}], s[0:1], 80")
    a("v_lshrrev_b32 v1, 6, v0"); a("v_and_b32 v0, 63, v0")
    a(f"s_and_b32 s{S_KQ}, s2, 3")
    a(f"v_readfirstlane_b32 s{S_WAVE}, v1")
    a(f"s_lshr_b32 s{S_RB}, s2, 6"); a(f"s_bfe_u32 s{S_IDX}, s2, 0x30003")
    a(f"s_lshl_b32 s{S_CL}, s{S_BR}, 2"); a(f"s_add_u32 s{S_CL}, s{S_CL}, s{S_RB}")
    a(f"s_lshl_b32 s{S_HQ}, s{S_RB}, 1"); a(f"s_add_u32 s{S_HQ}, s{S_HQ}, s{S_IDX}"); a(f"s_and_b32 s{S_HQ}, s{S_HQ}, 7")
    for b, n in ((SRD_X, 0x100000), (SRD_WQ, 0x800000), (SRD_K, 0x400000), (SRD_V, 0x400000), (SRD_WO, 0x800000), (SRD_WS, WS_REC), (SRD_OUT, 0x200000)):
        a(f"s_mov_b32 s{b+2}, {hex(n)}"); a(f"s_mov_b32 s{b+3}, 0x20000")
    PMS = list(map(int, opt.pm.split(",")))
    def h_table(pm):
        seq = []; r1 = [2, 4, 6]; r2 = [3, 5, 7]
        for i in range(8):
            if i == 0: seq.append(0)
            elif i == pm: seq.append(1)
            elif r1 and (i < pm or True) and (i < pm or r1): seq.append(r1.pop(0))
            else: seq.append(r2.pop(0))
        return seq
    ht = [sum(x << (4*i) for i, x in enumerate(h_table(pm))) for pm in PMS]
    a(f"s_mov_b32 s{S_HT}, {hex(ht[0])}")
    for w in range(1, len(PMS)):
        a(f"s_and_b32 s41, s{S_IDX}, {len(PMS)-1}"); a(f"s_cmp_eq_u32 s41, {w}"); a(f"s_cselect_b32 s{S_HT}, {hex(ht[w])}, s{S_HT}")
    a(f"s_mul_i32 s41, s{S_HQ}, 0x11111111"); a(f"s_add_u32 s{S_HT}, s{S_HT}, s41"); a(f"s_and_b32 s{S_HT}, s{S_HT}, 0x77777777")
    a(f"s_cmp_lt_u32 s{S_WAVE}, 4"); a("s_cbranch_scc1 L_compute")
    a(f"s_cmp_ge_u32 s{S_WAVE}, 6"); a("s_cbranch_scc1 L_aux")

    a.c("---- loader waves")
    a(f"s_sub_u32 s40, s{S_WAVE}, 4")
    a("v_lshrrev_b32 v3, 4, v0"); a("v_and_b32 v2, 15, v0")
    a("v_lshlrev_b32 v4, 2, v3"); a("v_xor_b32 v2, v2, v4"); a("v_xor_b32 v5, 2, v2")
    a("v_lshlrev_b32 v2, 4, v2"); a("v_lshlrev_b32 v5, 4, v5")
    a("s_lshl_b32 s41, s40, 2"); a("v_add_u32 v1, s41, v3")
    a("v_lshl_add_u32 v12, v1, 13, v2"); a("v_lshl_add_u32 v13, v1, 13, v5")
    a("v_lshl_add_u32 v14, v1, 11, v2"); a("v_lshl_add_u32 v15, v1, 11, v5")
    a("v_lshrrev_b32 v1, 3, v0"); a("v_and_b32 v2, 7, v0")
    a("v_add_u32 v4, s41, v3"); a("v_xor_b32 v2, v2, v4"); a("v_lshlrev_b32 v2, 4, v2")
    a("s_lshl_b32 s41, s40, 3"); a("v_add_u32 v1, s41, v1")
    a("v_lshl_add_u32 v10, v1, 11, v2"); a("v_lshl_add_u32 v11, v1, 8, v2")
    a(f"s_lshl_b32 s{S_W}, s40, 10")
    a(f"s_lshl_b32 s50, s{S_RB}, 2"); a(f"s_lshl_b32 s51, s{S_HQ}, 1"); a("s_add_u32 s50, s50, s51")
    a(f"s_lshl_b32 s52, s{S_RB}, 18")
    a(f"s_lshl_b32 s51, s{S_KQ}, 3"); a(f"s_add_u32 s51, s51, s{S_HQ}")
    a("s_lshl_b32 s53, s51, 8")
    a(f"s_lshl_b32 s56, s{S_RB}, 20"); a("s_lshl_b32 s41, s51, 13"); a("s_add_u32 s57, s56, s41")
    a(f"s_lshl_b32 s41, s{S_KQ}, 16"); a("s_add_u32 s58, s56, s41")
    a(f"s_lshl_b32 s59, s{S_KQ}, 21"); a(f"s_lshl_b32 s41, s{S_IDX}, 8"); a("s_add_u32 s59, s59, s41")
    a("v_lshlrev_b32 v16, 7, v0")
    a("s_lshl_b32 s61, s40, 18")
    if opt.lstamps: a("s_memrealtime s[92:93]")
    def lst():
        if opt.lstamps:
            a("s_memrealtime s[92:93]"); a("s_waitcnt lgkmcnt(0)"); a("s_mov_b32 m0, s94"); a("v_writelane_b32 v30, s92, m0"); a("s_add_u32 s94, s94, 1")
    def dma(vo, sr, sbase, lit, ldsoff, fl=""):
        a(f"s_add_u32 m0, s{S_W}, {ldsoff}")
        a(f"s_add_u32 s41, s{sbase}, {hex(lit)}")
        a(f"buffer_load_dwordx4 v{vo}, {srd(sr)}, s41 offen {fl} lds")
    def loader_body(P1, KAT, VT, HORD, lo, hi, prev_n):
        def prep(n):
            if n < 16:
                a(f"s_bfe_u32 s54, s{42 + (n >> 3)}, {hex(4*(n & 7) | (4 << 16))}")
                a("s_add_u32 s54, s54, s50"); a("s_and_b32 s54, s54, 15")
                if opt.samek: a("s_and_b32 s54, s54, 1")
                a(f"s_lshl_b32 s55, s54, 7"); a(f"s_add_u32 s{S_OFFR}, s52, s55")
                a(f"s_lshl_b32 s55, s54, 19"); a(f"s_add_u32 s{S_OFFW}, s53, s55")
            elif n % 2 == 0:
                a(f"s_bfe_u32 s54, s{S_HT}, {hex(4*((n - 16) >> 1) | (4 << 16))}")
                if opt.samek: a("s_mov_b32 s54, 0")
                a("s_lshl_b32 s55, s54, 13"); a(f"s_add_u32 s{S_OFFR}, s58, s55")
                a("s_lshl_b32 s55, s54, 18"); a(f"s_add_u32 s{S_OFFW}, s59, s55")
        def ops(n):
            so = slot(n) * SLOT
            X = []
            for c2, kk in enumerate(KAT):
                if kk == n: X += [("d", 11, SRD_K, 57, (m//2)*262144 + (m % 2)*4096 + c2*128, KSLOT + c2*16384 + m*2048, opt.kflags) for m in range(8)]
            if VT == n: X += [("v", 0), ("v", 1)]
            if n < 16:
                return [("d", 12 + (m & 1), SRD_WQ, S_OFFW, m*8*8192, so + 16384 + m*2048) for m in range(8)] + X + \
                       [("d", 10, SRD_X, S_OFFR, m*16*2048, so + m*2048) for m in range(8)]
            c2 = n & 1
            return [("d", 14 + (m & 1), SRD_WO, S_OFFW, m*8*2048 + c2*64*2048, so + 16384 + m*2048) for m in range(8)] + X + \
                   [("d", 11, SRD_V, S_OFFR, (m//2)*262144 + (m % 2)*4096 + c2*128, so + m*2048) for m in range(8)]
        def emit(op):
            if op[0] == "d": dma(*op[1:]); return
            a(f"s_lshl_b32 s55, s{S_HQ}, 13"); a("s_add_u32 s41, s58, s55"); a(f"s_add_u32 s41, s41, {op[1]*2*262144}"); a("s_add_u32 s41, s41, s61")
            a(f"buffer_load_dword v20, v16, {srd(SRD_V)}, s41 offen")
        for n in range(lo, hi):
            prep(n)
            if n == 0:
                a("s_waitcnt lgkmcnt(0)")
                if opt.lstamps:
                    a("v_mov_b32 v30, 0"); a("s_mov_b32 s94, 3")
                    a("v_writelane_b32 v30, s98, 0"); a("v_writelane_b32 v30, s92, 1")
                    a("s_memrealtime s[92:93]"); a("s_waitcnt lgkmcnt(0)"); a("v_writelane_b32 v30, s92, 2")
            L = ops(n)
            if n < 2: q = len(L)
            elif n == 2 or n == 3: q = min(opt.q0, len(L))
            elif n <= 20: q = 0
            else: q = min(opt.q2, len(L))
            for op in L[:q]: emit(op)
            if n >= 2:
                a(f"s_waitcnt vmcnt({prev_n + q})"); lst(); a("s_barrier")
            for op in L[q:]: emit(op)
            prev_n = len(L)
        return prev_n
    def p1_table(p1, p2, p3):
        seq = [None] * 16
        Ms = {0: 0, p1: 2, p2: 1, p3: 3}
        avail = []
        for n in range(16):
            if n in Ms:
                seq[n] = Ms[n]; avail += [(n + 1, Ms[n] + 4*j) for j in (1, 2, 3)]
            else:
                t, c = avail.pop(0); assert t <= n; seq[n] = c
        assert sorted(x % 16 for x in seq) == list(range(16))
        return seq
    def pack(seq): return sum((x & 15) << (4*i) for i, x in enumerate(seq))
    P1S = list(map(int, opt.p1.split(","))); P3S = list(map(int, opt.p3.split(","))); P2S = list(map(int, opt.p2.split(",")))
    VTS = list(map(int, opt.vt.split(",")))
    NV = len(P1S)
    KAT = (max(P1S), max(P3S))
    if NV > 1:
        a(f"s_and_b32 s41, s{S_HQ}, {NV-1}")
        for v in range(1, NV):
            a(f"s_cmp_eq_u32 s41, {v}"); a(f"s_cbranch_scc1 L_var{v}")
    for v in range(NV):
        if v: a.lab(f"L_var{v}")
        tabs = [pack(p1_table(P1S[v], p2, P3S[v])) for p2 in P2S]
        a(f"s_mov_b32 s42, {hex(tabs[0] & 0xffffffff)}"); a(f"s_mov_b32 s43, {hex(tabs[0] >> 32)}")
        for u in range(1, len(P2S)):
            a(f"s_and_b32 s41, s2, {len(P2S)-1}"); a(f"s_cmp_eq_u32 s41, {u}")
            a(f"s_cselect_b32 s42, {hex(tabs[u] & 0xffffffff)}, s42"); a(f"s_cselect_b32 s43, {hex(tabs[u] >> 32)}, s43")
        pn = loader_body(None, (P1S[v], P3S[v]), VTS[v % len(VTS)], None, 0, 16, 0)
        assert pn == 16
        if v < NV - 1: a("s_branch L_ld2")
    a.lab("L_ld2")
    pn = loader_body(None, (-1, -1), -1, None, 16, 32, 16)
    a(f"s_waitcnt vmcnt({pn})"); lst(); a("s_barrier")
    a("s_waitcnt vmcnt(0)"); lst(); a("s_barrier")
    if opt.lstamps:
        a(f"s_cmp_lg_u32 s{S_WAVE}, 4"); a("s_cbranch_scc1 L_end")
        a("s_mul_i32 s40, s2, 512"); a("s_add_u32 s40, s40, 0x8000000")
        a(f"s_add_u32 s42, s{SRD_WS}, s40"); a(f"s_addc_u32 s43, s{SRD_WS+1}, 0")
        a("v_lshlrev_b32 v1, 3, v0"); a("v_mov_b32 v31, 0")
        a("global_store_dwordx2 v1, v[30:31], s[42:43]")
    a("s_endpgm")

    def tag_hash():
        a(f"s_mul_i32 s{S_TAG}, s{S_TAG}, 0x9e3779b1"); a(f"s_add_u32 s{S_TAG}, s{S_TAG}, 0x7f4a7c15")
        a(f"s_mul_i32 s{S_TAG+1}, s{S_TAG+1}, 0x85ebca6b"); a(f"s_add_u32 s{S_TAG+1}, s{S_TAG+1}, 0xc2b2ae35")
    GATE = 20 + opt.pl
    a.lab("L_aux")
    a(f"s_cmp_eq_u32 s{S_WAVE}, 6"); a("s_cbranch_scc1 L_end")
    a("s_waitcnt lgkmcnt(0)")
    a(f"s_lshl_b32 s40, s{S_CL}, 7")
    a(f"s_load_dwordx2 s[{S_TAG}:{S_TAG+1}], s[{SRD_WS}:{SRD_WS+1}], s40")
    a("v_bfe_u32 v1, v0, 2, 3"); a("v_and_b32 v2, 3, v0"); a("v_lshlrev_b32 v2, 3, v2"); a("v_lshl_add_u32 v4, v1, 7, v2")
    a(f"s_lshl_b32 s40, s{S_CL}, 5"); a(f"s_lshl_b32 s41, s{S_KQ}, 3"); a("s_add_u32 s40, s40, s41")
    a("s_lshl_b32 s40, s40, 7"); a(f"s_add_u32 s43, s40, {hex(PFLAG)}")
    a("s_waitcnt lgkmcnt(0)")
    tag_hash()
    a(f"v_mov_b32 v2, s{S_TAG}"); a(f"v_mov_b32 v3, s{S_TAG+1}")
    a(f"s_mov_b32 s44, {GATE + 1}")
    a.lab("L_pb"); a("s_barrier"); a("s_sub_u32 s44, s44, 1"); a("s_cmp_lg_u32 s44, 0"); a("s_cbranch_scc1 L_pb")
    a(f"s_mov_b32 s44, {opt.spin}")
    a.lab("L_ppoll")
    a(f"buffer_load_dwordx2 v[8:9], v4, {srd(SRD_WS)}, s43 offen sc1")
    a("s_sub_u32 s44, s44, 1"); a("s_cmp_eq_u32 s44, 0"); a("s_cbranch_scc1 L_pgo")
    a("s_waitcnt vmcnt(0)")
    a("v_cmp_eq_u64 vcc, v[8:9], v[2:3]")
    a("s_cmp_eq_u64 vcc, exec"); a("s_cbranch_scc1 L_pgo")
    a("s_sleep 2"); a("s_branch L_ppoll")
    a.lab("L_pgo")
    a("s_barrier")
    a.lab("L_end")
    a("s_endpgm")

    a.lab("L_compute")
    mark = [len(a.L)]; rep = []
    def flush_passes():
        body = hazard_fix(auto_wait(a.L[mark[0]:]), report=rep)
        a.L = a.L[:mark[0]] + body
        mark[0] = len(a.L)
    if opt.prio: a(f"s_setprio {opt.prio}")
    a(f"s_lshr_b32 s{S_WM}, s{S_WAVE}, 1"); a(f"s_and_b32 s{S_WN}, s{S_WAVE}, 1")
    a("v_and_b32 v1, 15, v0"); a("v_lshrrev_b32 v2, 4, v0")
    a("v_lshrrev_b32 v3, 1, v1"); a("v_xor_b32 v4, v3, v2"); a("v_lshlrev_b32 v4, 4, v4"); a("v_lshl_add_u32 v4, v1, 7, v4")
    a(f"s_lshl_b32 s43, s{S_WAVE}, 12"); a("s_xor_b32 s42, s43, 4096")
    a(f"v_add_u32 v{V_AR}, s42, v4"); a(f"v_add_u32 v{V_AR+1}, s43, v4")
    a(f"v_xor_b32 v{V_AR+2}, 64, v{V_AR}"); a(f"v_xor_b32 v{V_AR+3}, 64, v{V_AR+1}")
    a("v_lshrrev_b32 v5, 1, v2"); a("v_xor_b32 v5, v5, v3"); a("v_lshlrev_b32 v5, 4, v5"); a("v_lshl_add_u32 v5, v1, 7, v5")
    a("v_and_b32 v6, 1, v2"); a("v_lshl_add_u32 v5, v6, 3, v5")
    a(f"s_lshl_b32 s44, s{S_WN}, 14"); a(f"s_add_u32 s44, s44, {KSLOT}")
    a("s_add_u32 s42, s42, s44"); a("s_add_u32 s43, s43, s44")
    a(f"v_add_u32 v{V_T}, s42, v5"); a(f"v_add_u32 v{V_T+1}, s43, v5")
    for bb in range(2):
        for uz in range(1, 4): a(f"v_xor_b32 v{V_T+4+3*bb+uz-1}, {32*uz}, v{V_T+bb}")
    a("v_bfe_u32 v5, v0, 2, 2"); a("v_lshl_add_u32 v4, v2, 3, v5"); a("v_lshlrev_b32 v4, 8, v4")
    a("v_and_b32 v3, 3, v0"); a("v_lshl_add_u32 v4, v3, 3, v4"); a("v_add_u32 v4, 16384, v4")
    a("v_lshlrev_b32 v5, 1, v5"); a("v_or_b32 v5, v5, v6")
    a(f"s_lshl_b32 s40, s{S_WN}, 2")
    for b in range(4):
        a(f"s_add_u32 s41, s40, {b}"); a("v_xor_b32 v3, s41, v5"); a(f"v_lshl_add_u32 v{V_AW+b}, v3, 5, v4")
    for b in range(4):
        a(f"s_add_u32 s41, s{S_KQ}, {b}"); a("s_and_b32 s41, s41, 3"); a(f"s_xor_b32 s41, s41, {b}"); a(f"s_lshl_b32 s{52+b}, s41, 5")
    a("v_lshlrev_b32 v7, 4, v0"); a(f"v_mov_b32 v{V_Z}, 0")
    a(f"s_mov_b32 s{S_UP}, 0x10000"); a(f"s_mov_b32 s{S_DN1}, 0xffff0000"); a(f"s_mov_b32 s{S_DN2}, 0xfffe0000"); a(f"s_mov_b32 s{S_C}, 0x3e0293ee")
    a(f"s_lshl_b32 s40, s{S_WM}, 13"); a("s_add_u32 s40, s40, s44")
    a(f"v_add_u32 v{V_T+10}, s40, v7"); a(f"v_xor_b32 v{V_T+11}, 0x4000, v{V_T+10}")
    a("s_waitcnt lgkmcnt(0)")
    a(f"s_lshl_b32 s40, s{S_CL}, 7")
    a(f"s_load_dwordx2 s[{S_TAG}:{S_TAG+1}], s[{SRD_WS}:{SRD_WS+1}], s40")
    a(f"s_lshl_b32 s40, s{S_CL}, 5"); a(f"s_lshl_b32 s41, s{S_KQ}, 3"); a("s_add_u32 s40, s40, s41")
    a(f"s_lshl_b32 s{S_PB}, s40, 13"); a(f"s_add_u32 s{S_PB}, s{S_PB}, {hex(PBUF)}")
    a(f"s_lshl_b32 s41, s{S_WAVE}, 11"); a("s_xor_b32 s42, s41, 2048")
    a(f"v_add_u32 v{V_T+2}, s42, v7"); a(f"v_add_u32 v{V_T+3}, s41, v7")
    a(f"s_add_u32 s40, s40, s{S_HQ}"); a("s_lshl_b32 s40, s40, 7"); a(f"s_lshl_b32 s41, s{S_WAVE}, 3"); a("s_add_u32 s40, s40, s41")
    a(f"s_add_u32 s{S_FL}, s40, {hex(PFLAG)}")
    a("s_waitcnt lgkmcnt(0)")
    tag_hash()
    a(f"v_mov_b32 v{V_TAG}, s{S_TAG}"); a(f"v_mov_b32 v{V_TAG+1}, s{S_TAG+1}")
    a("s_barrier")
    stamp()

    def rel(n): return (slot(n) & 1) * SLOT
    def upd(n):
        d = (slot(n + 1) >> 1) - (slot(n) >> 1)
        return {0: None, 1: S_UP, -1: S_DN1, -2: S_DN2}[d]
    def rdR(n, s, aa): return f"ds_read_b128 {vr(V_R+4*aa,4)}, v{V_AR + 2*s + (aa >> 1)} offset:{rel(n) + (aa & 1)*2048}"
    def rdW(n, s, b, z): return f"ds_read_b64_tr_b16 {vr(V_W + 16*s + 4*b + 2*z, 2)}, v{V_AW+b} offset:{rel(n) + s*8192 + z*1024}"
    WPOS = {(0,0): (0,0), (0,1): (0,1), (0,2): (1,0), (1,0): (1,1), (1,1): (2,0), (1,2): (2,1), (2,0): (3,0), (2,1): (3,1)}
    WAITPOS = {(0,0), (0,1), (0,2), (0,3), (2,0), (3,0)}
    def acc(aa, b): return vr(V_ACC + 16*aa + 4*b, 4)
    def item_gaps(n, zero, nxt, bar=True):
        G = []
        phase = 1 if n < 16 else 2
        for s in range(2):
            tk, ts = (n, 1) if s == 0 else (nxt, 0)
            for aa in range(4):
                for b in range(4):
                    post = []
                    W = vr(V_W + 16*s + 4*b, 4); R = vr(V_R + 4*aa, 4)
                    C = "0" if (zero and s == 0) else acc(aa, b)
                    m = f"{MF} {acc(aa,b)}, {W}, {R}, {C}" if phase == 1 else f"{MF} {acc(aa,b)}, {R}, {W}, {C}"
                    if tk is not None:
                        if (aa, b) in WPOS: post.append(rdW(tk, ts, *WPOS[(aa, b)]))
                        if b == 3: post.append(rdR(tk, ts, aa))
                    u = upd(n) if nxt is not None else None
                    if u is not None:
                        if s == 0 and aa == 3 and b < 3: post.append(f"v_add_u32 v{V_AW+b}, s{u}, v{V_AW+b}")
                        if s == 0 and aa == 2 and b == 2: post += [f"v_add_u32 v{V_AR}, s{u}, v{V_AR}", f"v_add_u32 v{V_AR+1}, s{u}, v{V_AR+1}"]
                        if s == 0 and aa == 3 and b == 2: post.append(f"v_add_u32 v{V_AW+3}, s{u}, v{V_AW+3}")
                        if s == 1 and aa == 3 and b < 2: post.append(f"v_add_u32 v{V_AR+2+b}, s{u}, v{V_AR+2+b}")
                    if n == 15 and s == 0 and aa == 3: post.append(f"v_xor_b32 v{V_AW+b}, s{52+b}, v{V_AW+b}") if b < 3 else None
                    if n == 15 and s == 0 and aa == 3 and b == 2: post.append(f"v_xor_b32 v{V_AW+3}, s55, v{V_AW+3}")
                    if bar and s == 0 and aa == 3 and b == 3: post.append("s_barrier")
                    G.append([1 if (aa, b) in WAITPOS else 0, m, post])
        return G
    def load_of(G, i): return len(G[i][2]) + (G[i+1][0] if i + 1 < len(G) else 0)
    def inject(G, start, opsl, cap=2, onelds=True):
        i = start
        for op in opsl:
            while i < len(G) and (load_of(G, i) >= cap or (onelds and op.startswith("ds_") and any(x.startswith("ds_") for x in G[i][2]))): i += 1
            if i >= len(G): G[-1][2].append(op); i = len(G) - 1; continue
            G[i][2].append(op)
        return i
    def emitG(G):
        for w, m, post in G:
            a(m)
            for x in post: a(x)
    kf = lambda bb, kt, u: V_KF + 16*bb + 8*kt + 4*u
    sp = lambda bb, kt, qt: V_SP + 16*bb + 8*kt + 4*qt
    kaddr = lambda bb, u, z: (V_T + bb) if (u == 0 and z == 0) else (V_T + 4 + 3*bb + 2*u + z - 1)
    kreads = [f"ds_read_b64 {vr(kf(bb,kt,u) + 2*z, 2)}, v{kaddr(bb,u,z)} offset:{kt*2048}" for bb in range(2) for kt in range(2) for u in range(2) for z in range(2)]
    qcvt = lambda aa: [f"v_cvt_pk_bf16_f32 v{V_BF+i}, v{V_ACC+2*i}, v{V_ACC+2*i+1}" for i in range(8*aa, 8*aa+8)]
    def smf(bb, Cin=None):
        r = []
        for u in range(2):
            for kt in range(2):
                for qt in range(2):
                    C = (("0" if Cin is None else vr(Cin + 8*kt + 4*qt, 4)) if u == 0 else vr(sp(bb,kt,qt), 4))
                    r.append(f"{MF} {vr(sp(bb,kt,qt),4)}, {vr(kf(bb,kt,u),4)}, {vr(V_BF + 8*(2*bb+qt) + 4*u, 4)}, {C}")
        return r

    for (aa, b) in [(x, y) for x in range(4) for y in range(4)]:
        if (aa, b) in WPOS: a(rdW(0, 0, *WPOS[(aa, b)]))
        if b == 3: a(rdR(0, 0, aa))
    kpos = max(KAT) + 1
    for n in range(16):
        G = item_gaps(n, n == 0, n + 1 if n < 15 else None, bar=(n < 15))
        if n == kpos: inject(G, 0, kreads[:8])
        if n == kpos + 1: inject(G, 0, kreads[8:])
        if n == 15:
            u = upd(15)
            inject(G, 16, [f"v_add_u32 v{r}, s{u}, v{r}" for r in list(range(V_AR, V_AR+4)) + list(range(V_AW, V_AW+4))])
            inject(G, 24, qcvt(0)); inject(G, 28, qcvt(1))
        emitG(G)
    stamp()
    a.c("---- partial scores of the partner's batch")
    G = [[0, m, []] for m in smf(0)]
    inject(G, 0, qcvt(2) + qcvt(3))
    emitG(G)
    RXS = V_KF
    xw = [f"ds_write_b128 v{V_T+10}, {vr(V_SP + 4*j, 4)} offset:{j*1024}" for j in range(4)]
    xr = [f"ds_read_b128 {vr(RXS + 4*j, 4)}, v{V_T+11} offset:{j*1024}" for j in range(4)]
    S = lambda kt, qt, i: f"v{sp(1,kt,qt) + i}"
    sm = []
    M = [1, 3]; T = [2, 4]
    for qt in range(2):
        m = f"v{M[qt]}"
        sm += [f"v_max3_f32 {m}, {S(0,qt,0)}, {S(0,qt,1)}, {S(0,qt,2)}", f"v_max3_f32 {m}, {m}, {S(0,qt,3)}, {S(1,qt,0)}",
               f"v_max3_f32 {m}, {m}, {S(1,qt,1)}, {S(1,qt,2)}", f"v_max_f32 {m}, {m}, {S(1,qt,3)}"]
    def xl(op):
        o = []
        for sw in ("v_permlane16_swap_b32", "v_permlane32_swap_b32"):
            o += ["v_mov_b32 v2, v1", "v_mov_b32 v4, v3", f"{sw} v1, v2", f"{sw} v3, v4", f"{op} v1, v1, v2", f"{op} v3, v3, v4"]
        return o
    sm += xl("v_max_f32")
    sm += [f"v_mul_f32 v1, s{S_C}, v1", f"v_mul_f32 v3, s{S_C}, v3"]
    idx8 = [(kt, i) for kt in range(2) for i in range(4)]
    for qt in range(2):
        for kt, i in idx8: sm.append(f"v_fma_f32 {S(kt,qt,i)}, {S(kt,qt,i)}, s{S_C}, -v{M[qt]}")
    for qt in range(2):
        for kt, i in idx8: sm.append(f"v_exp_f32 {S(kt,qt,i)}, {S(kt,qt,i)}")
    for qt in range(2):
        m = f"v{M[qt]}"; t = f"v{T[qt]}"
        sm += [f"v_add_f32 {m}, {S(0,qt,0)}, {S(0,qt,1)}", f"v_add_f32 {t}, {S(0,qt,2)}, {S(0,qt,3)}",
               f"v_add_f32 {m}, {m}, {S(1,qt,0)}", f"v_add_f32 {t}, {t}, {S(1,qt,1)}",
               f"v_add_f32 {m}, {m}, {S(1,qt,2)}", f"v_add_f32 {t}, {t}, {S(1,qt,3)}", f"v_add_f32 {m}, {m}, {t}"]
    sm += xl("v_add_f32")
    sm += ["v_rcp_f32 v1, v1", "v_rcp_f32 v3, v3"]
    for qt in range(2):
        for kt, i in idx8: sm.append(f"v_mul_f32 {S(kt,qt,i)}, {S(kt,qt,i)}, v{M[qt]}")
    for qt in range(2):
        for kt in range(2):
            for h in range(2): sm.append(f"v_cvt_pk_bf16_f32 v{V_P + 4*qt + 2*kt + h}, {S(kt,qt,2*h)}, {S(kt,qt,2*h+1)}")
    sm += [f"s_lshl_b32 s40, s{S_HQ}, 13", f"s_add_u32 s40, s40, s{S_PB}",
           f"buffer_store_dwordx4 {vr(V_P,4)}, v{V_T+3}, {srd(SRD_WS)}, s40 offen sc1",
           f"buffer_store_dwordx4 {vr(V_P+4,4)}, v{V_T+3}, {srd(SRD_WS)}, s40 offen offset:1024 sc1"]
    flag_ops = ["s_waitcnt vmcnt(0)", f"buffer_store_dwordx2 {vr(V_TAG,2)}, v{V_Z}, {srd(SRD_WS)}, s{S_FL} offen sc1"]

    bf = lambda bb, nt: V_BF + 16*bb + 4*nt
    out = lambda bb, qt, nt: V_OUT + 16*nt + 8*bb + 4*qt
    def cvt_ops(bb, nt):
        t0 = V_ACC + 16*(2*bb) + 4*nt; t1 = V_ACC + 16*(2*bb+1) + 4*nt; d = bf(bb, nt)
        return [f"v_cvt_pk_bf16_f32 v{d}, v{t0}, v{t0+1}", f"v_cvt_pk_bf16_f32 v{d+1}, v{t0+2}, v{t0+3}",
                f"v_cvt_pk_bf16_f32 v{d+2}, v{t1}, v{t1+1}", f"v_cvt_pk_bf16_f32 v{d+3}, v{t1+2}, v{t1+3}"]
    def pv_m(bb, qt, nt, P, zero):
        o = vr(out(bb,qt,nt), 4)
        return f"{MF} {o}, {vr(bf(bb,nt),4)}, {vr(P + 8*bb + 4*qt, 4)}, {'0' if zero else o}"
    def loadP(i, P):
        return [f"s_bfe_u32 s40, s{S_HT}, {hex(4*i | (4 << 16))}", "s_lshl_b32 s40, s40, 13", f"s_add_u32 s40, s40, s{S_PB}"] + \
               [f"buffer_load_dwordx4 {vr(P + 8*bb + 4*qt, 4)}, v{V_T+2+bb}, {srd(SRD_WS)}, s40 offen offset:{qt*1024} sc1" for bb in range(2) for qt in range(2)]
    PN = V_W
    order = [(bb, nt) for bb in range(2) for nt in range(4)]
    def boundary(i):
        G = []
        prev = []
        for bb, nt in order:
            G.append([0, pv_m(bb, 0, nt, V_P, i == 1), prev[2:]])
            prev = cvt_ops(bb, nt)
            G.append([0, pv_m(bb, 1, nt, V_P, i == 1), prev[:2]])
        G[-1][2] += prev[2:]
        return G
    for x in xw: a(x)
    a(f"ds_write_b64 v{V_T+10}, {vr(V_TAG,2)} offset:4096")
    flush_passes()
    a(f"s_mov_b32 s44, {opt.spin}")
    a.lab("L_spoll")
    a(f"ds_read_b64 v[2:3], v{V_T+11} offset:4096")
    a("s_sub_u32 s44, s44, 1"); a("s_cmp_eq_u32 s44, 0")
    a("s_waitcnt lgkmcnt(0)")
    a("s_cbranch_scc1 L_sgo")
    a(f"v_cmp_ne_u64 vcc, v[2:3], {vr(V_TAG,2)}")
    a("s_cbranch_vccnz L_spoll")
    a.lab("L_sgo")
    mark[0] = len(a.L)
    for x in xr: a(x)
    for m in smf(1, RXS): a(m)
    nb = opt.smbar
    for x in sm[:nb]: a(x)
    a("s_barrier")
    for (aa, b) in [(x, y) for x in range(4) for y in range(4)]:
        if (aa, b) in WPOS: a(rdW(16, 0, *WPOS[(aa, b)]))
        if b == 3: a(rdR(16, 0, aa))
    npre = max(nb, len(sm) - opt.smpost)
    for x in sm[nb:npre]: a(x)
    stamp()
    G01 = item_gaps(16, True, 17) + item_gaps(17, False, 18)
    b0 = len(G01)
    cv0 = [x for bb, nt in order for x in cvt_ops(bb, nt)]
    G01[-1][2] += cv0
    G01 += item_gaps(18, True, 19) + item_gaps(19, False, 20)
    pos = inject(G01, 0, sm[npre:], cap=opt.cap)
    fp = pos + opt.flagdelay
    barp = b0 + 15 + 32*opt.pl
    assert fp <= barp, (fp, barp)
    if G01[fp][2] and G01[fp][2][-1] == "s_barrier": G01[fp][2][-1:-1] = flag_ops
    else: G01[fp][2].extend(flag_ops)
    inject(G01, barp + 1, loadP(0, V_P))
    if opt.hstamps: G01[b0-1][2].append(stamp_s())
    emitG(G01)
    if opt.hstamps: stamp()
    emitG(boundary(1))
    if opt.hstamps: stamp()
    for i in range(2, 8):
        nA, nB = 16 + 2*i, 17 + 2*i
        G = item_gaps(nA, True, nB) + item_gaps(nB, False, nB + 1 if i < 7 else None, bar=(i < 7))
        st = 16 + 32*opt.pl if not (i == 7 and opt.pl) else 32
        if i > 2 and opt.pl: st = 16
        inject(G, st, loadP(i - 1, V_P))
        if i == 7: inject(G, 48, loadP(7, PN))
        if i == 7:
            pass
        emitG(G)
        if opt.hstamps: stamp()
        emitG(boundary(i))
        if opt.hstamps: stamp()
    a(f"s_lshl_b32 s40, s{S_CL}, 5"); a(f"s_add_u32 s40, s40, s{S_IDX}")
    a(f"s_lshl_b32 s41, s{S_KQ}, 2"); a(f"s_add_u32 s41, s41, s{S_WAVE}")
    a("s_lshl_b32 s43, s41, 12"); a(f"s_add_u32 s43, s43, {hex(XBUF)}")
    for t in (1, 2, 3):
        a(f"s_add_u32 s42, s{S_KQ}, {t}"); a("s_and_b32 s42, s42, 3"); a("s_lshl_b32 s42, s42, 3"); a("s_add_u32 s42, s42, s40")
        a(f"s_lshl_b32 s{52+t}, s42, 7")
        a("s_lshl_b32 s42, s42, 16"); a(f"s_add_u32 s{44+t}, s42, s43")
    a("s_lshl_b32 s43, s41, 3"); a(f"s_add_u32 s43, s43, {hex(XFLAG)}")
    for t in (1, 2, 3): a(f"s_add_u32 s{52+t}, s{52+t}, s43")
    SX = V_ACC
    tagged = opt.xmode != "flag"
    DPOS = [0, 1, 2, 4, 5, 6, 8, 9] if tagged else list(range(8))
    NG = 3 if tagged else 2
    tags = [f"v_mov_b32 v{SX + 16*t + p}, v{V_TAG + (1 if p == 10 else 0)}" for t in (1, 2, 3) for p in (3, 7, 10, 11)] if tagged else []
    xflag = lambda t: f"buffer_store_dwordx2 {vr(V_TAG,2)}, v{V_Z}, {srd(SRD_WS)}, s{52+t} offen sc1"
    def send(t):
        o = [f"v_cvt_pk_bf16_f32 v{SX + 16*t + DPOS[j]}, v{V_OUT+16*t+2*j}, v{V_OUT+16*t+2*j+1}" for j in range(8)]
        st = [f"buffer_store_dwordx4 {vr(SX + 16*t + 4*g, 4)}, v7, {srd(SRD_WS)}, s{44+t} offen offset:{g*1024} sc1" for g in range(NG)]
        if not tagged: return o[:4] + st[:1] + o[4:] + st[1:]
        return o[:3] + st[:1] + o[3:6] + st[1:2] + o[6:] + st[2:] + ([xflag(t)] if opt.xmode == "opt" else [])
    G = [[0, pv_m(bb, qt, nt, PN, False), []] for nt in (1, 2, 3, 0) for bb in range(2) for qt in range(2)]
    inject(G, 0, tags)
    inject(G, 6, send(1) + send(2) + send(3), cap=3)
    emitG(G)
    stamp()
    if opt.xmode == "flag":
        for t in (1, 2, 3):
            a(f"s_waitcnt vmcnt({2*(3-t) + (t-1)})"); a(xflag(t))
    a(f"s_lshl_b32 s42, s{S_KQ}, 3"); a("s_add_u32 s42, s42, s40")
    a(f"s_lshl_b32 s56, s42, 7"); a(f"s_lshl_b32 s43, s{S_WAVE}, 3"); a("s_add_u32 s56, s56, s43"); a(f"s_add_u32 s56, s56, {hex(XFLAG)}")
    a("v_and_b32 v3, 3, v0"); a("v_min_u32 v3, 2, v3"); a(f"v_add_u32 v3, s{S_KQ}, v3"); a("v_add_u32 v3, 1, v3"); a("v_and_b32 v3, 3, v3"); a("v_lshlrev_b32 v3, 5, v3")
    a("s_lshl_b32 s42, s42, 16"); a(f"s_lshl_b32 s43, s{S_WAVE}, 12"); a("s_add_u32 s42, s42, s43"); a(f"s_add_u32 s42, s42, {hex(XBUF)}")
    for j in range(3):
        a(f"s_add_u32 s43, s{S_KQ}, {j+1}"); a("s_and_b32 s43, s43, 3"); a("s_lshl_b32 s43, s43, 14"); a(f"s_add_u32 s{51+j}, s43, s42")
    a("v_and_b32 v4, 15, v0"); a("v_lshlrev_b32 v4, 12, v4"); a("v_lshrrev_b32 v5, 4, v0"); a("v_lshl_add_u32 v4, v5, 3, v4")
    a(f"s_lshl_b32 s40, s{S_RB}, 19"); a(f"s_lshl_b32 s41, s{S_WAVE}, 17"); a("s_add_u32 s40, s40, s41")
    a(f"s_lshl_b32 s41, s{S_BR}, 11"); a("s_add_u32 s40, s40, s41")
    a(f"s_lshl_b32 s41, s{S_IDX}, 8"); a("s_add_u32 s40, s40, s41")
    a(f"s_lshl_b32 s41, s{S_WN}, 7"); a("s_add_u32 s40, s40, s41")
    a(f"s_lshl_b32 s41, s{S_KQ}, 5"); a("s_add_u32 s40, s40, s41")
    a("s_xor_b32 s41, s40, 0x20000"); a("s_add_u32 s42, s40, 0x10000"); a("s_add_u32 s43, s41, 0x10000")
    a(f"s_mov_b32 s44, {opt.spin}")
    flush_passes()
    if opt.verbose:
        for r in rep: print("pad", r)
    RX = V_BF
    def ld(j, g): a(f"buffer_load_dwordx4 {vr(RX + 12*j + 4*g, 4)}, v7, {srd(SRD_WS)}, s{51+j} offen offset:{g*1024} sc1")
    def chk(j, gs):
        regs = [(RX + 12*j + 4*g + 3, V_TAG) for g in gs] + ([(RX + 12*j + 10, V_TAG + 1)] if 2 in gs else [])
        for k, (r, t) in enumerate(regs): a(f"v_xor_b32 v{V_R+k}, v{r}, v{t}")
        for k in range(1, len(regs)): a(f"v_or_b32 v{V_R}, v{V_R}, v{V_R+k}")
        a(f"v_cmp_ne_u32 vcc, 0, v{V_R}")
    if opt.xmode != "tag":
        a.lab("L_xpoll")
        a(f"buffer_load_dwordx2 v[8:9], v3, {srd(SRD_WS)}, s56 offen sc1")
        a("s_sub_u32 s44, s44, 1"); a("s_cmp_eq_u32 s44, 0")
        a("s_waitcnt vmcnt(0)")
        a("s_cbranch_scc1 L_xrd")
        a(f"v_cmp_ne_u64 vcc, v[8:9], {vr(V_TAG,2)}")
        a("s_cbranch_vccnz L_xpoll")
        a.lab("L_xrd")
        stamp()
    for j in range(3):
        for g in range(NG): ld(j, g)
    for j in range(3 if tagged else 0):
        a(f"s_waitcnt vmcnt({6 - 3*j})")
        chk(j, (0, 1, 2))
        a(f"s_cbranch_vccz L_xok{j}")
        a.lab(f"L_xp{j}")
        a(f"s_sleep {opt.xsleep}")
        ld(j, 2)
        a("s_sub_u32 s44, s44, 1"); a("s_cmp_eq_u32 s44, 0")
        a("s_waitcnt vmcnt(0)")
        a(f"s_cbranch_scc1 L_xok{j}")
        chk(j, (2,))
        a(f"s_cbranch_vccnz L_xp{j}")
        ld(j, 0); ld(j, 1)
        a("s_waitcnt vmcnt(0)")
        chk(j, (0, 1))
        a(f"s_cbranch_vccnz L_xp{j}")
        a.lab(f"L_xok{j}")
    a.lab("L_xgo")
    if opt.xmode == "tag": stamp()
    for j in range(3):
        if not tagged: a(f"s_waitcnt vmcnt({4 - 2*j})")
        for i in range(8):
            r = RX + 12*j + DPOS[i]
            a(f"v_lshlrev_b32 v5, 16, v{r}"); a(f"v_and_b32 v6, 0xffff0000, v{r}")
            a(f"v_add_f32 v{V_OUT+2*i}, v{V_OUT+2*i}, v5"); a(f"v_add_f32 v{V_OUT+2*i+1}, v{V_OUT+2*i+1}, v6")
    for i in range(8): a(f"v_cvt_pk_bf16_f32 v{V_R+i}, v{V_OUT+2*i}, v{V_OUT+2*i+1}")
    for j, so in enumerate((41, 43, 40, 42)):
        a(f"buffer_store_dwordx2 {vr(V_R+2*j,2)}, v4, {srd(SRD_OUT)}, s{so} offen {opt.outflags}")
    a(f"s_or_b32 s40, s{S_KQ}, s{S_IDX}"); a(f"s_or_b32 s40, s40, s{S_WAVE}"); a("s_cmp_lg_u32 s40, 0"); a("s_cbranch_scc1 L_noep")
    a(f"s_lshl_b32 s40, s{S_CL}, 7")
    a(f"buffer_store_dwordx2 {vr(V_TAG,2)}, v{V_Z}, {srd(SRD_WS)}, s40 offen {opt.outflags}")
    a.lab("L_noep")
    if opt.fixdur:
        a.lab("L_fix")
        a("s_memrealtime s[92:93]"); a("s_waitcnt lgkmcnt(0)"); a("s_sub_u32 s92, s92, s98")
        a(f"s_cmp_lt_u32 s92, {opt.fixdur}"); a("s_cbranch_scc1 L_fix")
    if opt.stamps:
        a("s_waitcnt vmcnt(0)")
        stamp()
        a(f"s_cmp_lg_u32 s{S_WAVE}, 0"); a("s_cbranch_scc1 L_end2")
        a("s_waitcnt lgkmcnt(0)")
        n = nst[0]
        a(f"s_mul_i32 s40, s2, {n*8}"); a("s_add_u32 s40, s40, 0x8000000")
        a(f"s_add_u32 s42, s{SRD_WS}, s40"); a(f"s_addc_u32 s43, s{SRD_WS+1}, 0")
        for i in range(n):
            a(f"v_mov_b32 v8, s{S_ST+2*i}"); a(f"v_mov_b32 v9, s{S_ST+2*i+1}")
            a(f"global_store_dwordx2 v{V_Z}, v[8:9], s[42:43] offset:{i*8}"); a("s_nop 1")
        a.lab("L_end2")
    a("s_endpgm")
    tail = ['.section .rodata,"a"', ".p2align 6", f".amdhsa_kernel {NAME}_kernel"]
    tail += ["  .amdhsa_" + l for l in ("next_free_vgpr 256", "next_free_sgpr 102", "accum_offset 256", "group_segment_fixed_size 0", "kernarg_size 104",
              "user_sgpr_count 2", "user_sgpr_kernarg_segment_ptr 1", "system_sgpr_workgroup_id_x 1")]
    tail += [".end_amdhsa_kernel"]
    txt = "\n".join(head + [(x if x.endswith(":") else "    " + x) for x in a.L] + tail) + "\n"
    return txt, nst[0], rep

def parse(argv):
    ap = argparse.ArgumentParser()
    ap.add_argument("-o", default="cdna_kernels/" + NAME + ".s")
    for f in ("stamps", "cyc", "lstamps", "nodma", "nolds", "nomfma", "samek", "hstamps", "verbose"): ap.add_argument("--" + f, action="store_true")
    ap.add_argument("--prio", type=int, default=0)
    ap.add_argument("--spin", type=int, default=100000)
    ap.add_argument("--fixdur", type=int, default=0)
    ap.add_argument("--q0", type=int, default=2)
    ap.add_argument("--q2", type=int, default=4)
    ap.add_argument("--pl", type=int, default=0)
    ap.add_argument("--cap", type=int, default=2)
    ap.add_argument("--keeppos", type=int, default=24)
    ap.add_argument("--flagdelay", type=int, default=40)
    ap.add_argument("--p1", default="4")
    ap.add_argument("--p2", default="8")
    ap.add_argument("--p3", default="12")
    ap.add_argument("--pm", default="4")
    ap.add_argument("--vt", default="-1")
    ap.add_argument("--smbar", type=int, default=60)
    ap.add_argument("--smpost", type=int, default=0)
    ap.add_argument("--xmode", default="opt")
    ap.add_argument("--xsleep", type=int, default=1)
    ap.add_argument("--kflags", default="")
    ap.add_argument("--outflags", default="sc1")
    return ap.parse_args(argv)

if __name__ == "__main__":
    opt = parse(sys.argv[1:])
    t, n, rep = gen(opt)
    open(opt.o, "w").write(t)
    print("wrote", opt.o, "stamps", n, "lines", t.count("\n"), "pads", len(rep))
```

```python
import sys, argparse
from passes import auto_wait, hazard_fix
NAME = "concat_heads__mha_block_cached__mha_block_cached__near_ridge"

class Asm:
    def __init__(self): self.L = []; self.drop = []
    def __call__(self, s):
        for pat in self.drop:
            if pat in s: return
        self.L.append(s)
    def lab(self, s): self.L.append(s + ":")
    def c(self, s): self.L.append("; " + s)

EPOCH = 0; PFLAG = 4096; XFLAG = 65536; PBUF = 0x100000; XBUF = 0x400000; WS_REC = 0x1400000
SLOT = 32768; KSLOT = 4 * SLOT
S_BR, S_KQ, S_RB, S_IDX, S_WAVE = 3, 4, 5, 6, 7
SRD_X, SRD_K, SRD_V, SRD_WQ, SRD_WO, SRD_WS, SRD_OUT = 8, 12, 16, 20, 24, 28, 32
S_TAG = 36; S_CL = 38; S_HQ = 39
S_C = 50; S_PB = 49; S_OFFR = 47; S_OFFW = 48; S_W = 45
S_WM, S_WN = 56, 57; S_UP = 58; S_DN1 = 59; S_FL = 60; S_DN2 = 61
S_ST = 62; S_HT = 46
def srd(b): return f"s[{b}:{b+3}]"
def vr(b, n): return f"v[{b}:{b+n-1}]"
V_AR = 8; V_AW = 12; V_R = 16; V_W = 32; V_BF = 64; V_P = 96; V_TAG = 112; V_Z = 114; V_T = 115
V_ACC = 128; V_OUT = 192; V_KF = 192; V_SP = 224
MF = "v_mfma_f32_16x16x32_bf16"
def slot(n): return n % 4 if n < 16 else (n - 16) % 5

def gen(opt):
    a = Asm()
    if opt.nodma: a.drop.append(" lds")
    if opt.nolds: a.drop += ["ds_read_b128 v[1", "ds_read_b128 v[2", "ds_read_b64_tr"]
    if opt.nomfma: a.drop += ["v_mfma"]
    head = ["; Fused double MHA block: Q-proj + scores + softmax | V*Wo + P*(V*Wo) | split-K reduce-scatter (gfx950)",
            f"; @launch grid=(256,1,1) block=(512,1,1) lds={SLOT*5}",
            '.amdgcn_target "amdgcn-amd-amdhsa--gfx950"', ".text", f".globl {NAME}_kernel", ".p2align 8", f".type {NAME}_kernel,@function"]
    a.lab(f"{NAME}_kernel")
    nst = [0]
    def stamp_s():
        if not opt.stamps or nst[0] >= 20: return None
        r = S_ST + 2 * nst[0]; nst[0] += 1
        return f"{'s_memtime' if opt.cyc else 's_memrealtime'} s[{r}:{r+1}]"
    def stamp():
        s = stamp_s()
        if s: a(s)
    stamp()
    if opt.fixdur or opt.lstamps: a("s_memrealtime s[98:99]")
    a("s_cmp_ge_u32 s2, 256"); a("s_cbranch_scc1 L_end")
    a(f"s_bfe_u32 s{S_BR}, s2, 0x10002")
    a(f"s_mul_i32 s41, s{S_BR}, 40")
    a("s_add_u32 s42, s0, s41"); a("s_addc_u32 s43, s1, 0")
    for b, o in ((SRD_X, 0), (SRD_WQ, 24), (SRD_K, 8), (SRD_V, 16), (SRD_WO, 32)): a(f"s_load_dwordx2 s[{b}:{b+1}], s[42:43], {o}")
    a(f"s_load_dwordx2 s[{SRD_WS}:{SRD_WS+1}], s[0:1], 96")
    a(f"s_load_dwordx2 s[{SRD_OUT}:{SRD_OUT+1}], s[0:1], 80")
    a("v_lshrrev_b32 v1, 6, v0"); a("v_and_b32 v0, 63, v0")
    a(f"s_and_b32 s{S_KQ}, s2, 3")
    a(f"v_readfirstlane_b32 s{S_WAVE}, v1")
    a(f"s_lshr_b32 s{S_RB}, s2, 6"); a(f"s_bfe_u32 s{S_IDX}, s2, 0x30003")
    a(f"s_lshl_b32 s{S_CL}, s{S_BR}, 2"); a(f"s_add_u32 s{S_CL}, s{S_CL}, s{S_RB}")
    a(f"s_lshl_b32 s{S_HQ}, s{S_RB}, 1"); a(f"s_add_u32 s{S_HQ}, s{S_HQ}, s{S_IDX}"); a(f"s_and_b32 s{S_HQ}, s{S_HQ}, 7")
    for b, n in ((SRD_X, 0x100000), (SRD_WQ, 0x800000), (SRD_K, 0x400000), (SRD_V, 0x400000), (SRD_WO, 0x800000), (SRD_WS, WS_REC), (SRD_OUT, 0x200000)):
        a(f"s_mov_b32 s{b+2}, {hex(n)}"); a(f"s_mov_b32 s{b+3}, 0x20000")
    PMS = list(map(int, opt.pm.split(",")))
    def h_table(pm):
        seq = []; r1 = [2, 4, 6]; r2 = [3, 5, 7]
        for i in range(8):
            if i == 0: seq.append(0)
            elif i == pm: seq.append(1)
            elif r1 and (i < pm or True) and (i < pm or r1): seq.append(r1.pop(0))
            else: seq.append(r2.pop(0))
        return seq
    ht = [sum(x << (4*i) for i, x in enumerate(h_table(pm))) for pm in PMS]
    a(f"s_mov_b32 s{S_HT}, {hex(ht[0])}")
    for w in range(1, len(PMS)):
        a(f"s_and_b32 s41, s{S_IDX}, {len(PMS)-1}"); a(f"s_cmp_eq_u32 s41, {w}"); a(f"s_cselect_b32 s{S_HT}, {hex(ht[w])}, s{S_HT}")
    a(f"s_mul_i32 s41, s{S_HQ}, 0x11111111"); a(f"s_add_u32 s{S_HT}, s{S_HT}, s41"); a(f"s_and_b32 s{S_HT}, s{S_HT}, 0x77777777")
    a(f"s_cmp_lt_u32 s{S_WAVE}, 4"); a("s_cbranch_scc1 L_compute")
    a(f"s_cmp_ge_u32 s{S_WAVE}, 6"); a("s_cbranch_scc1 L_aux")

    a.c("---- loader waves")
    a(f"s_sub_u32 s40, s{S_WAVE}, 4")
    a("v_lshrrev_b32 v3, 4, v0"); a("v_and_b32 v2, 15, v0")
    a("v_lshlrev_b32 v4, 2, v3"); a("v_xor_b32 v2, v2, v4"); a("v_xor_b32 v5, 2, v2")
    a("v_lshlrev_b32 v2, 4, v2"); a("v_lshlrev_b32 v5, 4, v5")
    a("s_lshl_b32 s41, s40, 2"); a("v_add_u32 v1, s41, v3")
    a("v_lshl_add_u32 v12, v1, 13, v2"); a("v_lshl_add_u32 v13, v1, 13, v5")
    a("v_lshl_add_u32 v14, v1, 11, v2"); a("v_lshl_add_u32 v15, v1, 11, v5")
    a("v_lshrrev_b32 v1, 3, v0"); a("v_and_b32 v2, 7, v0")
    a("v_add_u32 v4, s41, v3"); a("v_xor_b32 v2, v2, v4"); a("v_lshlrev_b32 v2, 4, v2")
    a("s_lshl_b32 s41, s40, 3"); a("v_add_u32 v1, s41, v1")
    a("v_lshl_add_u32 v10, v1, 11, v2"); a("v_lshl_add_u32 v11, v1, 8, v2")
    a(f"s_lshl_b32 s{S_W}, s40, 10")
    a(f"s_lshl_b32 s50, s{S_RB}, 2"); a(f"s_lshl_b32 s51, s{S_HQ}, 1"); a("s_add_u32 s50, s50, s51")
    a(f"s_lshl_b32 s52, s{S_RB}, 18")
    a(f"s_lshl_b32 s51, s{S_KQ}, 3"); a(f"s_add_u32 s51, s51, s{S_HQ}")
    a("s_lshl_b32 s53, s51, 8")
    a(f"s_lshl_b32 s56, s{S_RB}, 20"); a("s_lshl_b32 s41, s51, 13"); a("s_add_u32 s57, s56, s41")
    a(f"s_lshl_b32 s41, s{S_KQ}, 16"); a("s_add_u32 s58, s56, s41")
    a(f"s_lshl_b32 s59, s{S_KQ}, 21"); a(f"s_lshl_b32 s41, s{S_IDX}, 8"); a("s_add_u32 s59, s59, s41")
    a("v_lshlrev_b32 v16, 7, v0")
    a("s_lshl_b32 s61, s40, 18")
    if opt.lstamps: a("s_memrealtime s[92:93]")
    def lst():
        if opt.lstamps:
            a("s_memrealtime s[92:93]"); a("s_waitcnt lgkmcnt(0)"); a("s_mov_b32 m0, s94"); a("v_writelane_b32 v30, s92, m0"); a("s_add_u32 s94, s94, 1")
    def dma(vo, sr, sbase, lit, ldsoff, fl=""):
        a(f"s_add_u32 m0, s{S_W}, {ldsoff}")
        a(f"s_add_u32 s41, s{sbase}, {hex(lit)}")
        a(f"buffer_load_dwordx4 v{vo}, {srd(sr)}, s41 offen {fl} lds")
    def loader_body(P1, KAT, VT, HORD, lo, hi, prev_n):
        def prep(n):
            if n < 16:
                a(f"s_bfe_u32 s54, s{42 + (n >> 3)}, {hex(4*(n & 7) | (4 << 16))}")
                a("s_add_u32 s54, s54, s50"); a("s_and_b32 s54, s54, 15")
                if opt.samek: a("s_and_b32 s54, s54, 1")
                a(f"s_lshl_b32 s55, s54, 7"); a(f"s_add_u32 s{S_OFFR}, s52, s55")
                a(f"s_lshl_b32 s55, s54, 19"); a(f"s_add_u32 s{S_OFFW}, s53, s55")
            elif n % 2 == 0:
                a(f"s_bfe_u32 s54, s{S_HT}, {hex(4*((n - 16) >> 1) | (4 << 16))}")
                if opt.samek: a("s_mov_b32 s54, 0")
                a("s_lshl_b32 s55, s54, 13"); a(f"s_add_u32 s{S_OFFR}, s58, s55")
                a("s_lshl_b32 s55, s54, 18"); a(f"s_add_u32 s{S_OFFW}, s59, s55")
        def ops(n):
            so = slot(n) * SLOT
            X = []
            for c2, kk in enumerate(KAT):
                if kk == n: X += [("d", 11, SRD_K, 57, (m//2)*262144 + (m % 2)*4096 + c2*128, KSLOT + c2*16384 + m*2048, opt.kflags) for m in range(8)]
            if VT == n: X += [("v", 0), ("v", 1)]
            if n < 16:
                return [("d", 12 + (m & 1), SRD_WQ, S_OFFW, m*8*8192, so + 16384 + m*2048) for m in range(8)] + X + \
                       [("d", 10, SRD_X, S_OFFR, m*16*2048, so + m*2048) for m in range(8)]
            c2 = n & 1
            return [("d", 14 + (m & 1), SRD_WO, S_OFFW, m*8*2048 + c2*64*2048, so + 16384 + m*2048) for m in range(8)] + X + \
                   [("d", 11, SRD_V, S_OFFR, (m//2)*262144 + (m % 2)*4096 + c2*128, so + m*2048) for m in range(8)]
        def emit(op):
            if op[0] == "d": dma(*op[1:]); return
            a(f"s_lshl_b32 s55, s{S_HQ}, 13"); a("s_add_u32 s41, s58, s55"); a(f"s_add_u32 s41, s41, {op[1]*2*262144}"); a("s_add_u32 s41, s41, s61")
            a(f"buffer_load_dword v20, v16, {srd(SRD_V)}, s41 offen")
        for n in range(lo, hi):
            prep(n)
            if n == 0:
                a("s_waitcnt lgkmcnt(0)")
                if opt.lstamps:
                    a("v_mov_b32 v30, 0"); a("s_mov_b32 s94, 3")
                    a("v_writelane_b32 v30, s98, 0"); a("v_writelane_b32 v30, s92, 1")
                    a("s_memrealtime s[92:93]"); a("s_waitcnt lgkmcnt(0)"); a("v_writelane_b32 v30, s92, 2")
            L = ops(n)
            if n < 2: q = len(L)
            elif n == 2 or n == 3: q = min(opt.q0, len(L))
            elif n <= 20: q = 0
            else: q = min(opt.q2, len(L))
            for op in L[:q]: emit(op)
            if n >= 2:
                a(f"s_waitcnt vmcnt({prev_n + q})"); lst(); a("s_barrier")
            for op in L[q:]: emit(op)
            prev_n = len(L)
        return prev_n
    def p1_table(p1, p2, p3):
        seq = [None] * 16
        Ms = {0: 0, p1: 2, p2: 1, p3: 3}
        avail = []
        for n in range(16):
            if n in Ms:
                seq[n] = Ms[n]; avail += [(n + 1, Ms[n] + 4*j) for j in (1, 2, 3)]
            else:
                t, c = avail.pop(0); assert t <= n; seq[n] = c
        assert sorted(x % 16 for x in seq) == list(range(16))
        return seq
    def pack(seq): return sum((x & 15) << (4*i) for i, x in enumerate(seq))
    P1S = list(map(int, opt.p1.split(","))); P3S = list(map(int, opt.p3.split(","))); P2S = list(map(int, opt.p2.split(",")))
    VTS = list(map(int, opt.vt.split(",")))
    NV = len(P1S)
    KAT = (max(P1S), max(P3S))
    if NV > 1:
        a(f"s_and_b32 s41, s{S_HQ}, {NV-1}")
        for v in range(1, NV):
            a(f"s_cmp_eq_u32 s41, {v}"); a(f"s_cbranch_scc1 L_var{v}")
    for v in range(NV):
        if v: a.lab(f"L_var{v}")
        tabs = [pack(p1_table(P1S[v], p2, P3S[v])) for p2 in P2S]
        a(f"s_mov_b32 s42, {hex(tabs[0] & 0xffffffff)}"); a(f"s_mov_b32 s43, {hex(tabs[0] >> 32)}")
        for u in range(1, len(P2S)):
            a(f"s_and_b32 s41, s2, {len(P2S)-1}"); a(f"s_cmp_eq_u32 s41, {u}")
            a(f"s_cselect_b32 s42, {hex(tabs[u] & 0xffffffff)}, s42"); a(f"s_cselect_b32 s43, {hex(tabs[u] >> 32)}, s43")
        pn = loader_body(None, (P1S[v], P3S[v]), VTS[v % len(VTS)], None, 0, 16, 0)
        assert pn == 16
        if v < NV - 1: a("s_branch L_ld2")
    a.lab("L_ld2")
    pn = loader_body(None, (-1, -1), -1, None, 16, 32, 16)
    a(f"s_waitcnt vmcnt({pn})"); lst(); a("s_barrier")
    a("s_waitcnt vmcnt(0)"); lst(); a("s_barrier")
    if opt.lstamps:
        a(f"s_cmp_lg_u32 s{S_WAVE}, 4"); a("s_cbranch_scc1 L_end")
        a("s_mul_i32 s40, s2, 512"); a("s_add_u32 s40, s40, 0x8000000")
        a(f"s_add_u32 s42, s{SRD_WS}, s40"); a(f"s_addc_u32 s43, s{SRD_WS+1}, 0")
        a("v_lshlrev_b32 v1, 3, v0"); a("v_mov_b32 v31, 0")
        a("global_store_dwordx2 v1, v[30:31], s[42:43]")
    a("s_endpgm")

    def tag_hash():
        a(f"s_mul_i32 s{S_TAG}, s{S_TAG}, 0x9e3779b1"); a(f"s_add_u32 s{S_TAG}, s{S_TAG}, 0x7f4a7c15")
        a(f"s_mul_i32 s{S_TAG+1}, s{S_TAG+1}, 0x85ebca6b"); a(f"s_add_u32 s{S_TAG+1}, s{S_TAG+1}, 0xc2b2ae35")
    GATE = 20 + opt.pl
    a.lab("L_aux")
    a(f"s_cmp_eq_u32 s{S_WAVE}, 6"); a("s_cbranch_scc1 L_end")
    a("s_waitcnt lgkmcnt(0)")
    a(f"s_lshl_b32 s40, s{S_CL}, 7")
    a(f"s_load_dwordx2 s[{S_TAG}:{S_TAG+1}], s[{SRD_WS}:{SRD_WS+1}], s40")
    a("v_bfe_u32 v1, v0, 2, 3"); a("v_and_b32 v2, 3, v0"); a("v_lshlrev_b32 v2, 3, v2"); a("v_lshl_add_u32 v4, v1, 7, v2")
    a(f"s_lshl_b32 s40, s{S_CL}, 5"); a(f"s_lshl_b32 s41, s{S_KQ}, 3"); a("s_add_u32 s40, s40, s41")
    a("s_lshl_b32 s40, s40, 7"); a(f"s_add_u32 s43, s40, {hex(PFLAG)}")
    a("s_waitcnt lgkmcnt(0)")
    tag_hash()
    a(f"v_mov_b32 v2, s{S_TAG}"); a(f"v_mov_b32 v3, s{S_TAG+1}")
    a(f"s_mov_b32 s44, {GATE + 1}")
    a.lab("L_pb"); a("s_barrier"); a("s_sub_u32 s44, s44, 1"); a("s_cmp_lg_u32 s44, 0"); a("s_cbranch_scc1 L_pb")
    a(f"s_mov_b32 s44, {opt.spin}")
    a.lab("L_ppoll")
    a(f"buffer_load_dwordx2 v[8:9], v4, {srd(SRD_WS)}, s43 offen sc1")
    a("s_sub_u32 s44, s44, 1"); a("s_cmp_eq_u32 s44, 0"); a("s_cbranch_scc1 L_pgo")
    a("s_waitcnt vmcnt(0)")
    a("v_cmp_eq_u64 vcc, v[8:9], v[2:3]")
    a("s_cmp_eq_u64 vcc, exec"); a("s_cbranch_scc1 L_pgo")
    a("s_sleep 2"); a("s_branch L_ppoll")
    a.lab("L_pgo")
    a("s_barrier")
    a.lab("L_end")
    a("s_endpgm")

    a.lab("L_compute")
    mark = [len(a.L)]; rep = []
    def flush_passes():
        body = hazard_fix(auto_wait(a.L[mark[0]:]), report=rep)
        a.L = a.L[:mark[0]] + body
        mark[0] = len(a.L)
    if opt.prio: a(f"s_setprio {opt.prio}")
    a(f"s_lshr_b32 s{S_WM}, s{S_WAVE}, 1"); a(f"s_and_b32 s{S_WN}, s{S_WAVE}, 1")
    a("v_and_b32 v1, 15, v0"); a("v_lshrrev_b32 v2, 4, v0")
    a("v_lshrrev_b32 v3, 1, v1"); a("v_xor_b32 v4, v3, v2"); a("v_lshlrev_b32 v4, 4, v4"); a("v_lshl_add_u32 v4, v1, 7, v4")
    a(f"s_lshl_b32 s43, s{S_WAVE}, 12"); a("s_xor_b32 s42, s43, 4096")
    a(f"v_add_u32 v{V_AR}, s42, v4"); a(f"v_add_u32 v{V_AR+1}, s43, v4")
    a(f"v_xor_b32 v{V_AR+2}, 64, v{V_AR}"); a(f"v_xor_b32 v{V_AR+3}, 64, v{V_AR+1}")
    a("v_lshrrev_b32 v5, 1, v2"); a("v_xor_b32 v5, v5, v3"); a("v_lshlrev_b32 v5, 4, v5"); a("v_lshl_add_u32 v5, v1, 7, v5")
    a("v_and_b32 v6, 1, v2"); a("v_lshl_add_u32 v5, v6, 3, v5")
    a(f"s_lshl_b32 s44, s{S_WN}, 14"); a(f"s_add_u32 s44, s44, {KSLOT}")
    a("s_add_u32 s42, s42, s44"); a("s_add_u32 s43, s43, s44")
    a(f"v_add_u32 v{V_T}, s42, v5"); a(f"v_add_u32 v{V_T+1}, s43, v5")
    for bb in range(2):
        for uz in range(1, 4): a(f"v_xor_b32 v{V_T+4+3*bb+uz-1}, {32*uz}, v{V_T+bb}")
    a("v_bfe_u32 v5, v0, 2, 2"); a("v_lshl_add_u32 v4, v2, 3, v5"); a("v_lshlrev_b32 v4, 8, v4")
    a("v_and_b32 v3, 3, v0"); a("v_lshl_add_u32 v4, v3, 3, v4"); a("v_add_u32 v4, 16384, v4")
    a("v_lshlrev_b32 v5, 1, v5"); a("v_or_b32 v5, v5, v6")
    a(f"s_lshl_b32 s40, s{S_WN}, 2")
    for b in range(4):
        a(f"s_add_u32 s41, s40, {b}"); a("v_xor_b32 v3, s41, v5"); a(f"v_lshl_add_u32 v{V_AW+b}, v3, 5, v4")
    a(f"s_lshr_b32 s52, s{S_KQ}, 1"); a("s_lshl_b32 s52, s52, 12")
    a(f"s_lshl_b32 s53, s{S_KQ}, 10")
    a("v_lshlrev_b32 v7, 4, v0"); a(f"v_mov_b32 v{V_Z}, 0")
    a(f"s_mov_b32 s{S_UP}, 0x10000"); a(f"s_mov_b32 s{S_DN1}, 0xffff0000"); a(f"s_mov_b32 s{S_DN2}, 0xfffe0000"); a(f"s_mov_b32 s{S_C}, 0x3e0293ee")
    a(f"s_lshl_b32 s40, s{S_WM}, 13"); a("s_add_u32 s40, s40, s44")
    a(f"v_add_u32 v{V_T+10}, s40, v7"); a(f"v_xor_b32 v{V_T+11}, 0x4000, v{V_T+10}")
    a("s_waitcnt lgkmcnt(0)")
    a(f"s_lshl_b32 s40, s{S_CL}, 7")
    a(f"s_load_dwordx2 s[{S_TAG}:{S_TAG+1}], s[{SRD_WS}:{SRD_WS+1}], s40")
    a(f"s_lshl_b32 s40, s{S_CL}, 5"); a(f"s_lshl_b32 s41, s{S_KQ}, 3"); a("s_add_u32 s40, s40, s41")
    a(f"s_lshl_b32 s{S_PB}, s40, 13"); a(f"s_add_u32 s{S_PB}, s{S_PB}, {hex(PBUF)}")
    a(f"s_lshl_b32 s41, s{S_WAVE}, 11"); a("s_xor_b32 s42, s41, 2048")
    a(f"v_add_u32 v{V_T+2}, s42, v7"); a(f"v_add_u32 v{V_T+3}, s41, v7")
    a(f"s_add_u32 s40, s40, s{S_HQ}"); a("s_lshl_b32 s40, s40, 7"); a(f"s_lshl_b32 s41, s{S_WAVE}, 3"); a("s_add_u32 s40, s40, s41")
    a(f"s_add_u32 s{S_FL}, s40, {hex(PFLAG)}")
    a("s_waitcnt lgkmcnt(0)")
    tag_hash()
    a(f"v_mov_b32 v{V_TAG}, s{S_TAG}"); a(f"v_mov_b32 v{V_TAG+1}, s{S_TAG+1}")
    a("s_barrier")
    stamp()

    def rel(n): return (slot(n) & 1) * SLOT
    def upd(n):
        d = (slot(n + 1) >> 1) - (slot(n) >> 1)
        return {0: None, 1: S_UP, -1: S_DN1, -2: S_DN2}[d]
    def rdR(n, s, aa): return f"ds_read_b128 {vr(V_R+4*aa,4)}, v{V_AR + 2*s + (aa >> 1)} offset:{rel(n) + (aa & 1)*2048}"
    def rdW(n, s, b, z): return f"ds_read_b64_tr_b16 {vr(V_W + 16*s + 4*b + 2*z, 2)}, v{V_AW+b} offset:{rel(n) + s*8192 + z*1024}"
    WPOS = {(0,0): (0,0), (0,1): (0,1), (0,2): (1,0), (1,0): (1,1), (1,1): (2,0), (1,2): (2,1), (2,0): (3,0), (2,1): (3,1)}
    WAITPOS = {(0,0), (0,1), (0,2), (0,3), (2,0), (3,0)}
    def acc(aa, b): return vr(V_ACC + 16*aa + 4*b, 4)
    def item_gaps(n, zero, nxt, bar=True):
        G = []
        phase = 1 if n < 16 else 2
        for s in range(2):
            tk, ts = (n, 1) if s == 0 else (nxt, 0)
            for aa in range(4):
                for b in range(4):
                    post = []
                    W = vr(V_W + 16*s + 4*b, 4); R = vr(V_R + 4*aa, 4)
                    C = "0" if (zero and s == 0) else acc(aa, b)
                    m = f"{MF} {acc(aa,b)}, {W}, {R}, {C}" if phase == 1 else f"{MF} {acc(aa,b)}, {R}, {W}, {C}"
                    if tk is not None:
                        if (aa, b) in WPOS: post.append(rdW(tk, ts, *WPOS[(aa, b)]))
                        if b == 3: post.append(rdR(tk, ts, aa))
                    u = upd(n) if nxt is not None else None
                    if u is not None:
                        if s == 0 and aa == 3 and b < 3: post.append(f"v_add_u32 v{V_AW+b}, s{u}, v{V_AW+b}")
                        if s == 0 and aa == 2 and b == 2: post += [f"v_add_u32 v{V_AR}, s{u}, v{V_AR}", f"v_add_u32 v{V_AR+1}, s{u}, v{V_AR+1}"]
                        if s == 0 and aa == 3 and b == 2: post.append(f"v_add_u32 v{V_AW+3}, s{u}, v{V_AW+3}")
                        if s == 1 and aa == 3 and b < 2: post.append(f"v_add_u32 v{V_AR+2+b}, s{u}, v{V_AR+2+b}")
                    if bar and s == 0 and aa == 3 and b == 3: post.append("s_barrier")
                    G.append([1 if (aa, b) in WAITPOS else 0, m, post])
        return G
    def load_of(G, i): return len(G[i][2]) + (G[i+1][0] if i + 1 < len(G) else 0)
    def inject(G, start, opsl, cap=2, onelds=True):
        i = start
        for op in opsl:
            while i < len(G) and (load_of(G, i) >= cap or (onelds and op.startswith("ds_") and any(x.startswith("ds_") for x in G[i][2]))): i += 1
            if i >= len(G): G[-1][2].append(op); i = len(G) - 1; continue
            G[i][2].append(op)
        return i
    def emitG(G):
        for w, m, post in G:
            a(m)
            for x in post: a(x)
    kf = lambda bb, kt, u: V_KF + 16*bb + 8*kt + 4*u
    sp = lambda bb, kt, qt: V_SP + 16*bb + 8*kt + 4*qt
    kaddr = lambda bb, u, z: (V_T + bb) if (u == 0 and z == 0) else (V_T + 4 + 3*bb + 2*u + z - 1)
    kreads = [f"ds_read_b64 {vr(kf(bb,kt,u) + 2*z, 2)}, v{kaddr(bb,u,z)} offset:{kt*2048}" for bb in range(2) for kt in range(2) for u in range(2) for z in range(2)]
    qcvt = lambda aa: [f"v_cvt_pk_bf16_f32 v{V_BF+i}, v{V_ACC+2*i}, v{V_ACC+2*i+1}" for i in range(8*aa, 8*aa+8)]
    def smf(bb, Cin=None):
        r = []
        for u in range(2):
            for kt in range(2):
                for qt in range(2):
                    C = (("0" if Cin is None else vr(Cin + 8*kt + 4*qt, 4)) if u == 0 else vr(sp(bb,kt,qt), 4))
                    r.append(f"{MF} {vr(sp(bb,kt,qt),4)}, {vr(kf(bb,kt,u),4)}, {vr(V_BF + 8*(2*bb+qt) + 4*u, 4)}, {C}")
        return r

    for (aa, b) in [(x, y) for x in range(4) for y in range(4)]:
        if (aa, b) in WPOS: a(rdW(0, 0, *WPOS[(aa, b)]))
        if b == 3: a(rdR(0, 0, aa))
    kpos = max(KAT) + 1
    for n in range(16):
        G = item_gaps(n, n == 0, n + 1 if n < 15 else None, bar=(n < 15))
        if n == kpos: inject(G, 0, kreads[:8])
        if n == kpos + 1: inject(G, 0, kreads[8:])
        if n == 15:
            u = upd(15)
            inject(G, 16, [f"v_add_u32 v{r}, s{u}, v{r}" for r in list(range(V_AR, V_AR+4)) + list(range(V_AW, V_AW+4))] +
                   [f"v_xor_b32 v{r}, s52, v{r}" for r in range(V_AR, V_AR+4)] +
                   [f"v_xor_b32 v{V_T+4}, s53, v{V_T+2}", f"v_xor_b32 v{V_T+6}, s53, v{V_T+3}", f"v_xor_b32 v{V_T+5}, 0x400, v{V_T+4}", f"v_xor_b32 v{V_T+7}, 0x400, v{V_T+6}"])
            inject(G, 24, qcvt(0), cap=3); inject(G, 28, qcvt(1), cap=3)
        emitG(G)
    stamp()
    a.c("---- partial scores of the partner's batch")
    G = [[0, m, []] for m in smf(0)]
    inject(G, 0, qcvt(2) + qcvt(3))
    emitG(G)
    RXS = V_KF
    xw = [f"ds_write_b128 v{V_T+10}, {vr(V_SP + 4*j, 4)} offset:{j*1024}" for j in range(4)]
    xr = [f"ds_read_b128 {vr(RXS + 4*j, 4)}, v{V_T+11} offset:{j*1024}" for j in range(4)]
    S = lambda kt, qt, i: f"v{sp(1,kt,qt) + i}"
    sm = []
    M = [1, 3]; T = [2, 4]
    for qt in range(2):
        m = f"v{M[qt]}"
        sm += [f"v_max3_f32 {m}, {S(0,qt,0)}, {S(0,qt,1)}, {S(0,qt,2)}", f"v_max3_f32 {m}, {m}, {S(0,qt,3)}, {S(1,qt,0)}",
               f"v_max3_f32 {m}, {m}, {S(1,qt,1)}, {S(1,qt,2)}", f"v_max_f32 {m}, {m}, {S(1,qt,3)}"]
    def xl(op):
        o = []
        for sw in ("v_permlane16_swap_b32", "v_permlane32_swap_b32"):
            o += ["v_mov_b32 v2, v1", "v_mov_b32 v4, v3", f"{sw} v1, v2", f"{sw} v3, v4", f"{op} v1, v1, v2", f"{op} v3, v3, v4"]
        return o
    sm += xl("v_max_f32")
    sm += [f"v_mul_f32 v1, s{S_C}, v1", f"v_mul_f32 v3, s{S_C}, v3"]
    idx8 = [(kt, i) for kt in range(2) for i in range(4)]
    for qt in range(2):
        for kt, i in idx8: sm.append(f"v_fma_f32 {S(kt,qt,i)}, {S(kt,qt,i)}, s{S_C}, -v{M[qt]}")
    for qt in range(2):
        for kt, i in idx8: sm.append(f"v_exp_f32 {S(kt,qt,i)}, {S(kt,qt,i)}")
    for qt in range(2):
        m = f"v{M[qt]}"; t = f"v{T[qt]}"
        sm += [f"v_add_f32 {m}, {S(0,qt,0)}, {S(0,qt,1)}", f"v_add_f32 {t}, {S(0,qt,2)}, {S(0,qt,3)}",
               f"v_add_f32 {m}, {m}, {S(1,qt,0)}", f"v_add_f32 {t}, {t}, {S(1,qt,1)}",
               f"v_add_f32 {m}, {m}, {S(1,qt,2)}", f"v_add_f32 {t}, {t}, {S(1,qt,3)}", f"v_add_f32 {m}, {m}, {t}"]
    sm += xl("v_add_f32")
    sm += ["v_rcp_f32 v1, v1", "v_rcp_f32 v3, v3"]
    for qt in range(2):
        for kt, i in idx8: sm.append(f"v_mul_f32 {S(kt,qt,i)}, {S(kt,qt,i)}, v{M[qt]}")
    for qt in range(2):
        for kt in range(2):
            for h in range(2): sm.append(f"v_cvt_pk_bf16_f32 v{V_P + 4*qt + 2*kt + h}, {S(kt,qt,2*h)}, {S(kt,qt,2*h+1)}")
    sm += [f"s_lshl_b32 s40, s{S_HQ}, 13", f"s_add_u32 s40, s40, s{S_PB}",
           f"buffer_store_dwordx4 {vr(V_P,4)}, v{V_T+3}, {srd(SRD_WS)}, s40 offen sc1",
           f"buffer_store_dwordx4 {vr(V_P+4,4)}, v{V_T+3}, {srd(SRD_WS)}, s40 offen offset:1024 sc1"]
    flag_ops = ["s_waitcnt vmcnt(0)", f"buffer_store_dwordx2 {vr(V_TAG,2)}, v{V_Z}, {srd(SRD_WS)}, s{S_FL} offen sc1"]

    bf = lambda bb, nt: V_BF + 16*bb + 4*nt
    out = lambda bb, qt, nt: V_OUT + 16*(2*bb + qt) + 4*nt
    def cvt_ops(bb, nt):
        t0 = V_ACC + 16*(2*bb) + 4*nt; t1 = V_ACC + 16*(2*bb+1) + 4*nt; d = bf(bb, nt)
        return [f"v_cvt_pk_bf16_f32 v{d}, v{t0}, v{t0+1}", f"v_cvt_pk_bf16_f32 v{d+1}, v{t0+2}, v{t0+3}",
                f"v_cvt_pk_bf16_f32 v{d+2}, v{t1}, v{t1+1}", f"v_cvt_pk_bf16_f32 v{d+3}, v{t1+2}, v{t1+3}"]
    def pv_m(bb, qt, nt, P, zero):
        o = vr(out(bb,qt,nt), 4)
        return f"{MF} {o}, {vr(bf(bb,nt),4)}, {vr(P + 8*bb + 4*qt, 4)}, {'0' if zero else o}"
    def loadP(i, P):
        return [f"s_bfe_u32 s40, s{S_HT}, {hex(4*i | (4 << 16))}", "s_lshl_b32 s40, s40, 13", f"s_add_u32 s40, s40, s{S_PB}"] + \
               [f"buffer_load_dwordx4 {vr(P + 8*bb + 4*qt, 4)}, v{V_T+4+2*bb+qt}, {srd(SRD_WS)}, s40 offen sc1" for bb in range(2) for qt in range(2)]
    PN = V_W
    order = [(bb, nt) for bb in range(2) for nt in range(4)]
    def boundary(i):
        G = []
        prev = []
        for bb, nt in order:
            G.append([0, pv_m(bb, 0, nt, V_P, i == 1), prev[2:]])
            prev = cvt_ops(bb, nt)
            G.append([0, pv_m(bb, 1, nt, V_P, i == 1), prev[:2]])
        G[-1][2] += prev[2:]
        return G
    for x in xw: a(x)
    a(f"ds_write_b64 v{V_T+10}, {vr(V_TAG,2)} offset:4096")
    flush_passes()
    a(f"s_mov_b32 s44, {opt.spin}")
    a.lab("L_spoll")
    a(f"ds_read_b64 v[2:3], v{V_T+11} offset:4096")
    a("s_sub_u32 s44, s44, 1"); a("s_cmp_eq_u32 s44, 0")
    a("s_waitcnt lgkmcnt(0)")
    a("s_cbranch_scc1 L_sgo")
    a(f"v_cmp_ne_u64 vcc, v[2:3], {vr(V_TAG,2)}")
    a("s_cbranch_vccnz L_spoll")
    a.lab("L_sgo")
    mark[0] = len(a.L)
    for x in xr: a(x)
    for m in smf(1, RXS): a(m)
    nb = opt.smbar
    for x in sm[:nb]: a(x)
    a("s_barrier")
    for (aa, b) in [(x, y) for x in range(4) for y in range(4)]:
        if (aa, b) in WPOS: a(rdW(16, 0, *WPOS[(aa, b)]))
        if b == 3: a(rdR(16, 0, aa))
    npre = max(nb, len(sm) - opt.smpost)
    for x in sm[nb:npre]: a(x)
    stamp()
    G01 = item_gaps(16, True, 17) + item_gaps(17, False, 18)
    b0 = len(G01)
    cv0 = [x for bb, nt in order for x in cvt_ops(bb, nt)]
    G01[-1][2] += cv0
    G01 += item_gaps(18, True, 19) + item_gaps(19, False, 20)
    pos = inject(G01, 0, sm[npre:], cap=opt.cap)
    fp = pos + opt.flagdelay
    barp = b0 + 15 + 32*opt.pl
    assert fp <= barp, (fp, barp)
    if G01[fp][2] and G01[fp][2][-1] == "s_barrier": G01[fp][2][-1:-1] = flag_ops
    else: G01[fp][2].extend(flag_ops)
    inject(G01, barp + 1, loadP(0, V_P))
    if opt.hstamps: G01[b0-1][2].append(stamp_s())
    emitG(G01)
    if opt.hstamps: stamp()
    emitG(boundary(1))
    if opt.hstamps: stamp()
    for i in range(2, 8):
        nA, nB = 16 + 2*i, 17 + 2*i
        G = item_gaps(nA, True, nB) + item_gaps(nB, False, nB + 1 if i < 7 else None, bar=(i < 7))
        st = 16 + 32*opt.pl if not (i == 7 and opt.pl) else 32
        if i > 2 and opt.pl: st = 16
        inject(G, st, loadP(i - 1, V_P))
        if i == 7: inject(G, 48, loadP(7, PN))
        if i == 7:
            pass
        emitG(G)
        if opt.hstamps: stamp()
        emitG(boundary(i))
        if opt.hstamps: stamp()
    a(f"s_lshl_b32 s40, s{S_CL}, 5"); a(f"s_add_u32 s40, s40, s{S_IDX}")
    a(f"s_lshl_b32 s41, s{S_KQ}, 2"); a(f"s_add_u32 s41, s41, s{S_WAVE}")
    a("s_lshl_b32 s43, s41, 12"); a(f"s_add_u32 s43, s43, {hex(XBUF)}")
    for t in (1, 2, 3):
        a(f"s_xor_b32 s42, s{S_KQ}, {t}"); a("s_lshl_b32 s42, s42, 3"); a("s_add_u32 s42, s42, s40")
        a(f"s_lshl_b32 s{52+t}, s42, 7")
        a("s_lshl_b32 s42, s42, 16"); a(f"s_add_u32 s{44+t}, s42, s43")
    a("s_lshl_b32 s43, s41, 3"); a(f"s_add_u32 s43, s43, {hex(XFLAG)}")
    for t in (1, 2, 3): a(f"s_add_u32 s{52+t}, s{52+t}, s43")
    SX = V_ACC
    tagged = opt.xmode != "flag"
    DPOS = [0, 1, 2, 4, 5, 6, 8, 9] if tagged else list(range(8))
    NG = 3 if tagged else 2
    tags = [f"v_mov_b32 v{SX + 16*t + p}, v{V_TAG + (1 if p == 10 else 0)}" for t in (1, 2, 3) for p in (3, 7, 10, 11)] if tagged else []
    xflag = lambda t: f"buffer_store_dwordx2 {vr(V_TAG,2)}, v{V_Z}, {srd(SRD_WS)}, s{52+t} offen sc1"
    def send(t):
        o = [f"v_cvt_pk_bf16_f32 v{SX + 16*t + DPOS[j]}, v{V_OUT+16*t+2*j}, v{V_OUT+16*t+2*j+1}" for j in range(8)]
        st = [f"buffer_store_dwordx4 {vr(SX + 16*t + 4*g, 4)}, v7, {srd(SRD_WS)}, s{44+t} offen offset:{g*1024} sc1" for g in range(NG)]
        if not tagged: return o[:4] + st[:1] + o[4:] + st[1:]
        return o[:3] + st[:1] + o[3:6] + st[1:2] + o[6:] + st[2:] + ([xflag(t)] if opt.xmode == "opt" else [])
    G = [[0, pv_m(t >> 1, t & 1, nt, PN, False), []] for t in (1, 2, 3, 0) for nt in range(4)]
    inject(G, 0, tags)
    inject(G, 6, send(1) + send(2) + send(3), cap=3)
    emitG(G)
    stamp()
    if opt.xmode == "flag":
        for t in (1, 2, 3):
            a(f"s_waitcnt vmcnt({2*(3-t) + (t-1)})"); a(xflag(t))
    a(f"s_lshl_b32 s42, s{S_KQ}, 3"); a("s_add_u32 s42, s42, s40")
    a(f"s_lshl_b32 s56, s42, 7"); a(f"s_lshl_b32 s43, s{S_WAVE}, 3"); a("s_add_u32 s56, s56, s43"); a(f"s_add_u32 s56, s56, {hex(XFLAG)}")
    a("v_and_b32 v3, 3, v0"); a("v_min_u32 v3, 2, v3"); a(f"v_add_u32 v3, s{S_KQ}, v3"); a("v_add_u32 v3, 1, v3"); a("v_and_b32 v3, 3, v3"); a("v_lshlrev_b32 v3, 5, v3")
    a("s_lshl_b32 s42, s42, 16"); a(f"s_lshl_b32 s43, s{S_WAVE}, 12"); a("s_add_u32 s42, s42, s43"); a(f"s_add_u32 s42, s42, {hex(XBUF)}")
    for j in range(3):
        a(f"s_add_u32 s43, s{S_KQ}, {j+1}"); a("s_and_b32 s43, s43, 3"); a("s_lshl_b32 s43, s43, 14"); a(f"s_add_u32 s{51+j}, s43, s42")
    a("v_lshrrev_b32 v4, 3, v0"); a("v_lshlrev_b32 v4, 12, v4"); a("v_and_b32 v5, 7, v0"); a("v_lshl_add_u32 v4, v5, 4, v4")
    a(f"s_lshr_b32 s41, s{S_KQ}, 1"); a(f"s_xor_b32 s41, s41, s{S_WAVE}"); a("s_xor_b32 s41, s41, 1"); a("s_lshl_b32 s41, s41, 17")
    a(f"s_lshl_b32 s40, s{S_RB}, 19"); a("s_add_u32 s40, s40, s41")
    a(f"s_and_b32 s41, s{S_KQ}, 1"); a("s_lshl_b32 s41, s41, 16"); a("s_add_u32 s40, s40, s41")
    a(f"s_lshl_b32 s41, s{S_BR}, 11"); a("s_add_u32 s40, s40, s41")
    a(f"s_lshl_b32 s41, s{S_IDX}, 8"); a("s_add_u32 s40, s40, s41")
    a(f"s_lshl_b32 s41, s{S_WN}, 7"); a("s_add_u32 s40, s40, s41")
    a("s_add_u32 s41, s40, 0x8000")
    a(f"s_lshl_b32 s42, s{S_WAVE}, 11"); a(f"s_add_u32 s42, s42, {SLOT}")
    a("v_and_b32 v1, 15, v0"); a("v_lshlrev_b32 v1, 7, v1"); a("v_lshrrev_b32 v2, 4, v0"); a("v_lshl_add_u32 v1, v2, 3, v1")
    a("v_add_u32 v1, s42, v1"); a("v_add_u32 v2, s42, v7")
    a(f"s_mov_b32 s44, {opt.spin}")
    flush_passes()
    if opt.verbose:
        for r in rep: print("pad", r)
    RX = V_BF
    def ld(j, g): a(f"buffer_load_dwordx4 {vr(RX + 12*j + 4*g, 4)}, v7, {srd(SRD_WS)}, s{51+j} offen offset:{g*1024} sc1")
    def chk(j, gs):
        regs = [(RX + 12*j + 4*g + 3, V_TAG) for g in gs] + ([(RX + 12*j + 10, V_TAG + 1)] if 2 in gs else [])
        for k, (r, t) in enumerate(regs): a(f"v_xor_b32 v{V_R+k}, v{r}, v{t}")
        for k in range(1, len(regs)): a(f"v_or_b32 v{V_R}, v{V_R}, v{V_R+k}")
        a(f"v_cmp_ne_u32 vcc, 0, v{V_R}")
    if opt.xmode != "tag":
        a.lab("L_xpoll")
        a(f"buffer_load_dwordx2 v[8:9], v3, {srd(SRD_WS)}, s56 offen sc1")
        a("s_sub_u32 s44, s44, 1"); a("s_cmp_eq_u32 s44, 0")
        a("s_waitcnt vmcnt(0)")
        a("s_cbranch_scc1 L_xrd")
        a(f"v_cmp_ne_u64 vcc, v[8:9], {vr(V_TAG,2)}")
        a("s_cbranch_vccnz L_xpoll")
        a.lab("L_xrd")
        stamp()
    for j in range(3):
        for g in range(NG): ld(j, g)
    for j in range(3 if tagged else 0):
        a(f"s_waitcnt vmcnt({6 - 3*j})")
        chk(j, (0, 1, 2))
        a(f"s_cbranch_vccz L_xok{j}")
        a.lab(f"L_xp{j}")
        a(f"s_sleep {opt.xsleep}")
        ld(j, 2)
        a("s_sub_u32 s44, s44, 1"); a("s_cmp_eq_u32 s44, 0")
        a("s_waitcnt vmcnt(0)")
        a(f"s_cbranch_scc1 L_xok{j}")
        chk(j, (2,))
        a(f"s_cbranch_vccnz L_xp{j}")
        ld(j, 0); ld(j, 1)
        a("s_waitcnt vmcnt(0)")
        chk(j, (0, 1))
        a(f"s_cbranch_vccnz L_xp{j}")
        a.lab(f"L_xok{j}")
    a.lab("L_xgo")
    if opt.xmode == "tag": stamp()
    for j in range(3):
        if not tagged: a(f"s_waitcnt vmcnt({4 - 2*j})")
        for i in range(8):
            r = RX + 12*j + DPOS[i]
            a(f"v_lshlrev_b32 v5, 16, v{r}"); a(f"v_and_b32 v6, 0xffff0000, v{r}")
            a(f"v_add_f32 v{V_OUT+2*i}, v{V_OUT+2*i}, v5"); a(f"v_add_f32 v{V_OUT+2*i+1}, v{V_OUT+2*i+1}, v6")
    for i in range(8): a(f"v_cvt_pk_bf16_f32 v{V_R+i}, v{V_OUT+2*i}, v{V_OUT+2*i+1}")
    for nt in range(4): a(f"ds_write_b64 v1, {vr(V_R+2*nt,2)} offset:{nt*32}")
    a(f"ds_read_b128 {vr(V_R+8,4)}, v2"); a(f"ds_read_b128 {vr(V_R+12,4)}, v2 offset:1024")
    a("s_waitcnt lgkmcnt(1)")
    a(f"buffer_store_dwordx4 {vr(V_R+8,4)}, v4, {srd(SRD_OUT)}, s40 offen {opt.outflags}")
    a("s_waitcnt lgkmcnt(0)")
    a(f"buffer_store_dwordx4 {vr(V_R+12,4)}, v4, {srd(SRD_OUT)}, s41 offen {opt.outflags}")
    a(f"s_or_b32 s40, s{S_KQ}, s{S_IDX}"); a(f"s_or_b32 s40, s40, s{S_WAVE}"); a("s_cmp_lg_u32 s40, 0"); a("s_cbranch_scc1 L_noep")
    a(f"s_lshl_b32 s40, s{S_CL}, 7")
    a(f"buffer_store_dwordx2 {vr(V_TAG,2)}, v{V_Z}, {srd(SRD_WS)}, s40 offen {opt.outflags}")
    a.lab("L_noep")
    if opt.fixdur:
        a.lab("L_fix")
        a("s_memrealtime s[92:93]"); a("s_waitcnt lgkmcnt(0)"); a("s_sub_u32 s92, s92, s98")
        a(f"s_cmp_lt_u32 s92, {opt.fixdur}"); a("s_cbranch_scc1 L_fix")
    if opt.stamps:
        a("s_waitcnt vmcnt(0)")
        stamp()
        a(f"s_cmp_lg_u32 s{S_WAVE}, 0"); a("s_cbranch_scc1 L_end2")
        a("s_waitcnt lgkmcnt(0)")
        n = nst[0]
        a(f"s_mul_i32 s40, s2, {n*8}"); a("s_add_u32 s40, s40, 0x8000000")
        a(f"s_add_u32 s42, s{SRD_WS}, s40"); a(f"s_addc_u32 s43, s{SRD_WS+1}, 0")
        for i in range(n):
            a(f"v_mov_b32 v8, s{S_ST+2*i}"); a(f"v_mov_b32 v9, s{S_ST+2*i+1}")
            a(f"global_store_dwordx2 v{V_Z}, v[8:9], s[42:43] offset:{i*8}"); a("s_nop 1")
        a.lab("L_end2")
    a("s_endpgm")
    tail = ['.section .rodata,"a"', ".p2align 6", f".amdhsa_kernel {NAME}_kernel"]
    tail += ["  .amdhsa_" + l for l in ("next_free_vgpr 256", "next_free_sgpr 102", "accum_offset 256", "group_segment_fixed_size 0", "kernarg_size 104",
              "user_sgpr_count 2", "user_sgpr_kernarg_segment_ptr 1", "system_sgpr_workgroup_id_x 1")]
    tail += [".end_amdhsa_kernel"]
    txt = "\n".join(head + [(x if x.endswith(":") else "    " + x) for x in a.L] + tail) + "\n"
    return txt, nst[0], rep

def parse(argv):
    ap = argparse.ArgumentParser()
    ap.add_argument("-o", default="cdna_kernels/" + NAME + ".s")
    for f in ("stamps", "cyc", "lstamps", "nodma", "nolds", "nomfma", "samek", "hstamps", "verbose"): ap.add_argument("--" + f, action="store_true")
    ap.add_argument("--prio", type=int, default=0)
    ap.add_argument("--spin", type=int, default=100000)
    ap.add_argument("--fixdur", type=int, default=0)
    ap.add_argument("--q0", type=int, default=2)
    ap.add_argument("--q2", type=int, default=4)
    ap.add_argument("--pl", type=int, default=0)
    ap.add_argument("--cap", type=int, default=2)
    ap.add_argument("--keeppos", type=int, default=24)
    ap.add_argument("--flagdelay", type=int, default=40)
    ap.add_argument("--p1", default="4")
    ap.add_argument("--p2", default="8")
    ap.add_argument("--p3", default="12")
    ap.add_argument("--pm", default="4")
    ap.add_argument("--vt", default="-1")
    ap.add_argument("--smbar", type=int, default=60)
    ap.add_argument("--smpost", type=int, default=0)
    ap.add_argument("--xmode", default="flag")
    ap.add_argument("--xsleep", type=int, default=1)
    ap.add_argument("--kflags", default="")
    ap.add_argument("--outflags", default="sc1")
    return ap.parse_args(argv)

if __name__ == "__main__":
    opt = parse(sys.argv[1:])
    t, n, rep = gen(opt)
    open(opt.o, "w").write(t)
    print("wrote", opt.o, "stamps", n, "lines", t.count("\n"), "pads", len(rep))
```

```python
import sys, argparse
from passes import auto_wait, hazard_fix
NAME = "concat_heads__mha_block_cached__mha_block_cached__near_ridge"

class Asm:
    def __init__(self): self.L = []; self.drop = []
    def __call__(self, s):
        for pat in self.drop:
            if pat in s: return
        self.L.append(s)
    def lab(self, s): self.L.append(s + ":")
    def c(self, s): self.L.append("; " + s)

EPOCH = 0; PFLAG = 4096; XFLAG = 65536; PBUF = 0x100000; XBUF = 0x400000; WS_REC = 0x1400000
SLOT = 32768; KSLOT = 4 * SLOT
S_BR, S_KQ, S_RB, S_IDX, S_WAVE = 3, 4, 5, 6, 7
SRD_X, SRD_K, SRD_V, SRD_WQ, SRD_WO, SRD_WS, SRD_OUT = 8, 12, 16, 20, 24, 28, 32
S_TAG = 36; S_CL = 38; S_HQ = 39
S_C = 50; S_PB = 49; S_OFFR = 47; S_OFFW = 48; S_W = 45
S_WM, S_WN = 56, 57; S_UP = 58; S_DN1 = 59; S_FL = 60; S_DN2 = 61
S_ST = 62; S_HT = 46
def srd(b): return f"s[{b}:{b+3}]"
def vr(b, n): return f"v[{b}:{b+n-1}]"
V_AR = 8; V_AW = 12; V_R = 16; V_W = 32; V_BF = 64; V_P = 96; V_TAG = 112; V_Z = 114; V_T = 115
V_ACC = 128; V_OUT = 192; V_KF = 192; V_SP = 224
MF = "v_mfma_f32_16x16x32_bf16"
def slot(n): return n % 4 if n < 16 else (n - 16) % 5

def gen(opt):
    a = Asm()
    if opt.nodma: a.drop.append(" lds")
    if opt.nolds: a.drop += ["ds_read_b128 v[1", "ds_read_b128 v[2", "ds_read_b64_tr"]
    if opt.nomfma: a.drop += ["v_mfma"]
    head = ["; Fused double MHA block: Q-proj + scores + softmax | V*Wo + P*(V*Wo) | split-K reduce-scatter (gfx950)",
            f"; @launch grid=(256,1,1) block=(512,1,1) lds={SLOT*5}",
            '.amdgcn_target "amdgcn-amd-amdhsa--gfx950"', ".text", f".globl {NAME}_kernel", ".p2align 8", f".type {NAME}_kernel,@function"]
    a.lab(f"{NAME}_kernel")
    nst = [0]
    def stamp_s():
        if not opt.stamps or nst[0] >= 20: return None
        r = S_ST + 2 * nst[0]; nst[0] += 1
        return f"{'s_memtime' if opt.cyc else 's_memrealtime'} s[{r}:{r+1}]"
    def stamp():
        if opt.pairs:
            opt.cyc = False; a(stamp_s()); opt.cyc = True; a(stamp_s()); return
        s = stamp_s()
        if s: a(s)
    stamp()
    if opt.fixdur or opt.lstamps: a("s_memrealtime s[98:99]")
    a("s_cmp_ge_u32 s2, 256"); a("s_cbranch_scc1 L_end")
    a(f"s_bfe_u32 s{S_BR}, s2, 0x10002")
    a(f"s_mul_i32 s41, s{S_BR}, 40")
    a("s_add_u32 s42, s0, s41"); a("s_addc_u32 s43, s1, 0")
    for b, o in ((SRD_X, 0), (SRD_WQ, 24), (SRD_K, 8), (SRD_V, 16), (SRD_WO, 32)): a(f"s_load_dwordx2 s[{b}:{b+1}], s[42:43], {o}")
    a(f"s_load_dwordx2 s[{SRD_WS}:{SRD_WS+1}], s[0:1], 96")
    a(f"s_load_dwordx2 s[{SRD_OUT}:{SRD_OUT+1}], s[0:1], 80")
    a("v_lshrrev_b32 v1, 6, v0"); a("v_and_b32 v0, 63, v0")
    a(f"s_and_b32 s{S_KQ}, s2, 3")
    a(f"v_readfirstlane_b32 s{S_WAVE}, v1")
    a(f"s_lshr_b32 s{S_RB}, s2, 6"); a(f"s_bfe_u32 s{S_IDX}, s2, 0x30003")
    if opt.idxx: a(f"s_xor_b32 s{S_IDX}, s{S_IDX}, {opt.idxx}")
    a(f"s_lshl_b32 s{S_CL}, s{S_BR}, 2"); a(f"s_add_u32 s{S_CL}, s{S_CL}, s{S_RB}")
    a(f"s_lshl_b32 s{S_HQ}, s{S_RB}, 1"); a(f"s_add_u32 s{S_HQ}, s{S_HQ}, s{S_IDX}")
    if opt.hqx: a(f"s_add_u32 s{S_HQ}, s{S_HQ}, {opt.hqx}")
    a(f"s_and_b32 s{S_HQ}, s{S_HQ}, 7")
    for b, n in ((SRD_X, 0x100000), (SRD_WQ, 0x800000), (SRD_K, 0x400000), (SRD_V, 0x400000), (SRD_WO, 0x800000), (SRD_WS, WS_REC), (SRD_OUT, 0x200000)):
        a(f"s_mov_b32 s{b+2}, {hex(n)}"); a(f"s_mov_b32 s{b+3}, 0x20000")
    PMS = list(map(int, opt.pm.split(",")))
    def h_table(pm):
        seq = []; r1 = [2, 4, 6]; r2 = [3, 5, 7]
        for i in range(8):
            if i == 0: seq.append(0)
            elif i == pm: seq.append(1)
            elif r1 and (i < pm or True) and (i < pm or r1): seq.append(r1.pop(0))
            else: seq.append(r2.pop(0))
        return seq
    ht = [sum(x << (4*i) for i, x in enumerate(h_table(pm))) for pm in PMS]
    a(f"s_mov_b32 s{S_HT}, {hex(ht[0])}")
    for w in range(1, len(PMS)):
        a(f"s_and_b32 s41, s{S_IDX}, {len(PMS)-1}"); a(f"s_cmp_eq_u32 s41, {w}"); a(f"s_cselect_b32 s{S_HT}, {hex(ht[w])}, s{S_HT}")
    a(f"s_mul_i32 s41, s{S_HQ}, 0x11111111"); a(f"s_add_u32 s{S_HT}, s{S_HT}, s41"); a(f"s_and_b32 s{S_HT}, s{S_HT}, 0x77777777")
    a(f"s_cmp_lt_u32 s{S_WAVE}, 4"); a("s_cbranch_scc1 L_compute")
    a(f"s_cmp_ge_u32 s{S_WAVE}, 6"); a("s_cbranch_scc1 L_aux")

    a.c("---- loader waves")
    a(f"s_sub_u32 s40, s{S_WAVE}, 4")
    a("v_lshrrev_b32 v3, 4, v0"); a("v_and_b32 v2, 15, v0")
    a("v_lshlrev_b32 v4, 2, v3"); a("v_xor_b32 v2, v2, v4"); a("v_xor_b32 v5, 2, v2")
    a("v_lshlrev_b32 v2, 4, v2"); a("v_lshlrev_b32 v5, 4, v5")
    a("s_lshl_b32 s41, s40, 2"); a("v_add_u32 v1, s41, v3")
    a("v_lshl_add_u32 v12, v1, 13, v2"); a("v_lshl_add_u32 v13, v1, 13, v5")
    a("v_lshl_add_u32 v14, v1, 11, v2"); a("v_lshl_add_u32 v15, v1, 11, v5")
    a("v_lshrrev_b32 v1, 3, v0"); a("v_and_b32 v2, 7, v0")
    a("v_add_u32 v4, s41, v3"); a("v_xor_b32 v2, v2, v4"); a("v_lshlrev_b32 v2, 4, v2")
    a("s_lshl_b32 s41, s40, 3"); a("v_add_u32 v1, s41, v1")
    a("v_lshl_add_u32 v10, v1, 11, v2"); a("v_lshl_add_u32 v11, v1, 8, v2")
    a(f"s_lshl_b32 s{S_W}, s40, 10")
    a(f"s_lshl_b32 s50, s{S_RB}, 2"); a(f"s_lshl_b32 s51, s{S_HQ}, 1"); a("s_add_u32 s50, s50, s51")
    a(f"s_lshl_b32 s52, s{S_RB}, 18")
    a(f"s_lshl_b32 s51, s{S_KQ}, 3"); a(f"s_add_u32 s51, s51, s{S_HQ}")
    a("s_lshl_b32 s53, s51, 8")
    a(f"s_lshl_b32 s56, s{S_RB}, 20"); a("s_lshl_b32 s41, s51, 13"); a("s_add_u32 s57, s56, s41")
    a(f"s_lshl_b32 s41, s{S_KQ}, 16"); a("s_add_u32 s58, s56, s41")
    a(f"s_lshl_b32 s59, s{S_KQ}, 21"); a(f"s_lshl_b32 s41, s{S_IDX}, 8"); a("s_add_u32 s59, s59, s41")
    a("v_lshlrev_b32 v16, 7, v0")
    a("s_lshl_b32 s61, s40, 18")
    if opt.lstamps: a("s_memrealtime s[92:93]")
    def lst():
        if opt.lstamps:
            a("s_memrealtime s[92:93]"); a("s_waitcnt lgkmcnt(0)"); a("s_mov_b32 m0, s94"); a("v_writelane_b32 v30, s92, m0"); a("s_add_u32 s94, s94, 1")
    def dma(vo, sr, sbase, lit, ldsoff, fl=""):
        a(f"s_add_u32 m0, s{S_W}, {ldsoff}")
        a(f"s_add_u32 s41, s{sbase}, {hex(lit)}")
        a(f"buffer_load_dwordx4 v{vo}, {srd(sr)}, s41 offen {fl} lds")
    def loader_body(P1, KAT, VT, HORD, lo, hi, prev_n):
        def prep(n):
            if n < 16:
                a(f"s_bfe_u32 s54, s{42 + (n >> 3)}, {hex(4*(n & 7) | (4 << 16))}")
                a("s_add_u32 s54, s54, s50"); a("s_and_b32 s54, s54, 15")
                if opt.samek: a("s_and_b32 s54, s54, 1")
                a(f"s_lshl_b32 s55, s54, 7"); a(f"s_add_u32 s{S_OFFR}, s52, s55")
                a(f"s_lshl_b32 s55, s54, 19"); a(f"s_add_u32 s{S_OFFW}, s53, s55")
            elif n % 2 == 0:
                a(f"s_bfe_u32 s54, s{S_HT}, {hex(4*((n - 16) >> 1) | (4 << 16))}")
                if opt.samek: a("s_mov_b32 s54, 0")
                a("s_lshl_b32 s55, s54, 13"); a(f"s_add_u32 s{S_OFFR}, s58, s55")
                a("s_lshl_b32 s55, s54, 18"); a(f"s_add_u32 s{S_OFFW}, s59, s55")
        def ops(n):
            so = slot(n) * SLOT
            X = []
            for c2, kk in enumerate(KAT):
                if kk == n: X += [("d", 11, SRD_K, 57, (m//2)*262144 + (m % 2)*4096 + c2*128, KSLOT + c2*16384 + m*2048, opt.kflags) for m in range(8)]
            if VT == n: X += [("v", 0), ("v", 1)]
            if n < 16:
                return [("d", 12 + (m & 1), SRD_WQ, S_OFFW, m*8*8192, so + 16384 + m*2048) for m in range(8)] + X + \
                       [("d", 10, SRD_X, S_OFFR, m*16*2048, so + m*2048) for m in range(8)]
            c2 = n & 1
            return [("d", 14 + (m & 1), SRD_WO, S_OFFW, m*8*2048 + c2*64*2048, so + 16384 + m*2048) for m in range(8)] + X + \
                   [("d", 11, SRD_V, S_OFFR, (m//2)*262144 + (m % 2)*4096 + c2*128, so + m*2048) for m in range(8)]
        def emit(op):
            if op[0] == "d": dma(*op[1:]); return
            a(f"s_lshl_b32 s55, s{S_HQ}, 13"); a("s_add_u32 s41, s58, s55"); a(f"s_add_u32 s41, s41, {op[1]*2*262144}"); a("s_add_u32 s41, s41, s61")
            a(f"buffer_load_dword v20, v16, {srd(SRD_V)}, s41 offen")
        for n in range(lo, hi):
            prep(n)
            if n == 0:
                a("s_waitcnt lgkmcnt(0)")
                if opt.lstamps:
                    a("v_mov_b32 v30, 0"); a("s_mov_b32 s94, 3")
                    a("v_writelane_b32 v30, s98, 0"); a("v_writelane_b32 v30, s92, 1")
                    a("s_memrealtime s[92:93]"); a("s_waitcnt lgkmcnt(0)"); a("v_writelane_b32 v30, s92, 2")
            L = ops(n)
            if n < 2: q = len(L)
            elif n == 2 or n == 3: q = min(opt.q0, len(L))
            elif n <= 20: q = 0
            else: q = min(opt.q2, len(L))
            for op in L[:q]: emit(op)
            if n >= 2:
                a(f"s_waitcnt vmcnt({prev_n + q})"); lst(); a("s_barrier")
            for op in L[q:]: emit(op)
            prev_n = len(L)
        return prev_n
    def p1_table(p1, p2, p3):
        seq = [None] * 16
        Ms = {0: 0, p1: 2, p2: 1, p3: 3}
        avail = []
        for n in range(16):
            if n in Ms:
                seq[n] = Ms[n]; avail += [(n + 1, Ms[n] + 4*j) for j in (1, 2, 3)]
            else:
                t, c = avail.pop(0); assert t <= n; seq[n] = c
        assert sorted(x % 16 for x in seq) == list(range(16))
        return seq
    def pack(seq): return sum((x & 15) << (4*i) for i, x in enumerate(seq))
    P1S = list(map(int, opt.p1.split(","))); P3S = list(map(int, opt.p3.split(","))); P2S = list(map(int, opt.p2.split(",")))
    VTS = list(map(int, opt.vt.split(",")))
    NV = len(P1S)
    KOV = tuple(map(int, opt.kat.split(","))) if opt.kat else None
    KAT = KOV or (max(P1S), max(P3S))
    if NV > 1:
        a(f"s_and_b32 s41, s{S_HQ}, {NV-1}")
        for v in range(1, NV):
            a(f"s_cmp_eq_u32 s41, {v}"); a(f"s_cbranch_scc1 L_var{v}")
    for v in range(NV):
        if v: a.lab(f"L_var{v}")
        tabs = [pack(p1_table(P1S[v], p2, P3S[v])) for p2 in P2S]
        a(f"s_mov_b32 s42, {hex(tabs[0] & 0xffffffff)}"); a(f"s_mov_b32 s43, {hex(tabs[0] >> 32)}")
        for u in range(1, len(P2S)):
            a(f"s_and_b32 s41, s2, {len(P2S)-1}"); a(f"s_cmp_eq_u32 s41, {u}")
            a(f"s_cselect_b32 s42, {hex(tabs[u] & 0xffffffff)}, s42"); a(f"s_cselect_b32 s43, {hex(tabs[u] >> 32)}, s43")
        pn = loader_body(None, KOV or (P1S[v], P3S[v]), VTS[v % len(VTS)], None, 0, 16, 0)
        assert pn == 16
        if v < NV - 1: a("s_branch L_ld2")
    a.lab("L_ld2")
    pn = loader_body(None, (-1, -1), -1, None, 16, 32, 16)
    a(f"s_waitcnt vmcnt({pn})"); lst(); a("s_barrier")
    a("s_waitcnt vmcnt(0)"); lst(); a("s_barrier")
    if opt.lstamps:
        a(f"s_cmp_lg_u32 s{S_WAVE}, 4"); a("s_cbranch_scc1 L_end")
        a("s_mul_i32 s40, s2, 512"); a("s_add_u32 s40, s40, 0x8000000")
        a(f"s_add_u32 s42, s{SRD_WS}, s40"); a(f"s_addc_u32 s43, s{SRD_WS+1}, 0")
        a("v_lshlrev_b32 v1, 3, v0"); a("v_mov_b32 v31, 0")
        a("global_store_dwordx2 v1, v[30:31], s[42:43]")
    a("s_endpgm")

    def tag_hash():
        a(f"s_mul_i32 s{S_TAG}, s{S_TAG}, 0x9e3779b1"); a(f"s_add_u32 s{S_TAG}, s{S_TAG}, 0x7f4a7c15")
        a(f"s_mul_i32 s{S_TAG+1}, s{S_TAG+1}, 0x85ebca6b"); a(f"s_add_u32 s{S_TAG+1}, s{S_TAG+1}, 0xc2b2ae35")
    GATE = 20 + opt.pl
    a.lab("L_aux")
    if opt.ctouch:
        a(f"s_cmp_eq_u32 s{S_WAVE}, 7"); a("s_cbranch_scc1 L_poller")
        a("s_getpc_b64 s[40:41]")
        a.lab("L_pc")
        a(f"s_sub_u32 s40, s40, L_pc-{NAME}_kernel"); a("s_subb_u32 s41, s41, 0")
        a("s_lshr_b32 s42, s2, 3"); a(f"s_lshl_b32 s42, s42, {7 + opt.ctouch}")
        a(f"v_and_b32 v1, {(1 << opt.ctouch) - 1}, v0"); a("v_lshlrev_b32 v1, 7, v1"); a("v_add_u32 v1, s42, v1")
        a(f"v_min_u32 v1, L_code_end-{NAME}_kernel-4, v1")
        a("global_load_dword v2, v1, s[40:41]")
        a("s_endpgm")
        a.lab("L_poller")
    else:
        a(f"s_cmp_eq_u32 s{S_WAVE}, 6"); a("s_cbranch_scc1 L_end")
    a("s_waitcnt lgkmcnt(0)")
    a(f"s_lshl_b32 s40, s{S_CL}, 7")
    a(f"s_load_dwordx2 s[{S_TAG}:{S_TAG+1}], s[{SRD_WS}:{SRD_WS+1}], s40")
    a("v_bfe_u32 v1, v0, 2, 3"); a("v_and_b32 v2, 3, v0"); a("v_lshlrev_b32 v2, 3, v2"); a("v_lshl_add_u32 v4, v1, 7, v2")
    a(f"s_lshl_b32 s40, s{S_CL}, 5"); a(f"s_lshl_b32 s41, s{S_KQ}, 3"); a("s_add_u32 s40, s40, s41")
    a("s_lshl_b32 s40, s40, 7"); a(f"s_add_u32 s43, s40, {hex(PFLAG)}")
    a("s_waitcnt lgkmcnt(0)")
    tag_hash()
    a(f"v_mov_b32 v2, s{S_TAG}"); a(f"v_mov_b32 v3, s{S_TAG+1}")
    a(f"s_mov_b32 s44, {GATE + 1}")
    a.lab("L_pb"); a("s_barrier"); a("s_sub_u32 s44, s44, 1"); a("s_cmp_lg_u32 s44, 0"); a("s_cbranch_scc1 L_pb")
    a(f"s_mov_b32 s44, {opt.spin}")
    a.lab("L_ppoll")
    a(f"buffer_load_dwordx2 v[8:9], v4, {srd(SRD_WS)}, s43 offen sc1")
    a("s_sub_u32 s44, s44, 1"); a("s_cmp_eq_u32 s44, 0"); a("s_cbranch_scc1 L_pgo")
    a("s_waitcnt vmcnt(0)")
    a("v_cmp_eq_u64 vcc, v[8:9], v[2:3]")
    a("s_cmp_eq_u64 vcc, exec"); a("s_cbranch_scc1 L_pgo")
    a("s_sleep 2"); a("s_branch L_ppoll")
    a.lab("L_pgo")
    a("s_barrier")
    a.lab("L_end")
    a("s_endpgm")

    a.lab("L_compute")
    mark = [len(a.L)]; rep = []
    def flush_passes():
        body = hazard_fix(auto_wait(a.L[mark[0]:]), report=rep)
        a.L = a.L[:mark[0]] + body
        mark[0] = len(a.L)
    if opt.prio: a(f"s_setprio {opt.prio}")
    a(f"s_lshr_b32 s{S_WM}, s{S_WAVE}, 1"); a(f"s_and_b32 s{S_WN}, s{S_WAVE}, 1")
    a("v_and_b32 v1, 15, v0"); a("v_lshrrev_b32 v2, 4, v0")
    a("v_lshrrev_b32 v3, 1, v1"); a("v_xor_b32 v4, v3, v2"); a("v_lshlrev_b32 v4, 4, v4"); a("v_lshl_add_u32 v4, v1, 7, v4")
    a(f"s_lshl_b32 s43, s{S_WAVE}, 12"); a("s_xor_b32 s42, s43, 4096")
    a(f"v_add_u32 v{V_AR}, s42, v4"); a(f"v_add_u32 v{V_AR+1}, s43, v4")
    a(f"v_xor_b32 v{V_AR+2}, 64, v{V_AR}"); a(f"v_xor_b32 v{V_AR+3}, 64, v{V_AR+1}")
    a("v_lshrrev_b32 v5, 1, v2"); a("v_xor_b32 v5, v5, v3"); a("v_lshlrev_b32 v5, 4, v5"); a("v_lshl_add_u32 v5, v1, 7, v5")
    a("v_and_b32 v6, 1, v2"); a("v_lshl_add_u32 v5, v6, 3, v5")
    a(f"s_lshl_b32 s44, s{S_WN}, 14"); a(f"s_add_u32 s44, s44, {KSLOT}")
    a("s_add_u32 s42, s42, s44"); a("s_add_u32 s43, s43, s44")
    a(f"v_add_u32 v{V_T}, s42, v5"); a(f"v_add_u32 v{V_T+1}, s43, v5")
    for bb in range(2):
        for uz in range(1, 4): a(f"v_xor_b32 v{V_T+4+3*bb+uz-1}, {32*uz}, v{V_T+bb}")
    a("v_bfe_u32 v5, v0, 2, 2"); a("v_lshl_add_u32 v4, v2, 3, v5"); a("v_lshlrev_b32 v4, 8, v4")
    a("v_and_b32 v3, 3, v0"); a("v_lshl_add_u32 v4, v3, 3, v4"); a("v_add_u32 v4, 16384, v4")
    a("v_lshlrev_b32 v5, 1, v5"); a("v_or_b32 v5, v5, v6")
    a(f"s_lshl_b32 s40, s{S_WN}, 2")
    for b in range(4):
        a(f"s_add_u32 s41, s40, {b}"); a("v_xor_b32 v3, s41, v5"); a(f"v_lshl_add_u32 v{V_AW+b}, v3, 5, v4")
    a(f"s_lshr_b32 s52, s{S_KQ}, 1"); a("s_lshl_b32 s52, s52, 12")
    a(f"s_lshl_b32 s53, s{S_KQ}, 10")
    a("v_lshlrev_b32 v7, 4, v0"); a(f"v_mov_b32 v{V_Z}, 0")
    a(f"s_mov_b32 s{S_UP}, 0x10000"); a(f"s_mov_b32 s{S_DN1}, 0xffff0000"); a(f"s_mov_b32 s{S_DN2}, 0xfffe0000"); a(f"s_mov_b32 s{S_C}, 0x3e0293ee")
    a(f"s_lshl_b32 s40, s{S_WM}, 13"); a("s_add_u32 s40, s40, s44")
    a(f"v_add_u32 v{V_T+10}, s40, v7"); a(f"v_xor_b32 v{V_T+11}, 0x4000, v{V_T+10}")
    a("s_waitcnt lgkmcnt(0)")
    a(f"s_lshl_b32 s40, s{S_CL}, 7")
    a(f"s_load_dwordx2 s[{S_TAG}:{S_TAG+1}], s[{SRD_WS}:{SRD_WS+1}], s40")
    a(f"s_lshl_b32 s40, s{S_CL}, 5"); a(f"s_lshl_b32 s41, s{S_KQ}, 3"); a("s_add_u32 s40, s40, s41")
    a(f"s_lshl_b32 s{S_PB}, s40, 13"); a(f"s_add_u32 s{S_PB}, s{S_PB}, {hex(PBUF)}")
    a(f"s_lshl_b32 s41, s{S_WAVE}, 11"); a("s_xor_b32 s42, s41, 2048")
    a(f"v_add_u32 v{V_T+2}, s42, v7"); a(f"v_add_u32 v{V_T+3}, s41, v7")
    a(f"s_add_u32 s40, s40, s{S_HQ}"); a("s_lshl_b32 s40, s40, 7"); a(f"s_lshl_b32 s41, s{S_WAVE}, 3"); a("s_add_u32 s40, s40, s41")
    a(f"s_add_u32 s{S_FL}, s40, {hex(PFLAG)}")
    a("s_waitcnt lgkmcnt(0)")
    tag_hash()
    a(f"v_mov_b32 v{V_TAG}, s{S_TAG}"); a(f"v_mov_b32 v{V_TAG+1}, s{S_TAG+1}")
    a("s_barrier")
    stamp()

    def rel(n): return (slot(n) & 1) * SLOT
    def upd(n):
        d = (slot(n + 1) >> 1) - (slot(n) >> 1)
        return {0: None, 1: S_UP, -1: S_DN1, -2: S_DN2}[d]
    def rdR(n, s, aa): return f"ds_read_b128 {vr(V_R+4*aa,4)}, v{V_AR + 2*s + (aa >> 1)} offset:{rel(n) + (aa & 1)*2048}"
    def rdW(n, s, b, z): return f"ds_read_b64_tr_b16 {vr(V_W + 16*s + 4*b + 2*z, 2)}, v{V_AW+b} offset:{rel(n) + s*8192 + z*1024}"
    WPOS = {(0,0): (0,0), (0,1): (0,1), (0,2): (1,0), (1,0): (1,1), (1,1): (2,0), (1,2): (2,1), (2,0): (3,0), (2,1): (3,1)}
    WAITPOS = {(0,0), (0,1), (0,2), (0,3), (2,0), (3,0)}
    def acc(aa, b): return vr(V_ACC + 16*aa + 4*b, 4)
    def item_gaps(n, zero, nxt, bar=True):
        G = []
        phase = 1 if n < 16 else 2
        for s in range(2):
            tk, ts = (n, 1) if s == 0 else (nxt, 0)
            for aa in range(4):
                for b in range(4):
                    post = []
                    W = vr(V_W + 16*s + 4*b, 4); R = vr(V_R + 4*aa, 4)
                    C = "0" if (zero and s == 0) else acc(aa, b)
                    m = f"{MF} {acc(aa,b)}, {W}, {R}, {C}" if phase == 1 else f"{MF} {acc(aa,b)}, {R}, {W}, {C}"
                    if tk is not None:
                        if (aa, b) in WPOS: post.append(rdW(tk, ts, *WPOS[(aa, b)]))
                        if b == 3: post.append(rdR(tk, ts, aa))
                    u = upd(n) if nxt is not None else None
                    if u is not None:
                        if s == 0 and aa == 3 and b < 3: post.append(f"v_add_u32 v{V_AW+b}, s{u}, v{V_AW+b}")
                        if s == 0 and aa == 2 and b == 2: post += [f"v_add_u32 v{V_AR}, s{u}, v{V_AR}", f"v_add_u32 v{V_AR+1}, s{u}, v{V_AR+1}"]
                        if s == 0 and aa == 3 and b == 2: post.append(f"v_add_u32 v{V_AW+3}, s{u}, v{V_AW+3}")
                        if s == 1 and aa == 3 and b < 2: post.append(f"v_add_u32 v{V_AR+2+b}, s{u}, v{V_AR+2+b}")
                    if bar and s == 0 and aa == 3 and b == 3: post.append("s_barrier")
                    G.append([1 if (aa, b) in WAITPOS else 0, m, post])
        return G
    def load_of(G, i): return len(G[i][2]) + (G[i+1][0] if i + 1 < len(G) else 0)
    def inject(G, start, opsl, cap=2, onelds=True):
        i = start
        for op in opsl:
            while i < len(G) and (load_of(G, i) >= cap or (onelds and op.startswith("ds_") and any(x.startswith("ds_") for x in G[i][2]))): i += 1
            if i >= len(G): G[-1][2].append(op); i = len(G) - 1; continue
            G[i][2].append(op)
        return i
    def emitG(G):
        for w, m, post in G:
            a(m)
            for x in post: a(x)
    kf = lambda bb, kt, u: V_KF + 16*bb + 8*kt + 4*u
    sp = lambda bb, kt, qt: V_SP + 16*bb + 8*kt + 4*qt
    kaddr = lambda bb, u, z: (V_T + bb) if (u == 0 and z == 0) else (V_T + 4 + 3*bb + 2*u + z - 1)
    kreads = [f"ds_read_b64 {vr(kf(bb,kt,u) + 2*z, 2)}, v{kaddr(bb,u,z)} offset:{kt*2048}" for bb in range(2) for kt in range(2) for u in range(2) for z in range(2)]
    qcvt = lambda aa: [f"v_cvt_pk_bf16_f32 v{V_BF+i}, v{V_ACC+2*i}, v{V_ACC+2*i+1}" for i in range(8*aa, 8*aa+8)]
    def smf(bb, Cin=None):
        r = []
        for u in range(2):
            for kt in range(2):
                for qt in range(2):
                    C = (("0" if Cin is None else vr(Cin + 8*kt + 4*qt, 4)) if u == 0 else vr(sp(bb,kt,qt), 4))
                    r.append(f"{MF} {vr(sp(bb,kt,qt),4)}, {vr(kf(bb,kt,u),4)}, {vr(V_BF + 8*(2*bb+qt) + 4*u, 4)}, {C}")
        return r

    for (aa, b) in [(x, y) for x in range(4) for y in range(4)]:
        if (aa, b) in WPOS: a(rdW(0, 0, *WPOS[(aa, b)]))
        if b == 3: a(rdR(0, 0, aa))
    kpos = max(KAT) + 1
    for n in range(16):
        G = item_gaps(n, n == 0, n + 1 if n < 15 else None, bar=(n < 15))
        if n == kpos: inject(G, 0, kreads[:8])
        if n == kpos + 1: inject(G, 0, kreads[8:])
        if n == 15:
            u = upd(15)
            inject(G, 16, [f"v_add_u32 v{r}, s{u}, v{r}" for r in list(range(V_AR, V_AR+4)) + list(range(V_AW, V_AW+4))] +
                   [f"v_xor_b32 v{r}, s52, v{r}" for r in range(V_AR, V_AR+4)] +
                   [f"v_xor_b32 v{V_T+4}, s53, v{V_T+2}", f"v_xor_b32 v{V_T+6}, s53, v{V_T+3}", f"v_xor_b32 v{V_T+5}, 0x400, v{V_T+4}", f"v_xor_b32 v{V_T+7}, 0x400, v{V_T+6}"])
            inject(G, 24, qcvt(0), cap=3); inject(G, 28, qcvt(1), cap=3)
        emitG(G)
    stamp()
    a.c("---- partial scores of the partner's batch")
    G = [[0, m, []] for m in smf(0)]
    inject(G, 0, qcvt(2) + qcvt(3))
    emitG(G)
    RXS = V_KF
    xw = [f"ds_write_b128 v{V_T+10}, {vr(V_SP + 4*j, 4)} offset:{j*1024}" for j in range(4)]
    xr = [f"ds_read_b128 {vr(RXS + 4*j, 4)}, v{V_T+11} offset:{j*1024}" for j in range(4)]
    S = lambda kt, qt, i: f"v{sp(1,kt,qt) + i}"
    sm = []
    M = [1, 3]; T = [2, 4]
    for qt in range(2):
        m = f"v{M[qt]}"
        sm += [f"v_max3_f32 {m}, {S(0,qt,0)}, {S(0,qt,1)}, {S(0,qt,2)}", f"v_max3_f32 {m}, {m}, {S(0,qt,3)}, {S(1,qt,0)}",
               f"v_max3_f32 {m}, {m}, {S(1,qt,1)}, {S(1,qt,2)}", f"v_max_f32 {m}, {m}, {S(1,qt,3)}"]
    def xl(op):
        o = []
        for sw in ("v_permlane16_swap_b32", "v_permlane32_swap_b32"):
            o += ["v_mov_b32 v2, v1", "v_mov_b32 v4, v3", f"{sw} v1, v2", f"{sw} v3, v4", f"{op} v1, v1, v2", f"{op} v3, v3, v4"]
        return o
    sm += xl("v_max_f32")
    sm += [f"v_mul_f32 v1, s{S_C}, v1", f"v_mul_f32 v3, s{S_C}, v3"]
    idx8 = [(kt, i) for kt in range(2) for i in range(4)]
    for qt in range(2):
        for kt, i in idx8: sm.append(f"v_fma_f32 {S(kt,qt,i)}, {S(kt,qt,i)}, s{S_C}, -v{M[qt]}")
    for qt in range(2):
        for kt, i in idx8: sm.append(f"v_exp_f32 {S(kt,qt,i)}, {S(kt,qt,i)}")
    for qt in range(2):
        m = f"v{M[qt]}"; t = f"v{T[qt]}"
        sm += [f"v_add_f32 {m}, {S(0,qt,0)}, {S(0,qt,1)}", f"v_add_f32 {t}, {S(0,qt,2)}, {S(0,qt,3)}",
               f"v_add_f32 {m}, {m}, {S(1,qt,0)}", f"v_add_f32 {t}, {t}, {S(1,qt,1)}",
               f"v_add_f32 {m}, {m}, {S(1,qt,2)}", f"v_add_f32 {t}, {t}, {S(1,qt,3)}", f"v_add_f32 {m}, {m}, {t}"]
    sm += xl("v_add_f32")
    sm += ["v_rcp_f32 v1, v1", "v_rcp_f32 v3, v3"]
    for qt in range(2):
        for kt, i in idx8: sm.append(f"v_mul_f32 {S(kt,qt,i)}, {S(kt,qt,i)}, v{M[qt]}")
    for qt in range(2):
        for kt in range(2):
            for h in range(2): sm.append(f"v_cvt_pk_bf16_f32 v{V_P + 4*qt + 2*kt + h}, {S(kt,qt,2*h)}, {S(kt,qt,2*h+1)}")
    sm += [f"s_lshl_b32 s40, s{S_HQ}, 13", f"s_add_u32 s40, s40, s{S_PB}",
           f"buffer_store_dwordx4 {vr(V_P,4)}, v{V_T+3}, {srd(SRD_WS)}, s40 offen sc1",
           f"buffer_store_dwordx4 {vr(V_P+4,4)}, v{V_T+3}, {srd(SRD_WS)}, s40 offen offset:1024 sc1"]
    flag_ops = ["s_waitcnt vmcnt(0)", f"buffer_store_dwordx2 {vr(V_TAG,2)}, v{V_Z}, {srd(SRD_WS)}, s{S_FL} offen sc1"]

    bf = lambda bb, nt: V_BF + 16*bb + 4*nt
    out = lambda bb, qt, nt: V_OUT + 16*(2*bb + qt) + 4*nt
    def cvt_ops(bb, nt):
        t0 = V_ACC + 16*(2*bb) + 4*nt; t1 = V_ACC + 16*(2*bb+1) + 4*nt; d = bf(bb, nt)
        return [f"v_cvt_pk_bf16_f32 v{d}, v{t0}, v{t0+1}", f"v_cvt_pk_bf16_f32 v{d+1}, v{t0+2}, v{t0+3}",
                f"v_cvt_pk_bf16_f32 v{d+2}, v{t1}, v{t1+1}", f"v_cvt_pk_bf16_f32 v{d+3}, v{t1+2}, v{t1+3}"]
    def pv_m(bb, qt, nt, P, zero):
        o = vr(out(bb,qt,nt), 4)
        return f"{MF} {o}, {vr(bf(bb,nt),4)}, {vr(P + 8*bb + 4*qt, 4)}, {'0' if zero else o}"
    def loadP(i, P):
        if opt.nopv: return []
        return [f"s_bfe_u32 s40, s{S_HT}, {hex(4*i | (4 << 16))}", "s_lshl_b32 s40, s40, 13", f"s_add_u32 s40, s40, s{S_PB}"] + \
               [f"buffer_load_dwordx4 {vr(P + 8*bb + 4*qt, 4)}, v{V_T+4+2*bb+qt}, {srd(SRD_WS)}, s40 offen sc1" for bb in range(2) for qt in range(2)]
    PN = V_W
    order = [(bb, nt) for bb in range(2) for nt in range(4)]
    def boundary(i):
        G = []
        if opt.nopv: return G
        prev = []
        for bb, nt in order:
            G.append([0, pv_m(bb, 0, nt, V_P, i == 1), prev[2:]])
            prev = cvt_ops(bb, nt)
            G.append([0, pv_m(bb, 1, nt, V_P, i == 1), prev[:2]])
        G[-1][2] += prev[2:]
        return G
    for x in xw: a(x)
    a(f"ds_write_b64 v{V_T+10}, {vr(V_TAG,2)} offset:4096")
    flush_passes()
    a(f"s_mov_b32 s44, {opt.spin}")
    a.lab("L_spoll")
    a(f"ds_read_b64 v[2:3], v{V_T+11} offset:4096")
    a("s_sub_u32 s44, s44, 1"); a("s_cmp_eq_u32 s44, 0")
    a("s_waitcnt lgkmcnt(0)")
    a("s_cbranch_scc1 L_sgo")
    a(f"v_cmp_ne_u64 vcc, v[2:3], {vr(V_TAG,2)}")
    a("s_cbranch_vccnz L_spoll")
    a.lab("L_sgo")
    mark[0] = len(a.L)
    for x in xr: a(x)
    for m in smf(1, RXS): a(m)
    nb = opt.smbar
    for x in sm[:nb]: a(x)
    a("s_barrier")
    for (aa, b) in [(x, y) for x in range(4) for y in range(4)]:
        if (aa, b) in WPOS: a(rdW(16, 0, *WPOS[(aa, b)]))
        if b == 3: a(rdR(16, 0, aa))
    npre = max(nb, len(sm) - opt.smpost)
    for x in sm[nb:npre]: a(x)
    stamp()
    G01 = item_gaps(16, True, 17) + item_gaps(17, False, 18)
    b0 = len(G01)
    cv0 = [x for bb, nt in order for x in cvt_ops(bb, nt)]
    G01[-1][2] += cv0
    G01 += item_gaps(18, True, 19) + item_gaps(19, False, 20)
    pos = inject(G01, 0, sm[npre:], cap=opt.cap)
    fp = pos + opt.flagdelay
    barp = b0 + 15 + 32*opt.pl
    assert fp <= barp, (fp, barp)
    if G01[fp][2] and G01[fp][2][-1] == "s_barrier": G01[fp][2][-1:-1] = flag_ops
    else: G01[fp][2].extend(flag_ops)
    inject(G01, barp + 1, loadP(0, V_P))
    if opt.hstamps: G01[b0-1][2].append(stamp_s())
    emitG(G01)
    if opt.hstamps: stamp()
    emitG(boundary(1))
    if opt.hstamps: stamp()
    for i in range(2, 8):
        nA, nB = 16 + 2*i, 17 + 2*i
        G = item_gaps(nA, True, nB) + item_gaps(nB, False, nB + 1 if i < 7 else None, bar=(i < 7))
        st = 16 + 32*opt.pl if not (i == 7 and opt.pl) else 32
        if i > 2 and opt.pl: st = 16
        inject(G, st, loadP(i - 1, V_P))
        if i == 7: inject(G, 48, loadP(7, PN))
        if i == 7:
            pass
        emitG(G)
        if opt.hstamps: stamp()
        emitG(boundary(i))
        if opt.hstamps: stamp()
    a(f"s_lshl_b32 s40, s{S_CL}, 5"); a(f"s_add_u32 s40, s40, s{S_IDX}")
    a(f"s_lshl_b32 s41, s{S_KQ}, 2"); a(f"s_add_u32 s41, s41, s{S_WAVE}")
    a("s_lshl_b32 s43, s41, 12"); a(f"s_add_u32 s43, s43, {hex(XBUF)}")
    for t in (1, 2, 3):
        a(f"s_xor_b32 s42, s{S_KQ}, {t}"); a("s_lshl_b32 s42, s42, 3"); a("s_add_u32 s42, s42, s40")
        a(f"s_lshl_b32 s{52+t}, s42, 7")
        a("s_lshl_b32 s42, s42, 16"); a(f"s_add_u32 s{44+t}, s42, s43")
    a("s_lshl_b32 s43, s41, 3"); a(f"s_add_u32 s43, s43, {hex(XFLAG)}")
    for t in (1, 2, 3): a(f"s_add_u32 s{52+t}, s{52+t}, s43")
    SX = V_ACC
    tagged = opt.xmode != "flag"
    DPOS = [0, 1, 2, 4, 5, 6, 8, 9] if tagged else list(range(8))
    NG = 3 if tagged else 2
    tags = [f"v_mov_b32 v{SX + 16*t + p}, v{V_TAG + (1 if p == 10 else 0)}" for t in (1, 2, 3) for p in (3, 7, 10, 11)] if tagged else []
    xflag = lambda t: f"buffer_store_dwordx2 {vr(V_TAG,2)}, v{V_Z}, {srd(SRD_WS)}, s{52+t} offen sc1"
    def send(t):
        o = [f"v_cvt_pk_bf16_f32 v{SX + 16*t + DPOS[j]}, v{V_OUT+16*t+2*j}, v{V_OUT+16*t+2*j+1}" for j in range(8)]
        st = [f"buffer_store_dwordx4 {vr(SX + 16*t + 4*g, 4)}, v7, {srd(SRD_WS)}, s{44+t} offen offset:{g*1024} sc1" for g in range(NG)]
        if not tagged: return o[:4] + st[:1] + o[4:] + st[1:]
        return o[:3] + st[:1] + o[3:6] + st[1:2] + o[6:] + st[2:] + ([xflag(t)] if opt.xmode == "opt" else [])
    G = [[0, pv_m(t >> 1, t & 1, nt, PN, False), []] for t in (1, 2, 3, 0) for nt in range(4)]
    inject(G, 0, tags)
    inject(G, 6, send(1) + send(2) + send(3), cap=3)
    emitG(G)
    stamp()
    if opt.xmode == "flag":
        for t in (1, 2, 3):
            a(f"s_waitcnt vmcnt({2*(3-t) + (t-1)})"); a(xflag(t))
    a(f"s_lshl_b32 s42, s{S_KQ}, 3"); a("s_add_u32 s42, s42, s40")
    a(f"s_lshl_b32 s56, s42, 7"); a(f"s_lshl_b32 s43, s{S_WAVE}, 3"); a("s_add_u32 s56, s56, s43"); a(f"s_add_u32 s56, s56, {hex(XFLAG)}")
    a("v_and_b32 v3, 3, v0"); a("v_min_u32 v3, 2, v3"); a(f"v_add_u32 v3, s{S_KQ}, v3"); a("v_add_u32 v3, 1, v3"); a("v_and_b32 v3, 3, v3"); a("v_lshlrev_b32 v3, 5, v3")
    a("s_lshl_b32 s42, s42, 16"); a(f"s_lshl_b32 s43, s{S_WAVE}, 12"); a("s_add_u32 s42, s42, s43"); a(f"s_add_u32 s42, s42, {hex(XBUF)}")
    for j in range(3):
        a(f"s_add_u32 s43, s{S_KQ}, {j+1}"); a("s_and_b32 s43, s43, 3"); a("s_lshl_b32 s43, s43, 14"); a(f"s_add_u32 s{51+j}, s43, s42")
    a("v_lshrrev_b32 v4, 3, v0"); a("v_lshlrev_b32 v4, 12, v4"); a("v_and_b32 v5, 7, v0"); a("v_lshl_add_u32 v4, v5, 4, v4")
    a(f"s_lshr_b32 s41, s{S_KQ}, 1"); a(f"s_xor_b32 s41, s41, s{S_WAVE}"); a("s_xor_b32 s41, s41, 1"); a("s_lshl_b32 s41, s41, 17")
    a(f"s_lshl_b32 s40, s{S_RB}, 19"); a("s_add_u32 s40, s40, s41")
    a(f"s_and_b32 s41, s{S_KQ}, 1"); a("s_lshl_b32 s41, s41, 16"); a("s_add_u32 s40, s40, s41")
    a(f"s_lshl_b32 s41, s{S_BR}, 11"); a("s_add_u32 s40, s40, s41")
    a(f"s_lshl_b32 s41, s{S_IDX}, 8"); a("s_add_u32 s40, s40, s41")
    a(f"s_lshl_b32 s41, s{S_WN}, 7"); a("s_add_u32 s40, s40, s41")
    a("s_add_u32 s41, s40, 0x8000")
    a(f"s_lshl_b32 s42, s{S_WAVE}, 11"); a(f"s_add_u32 s42, s42, {SLOT}")
    a("v_and_b32 v1, 15, v0"); a("v_lshrrev_b32 v2, 5, v0"); a("v_and_b32 v5, 7, v0"); a("v_xor_b32 v2, v2, v5"); a("v_lshlrev_b32 v2, 4, v2")
    a("v_lshl_add_u32 v1, v1, 7, v2"); a("v_bfe_u32 v2, v0, 4, 1"); a("v_lshl_add_u32 v1, v2, 3, v1"); a("v_add_u32 v1, s42, v1")
    for nt in range(1, 4): a(f"v_xor_b32 v{9+nt}, {32*nt}, v1")
    a("v_lshrrev_b32 v2, 3, v0"); a("v_xor_b32 v5, v5, v2"); a("v_lshlrev_b32 v5, 4, v5"); a("v_lshl_add_u32 v2, v2, 7, v5"); a("v_add_u32 v2, s42, v2")
    a(f"s_mov_b32 s44, {opt.spin}")
    flush_passes()
    if opt.verbose:
        for r in rep: print("pad", r)
    RX = V_BF
    def ld(j, g): a(f"buffer_load_dwordx4 {vr(RX + 12*j + 4*g, 4)}, v7, {srd(SRD_WS)}, s{51+j} offen offset:{g*1024} sc1")
    def chk(j, gs):
        regs = [(RX + 12*j + 4*g + 3, V_TAG) for g in gs] + ([(RX + 12*j + 10, V_TAG + 1)] if 2 in gs else [])
        for k, (r, t) in enumerate(regs): a(f"v_xor_b32 v{V_R+k}, v{r}, v{t}")
        for k in range(1, len(regs)): a(f"v_or_b32 v{V_R}, v{V_R}, v{V_R+k}")
        a(f"v_cmp_ne_u32 vcc, 0, v{V_R}")
    if opt.xmode != "tag":
        a.lab("L_xpoll")
        a(f"buffer_load_dwordx2 v[8:9], v3, {srd(SRD_WS)}, s56 offen sc1")
        a("s_sub_u32 s44, s44, 1"); a("s_cmp_eq_u32 s44, 0")
        a("s_waitcnt vmcnt(0)")
        a("s_cbranch_scc1 L_xrd")
        a(f"v_cmp_ne_u64 vcc, v[8:9], {vr(V_TAG,2)}")
        a("s_cbranch_vccnz L_xpoll")
        a.lab("L_xrd")
        stamp()
    for j in range(3):
        for g in range(NG): ld(j, g)
    for j in range(3 if tagged else 0):
        a(f"s_waitcnt vmcnt({6 - 3*j})")
        chk(j, (0, 1, 2))
        a(f"s_cbranch_vccz L_xok{j}")
        a.lab(f"L_xp{j}")
        a(f"s_sleep {opt.xsleep}")
        ld(j, 2)
        a("s_sub_u32 s44, s44, 1"); a("s_cmp_eq_u32 s44, 0")
        a("s_waitcnt vmcnt(0)")
        a(f"s_cbranch_scc1 L_xok{j}")
        chk(j, (2,))
        a(f"s_cbranch_vccnz L_xp{j}")
        ld(j, 0); ld(j, 1)
        a("s_waitcnt vmcnt(0)")
        chk(j, (0, 1))
        a(f"s_cbranch_vccnz L_xp{j}")
        a.lab(f"L_xok{j}")
    a.lab("L_xgo")
    if opt.xmode == "tag": stamp()
    for j in range(3):
        if not tagged: a(f"s_waitcnt vmcnt({4 - 2*j})")
        for i in range(8):
            r = RX + 12*j + DPOS[i]
            a(f"v_lshlrev_b32 v5, 16, v{r}"); a(f"v_and_b32 v6, 0xffff0000, v{r}")
            a(f"v_add_f32 v{V_OUT+2*i}, v{V_OUT+2*i}, v5"); a(f"v_add_f32 v{V_OUT+2*i+1}, v{V_OUT+2*i+1}, v6")
    for i in range(8): a(f"v_cvt_pk_bf16_f32 v{V_R+i}, v{V_OUT+2*i}, v{V_OUT+2*i+1}")
    for nt in range(4): a(f"ds_write_b64 v{9+nt if nt else 1}, {vr(V_R+2*nt,2)}")
    a(f"ds_read_b128 {vr(V_R+8,4)}, v2"); a(f"ds_read_b128 {vr(V_R+12,4)}, v2 offset:1024")
    a("s_waitcnt lgkmcnt(1)")
    a(f"buffer_store_dwordx4 {vr(V_R+8,4)}, v4, {srd(SRD_OUT)}, s40 offen {opt.outflags}")
    a("s_waitcnt lgkmcnt(0)")
    a(f"buffer_store_dwordx4 {vr(V_R+12,4)}, v4, {srd(SRD_OUT)}, s41 offen {opt.outflags}")
    a(f"s_or_b32 s40, s{S_KQ}, s{S_IDX}"); a(f"s_or_b32 s40, s40, s{S_WAVE}"); a("s_cmp_lg_u32 s40, 0"); a("s_cbranch_scc1 L_noep")
    a(f"s_lshl_b32 s40, s{S_CL}, 7")
    a(f"buffer_store_dwordx2 {vr(V_TAG,2)}, v{V_Z}, {srd(SRD_WS)}, s40 offen {opt.outflags}")
    a.lab("L_noep")
    if opt.fixdur:
        a.lab("L_fix")
        a("s_memrealtime s[92:93]"); a("s_waitcnt lgkmcnt(0)"); a("s_sub_u32 s92, s92, s98")
        a(f"s_cmp_lt_u32 s92, {opt.fixdur}"); a("s_cbranch_scc1 L_fix")
    if opt.stamps:
        a("s_waitcnt vmcnt(0)")
        stamp()
        a(f"s_cmp_lg_u32 s{S_WAVE}, 0"); a("s_cbranch_scc1 L_end2")
        a("s_waitcnt lgkmcnt(0)")
        n = nst[0]
        a(f"s_mul_i32 s40, s2, {n*8}"); a("s_add_u32 s40, s40, 0x8000000")
        a(f"s_add_u32 s42, s{SRD_WS}, s40"); a(f"s_addc_u32 s43, s{SRD_WS+1}, 0")
        for i in range(n):
            a(f"v_mov_b32 v8, s{S_ST+2*i}"); a(f"v_mov_b32 v9, s{S_ST+2*i+1}")
            a(f"global_store_dwordx2 v{V_Z}, v[8:9], s[42:43] offset:{i*8}"); a("s_nop 1")
        a.lab("L_end2")
    a("s_endpgm")
    a.lab("L_code_end")
    tail = ['.section .rodata,"a"', ".p2align 6", f".amdhsa_kernel {NAME}_kernel"]
    tail += ["  .amdhsa_" + l for l in ("next_free_vgpr 256", "next_free_sgpr 102", "accum_offset 256", "group_segment_fixed_size 0", "kernarg_size 104",
              "user_sgpr_count 2", "user_sgpr_kernarg_segment_ptr 1", "system_sgpr_workgroup_id_x 1")]
    tail += [".end_amdhsa_kernel"]
    txt = "\n".join(head + [(x if x.endswith(":") else "    " + x) for x in a.L] + tail) + "\n"
    return txt, nst[0], rep

def parse(argv):
    ap = argparse.ArgumentParser()
    ap.add_argument("-o", default="cdna_kernels/" + NAME + ".s")
    for f in ("stamps", "cyc", "lstamps", "nodma", "nolds", "nomfma", "samek", "hstamps", "verbose", "pairs", "nopv"): ap.add_argument("--" + f, action="store_true")
    ap.add_argument("--prio", type=int, default=0)
    ap.add_argument("--spin", type=int, default=100000)
    ap.add_argument("--fixdur", type=int, default=0)
    ap.add_argument("--q0", type=int, default=2)
    ap.add_argument("--q2", type=int, default=4)
    ap.add_argument("--pl", type=int, default=0)
    ap.add_argument("--cap", type=int, default=2)
    ap.add_argument("--keeppos", type=int, default=24)
    ap.add_argument("--flagdelay", type=int, default=40)
    ap.add_argument("--p1", default="4")
    ap.add_argument("--p2", default="8")
    ap.add_argument("--p3", default="12")
    ap.add_argument("--pm", default="4")
    ap.add_argument("--vt", default="-1")
    ap.add_argument("--smbar", type=int, default=60)
    ap.add_argument("--smpost", type=int, default=0)
    ap.add_argument("--xmode", default="flag")
    ap.add_argument("--ctouch", type=int, default=0)
    ap.add_argument("--idxx", type=int, default=0)
    ap.add_argument("--hqx", type=int, default=0)
    ap.add_argument("--kat", default="")
    ap.add_argument("--xsleep", type=int, default=1)
    ap.add_argument("--kflags", default="")
    ap.add_argument("--outflags", default="sc1")
    return ap.parse_args(argv)

if __name__ == "__main__":
    opt = parse(sys.argv[1:])
    t, n, rep = gen(opt)
    open(opt.o, "w").write(t)
    print("wrote", opt.o, "stamps", n, "lines", t.count("\n"), "pads", len(rep))
```

```python
import sys, argparse
from passes import auto_wait, hazard_fix
NAME = "concat_heads__mha_block_cached__mha_block_cached__near_ridge"

class Asm:
    def __init__(self): self.L = []; self.drop = []
    def __call__(self, s):
        for pat in self.drop:
            if pat in s: return
        self.L.append(s)
    def lab(self, s): self.L.append(s + ":")
    def c(self, s): self.L.append("; " + s)

EPOCH = 0; PFLAG = 4096; XFLAG = 65536; PBUF = 0x100000; XBUF = 0x400000; WS_REC = 0x1400000
SLOT = 32768; KSLOT = 4 * SLOT
S_BR, S_KQ, S_RB, S_IDX, S_WAVE = 3, 4, 5, 6, 7
SRD_X, SRD_K, SRD_V, SRD_WQ, SRD_WO, SRD_WS, SRD_OUT = 8, 12, 16, 20, 24, 28, 32
S_TAG = 36; S_CL = 38; S_HQ = 39
S_C = 50; S_PB = 49; S_OFFR = 47; S_OFFW = 48; S_W = 45
S_WM, S_WN = 56, 57; S_UP = 58; S_DN1 = 59; S_FL = 60; S_DN2 = 61
S_ST = 62; S_HT = 46
def srd(b): return f"s[{b}:{b+3}]"
def vr(b, n): return f"v[{b}:{b+n-1}]"
V_AR = 8; V_AW = 12; V_R = 16; V_W = 32; V_BF = 64; V_P = 96; V_TAG = 112; V_Z = 114; V_T = 115
V_ACC = 128; V_OUT = 192; V_KF = 192; V_SP = 224
MF = "v_mfma_f32_16x16x32_bf16"
def slot(n): return n % 4 if n < 16 else (n - 16) % 5

def gen(opt):
    a = Asm()
    if opt.nodma: a.drop.append(" lds")
    if opt.nolds: a.drop += ["ds_read_b128 v[1", "ds_read_b128 v[2", "ds_read_b64_tr"]
    if opt.nomfma: a.drop += ["v_mfma"]
    head = ["; Fused double MHA block: Q-proj + scores + softmax | V*Wo + P*(V*Wo) | split-K reduce-scatter (gfx950)",
            f"; @launch grid=(256,1,1) block=(512,1,1) lds={SLOT*5}",
            '.amdgcn_target "amdgcn-amd-amdhsa--gfx950"', ".text", f".globl {NAME}_kernel", ".p2align 8", f".type {NAME}_kernel,@function"]
    a.lab(f"{NAME}_kernel")
    nst = [0]
    def stamp_s():
        if not opt.stamps or nst[0] >= 20: return None
        r = S_ST + 2 * nst[0]; nst[0] += 1
        return f"{'s_memtime' if opt.cyc else 's_memrealtime'} s[{r}:{r+1}]"
    def stamp():
        if opt.pairs:
            opt.cyc = False; a(stamp_s()); opt.cyc = True; a(stamp_s()); return
        s = stamp_s()
        if s: a(s)
    stamp()
    if opt.fixdur or opt.lstamps: a("s_memrealtime s[98:99]")
    a("s_cmp_ge_u32 s2, 256"); a("s_cbranch_scc1 L_end")
    a(f"s_bfe_u32 s{S_BR}, s2, 0x10002")
    a(f"s_mul_i32 s41, s{S_BR}, 40")
    a("s_add_u32 s42, s0, s41"); a("s_addc_u32 s43, s1, 0")
    for b, o in ((SRD_X, 0), (SRD_WQ, 24), (SRD_K, 8), (SRD_V, 16), (SRD_WO, 32)): a(f"s_load_dwordx2 s[{b}:{b+1}], s[42:43], {o}")
    a(f"s_load_dwordx2 s[{SRD_WS}:{SRD_WS+1}], s[0:1], 96")
    a(f"s_load_dwordx2 s[{SRD_OUT}:{SRD_OUT+1}], s[0:1], 80")
    a("v_lshrrev_b32 v1, 6, v0"); a("v_and_b32 v0, 63, v0")
    a(f"s_and_b32 s{S_KQ}, s2, 3")
    a(f"v_readfirstlane_b32 s{S_WAVE}, v1")
    a(f"s_lshr_b32 s{S_RB}, s2, 6"); a(f"s_bfe_u32 s{S_IDX}, s2, 0x30003")
    if opt.idxx: a(f"s_xor_b32 s{S_IDX}, s{S_IDX}, {opt.idxx}")
    a(f"s_lshl_b32 s{S_CL}, s{S_BR}, 2"); a(f"s_add_u32 s{S_CL}, s{S_CL}, s{S_RB}")
    a(f"s_lshl_b32 s{S_HQ}, s{S_RB}, 1"); a(f"s_add_u32 s{S_HQ}, s{S_HQ}, s{S_IDX}")
    if opt.hqx: a(f"s_add_u32 s{S_HQ}, s{S_HQ}, {opt.hqx}")
    a(f"s_and_b32 s{S_HQ}, s{S_HQ}, 7")
    for b, n in ((SRD_X, 0x100000), (SRD_WQ, 0x800000), (SRD_K, 0x400000), (SRD_V, 0x400000), (SRD_WO, 0x800000), (SRD_WS, WS_REC), (SRD_OUT, 0x200000)):
        a(f"s_mov_b32 s{b+2}, {hex(n)}"); a(f"s_mov_b32 s{b+3}, 0x20000")
    PMS = list(map(int, opt.pm.split(",")))
    def h_table(pm):
        seq = []; r1 = [2, 4, 6]; r2 = [3, 5, 7]
        for i in range(8):
            if i == 0: seq.append(0)
            elif i == pm: seq.append(1)
            elif r1 and (i < pm or True) and (i < pm or r1): seq.append(r1.pop(0))
            else: seq.append(r2.pop(0))
        return seq
    ht = [sum(x << (4*i) for i, x in enumerate(h_table(pm))) for pm in PMS]
    a(f"s_mov_b32 s{S_HT}, {hex(ht[0])}")
    for w in range(1, len(PMS)):
        a(f"s_and_b32 s41, s{S_IDX}, {len(PMS)-1}"); a(f"s_cmp_eq_u32 s41, {w}"); a(f"s_cselect_b32 s{S_HT}, {hex(ht[w])}, s{S_HT}")
    a(f"s_mul_i32 s41, s{S_HQ}, 0x11111111"); a(f"s_add_u32 s{S_HT}, s{S_HT}, s41"); a(f"s_and_b32 s{S_HT}, s{S_HT}, 0x77777777")
    a(f"s_cmp_lt_u32 s{S_WAVE}, 4"); a("s_cbranch_scc1 L_compute")
    a(f"s_cmp_ge_u32 s{S_WAVE}, 6"); a("s_cbranch_scc1 L_aux")

    a.c("---- loader waves")
    a(f"s_sub_u32 s40, s{S_WAVE}, 4")
    a("v_lshrrev_b32 v3, 4, v0"); a("v_and_b32 v2, 15, v0")
    a("v_lshlrev_b32 v4, 2, v3"); a("v_xor_b32 v2, v2, v4"); a("v_xor_b32 v5, 2, v2")
    a("v_lshlrev_b32 v2, 4, v2"); a("v_lshlrev_b32 v5, 4, v5")
    a("s_lshl_b32 s41, s40, 2"); a("v_add_u32 v1, s41, v3")
    a("v_lshl_add_u32 v12, v1, 13, v2"); a("v_lshl_add_u32 v13, v1, 13, v5")
    a("v_lshl_add_u32 v14, v1, 11, v2"); a("v_lshl_add_u32 v15, v1, 11, v5")
    if opt.wox:
        a(f"s_xor_b32 s42, s{S_IDX}, {opt.wox}"); a(f"s_sub_u32 s42, s42, s{S_IDX}"); a("s_lshl_b32 s42, s42, 8")
        a("v_bfe_u32 v6, v2, 7, 1"); a("v_mul_lo_u32 v6, v6, s42"); a(f"s_lshl_b32 s42, s{S_IDX}, 8"); a("v_add_u32 v6, s42, v6")
        a("v_add_u32 v14, v14, v6"); a("v_add_u32 v15, v15, v6")
    a("v_lshrrev_b32 v1, 3, v0"); a("v_and_b32 v2, 7, v0")
    a("v_add_u32 v4, s41, v3"); a("v_xor_b32 v2, v2, v4"); a("v_lshlrev_b32 v2, 4, v2")
    a("s_lshl_b32 s41, s40, 3"); a("v_add_u32 v1, s41, v1")
    a("v_lshl_add_u32 v10, v1, 11, v2"); a("v_lshl_add_u32 v11, v1, 8, v2")
    a(f"s_lshl_b32 s{S_W}, s40, 10")
    a(f"s_lshl_b32 s50, s{S_RB}, 2"); a(f"s_lshl_b32 s51, s{S_HQ}, 1"); a("s_add_u32 s50, s50, s51")
    a(f"s_lshl_b32 s52, s{S_RB}, 18")
    a(f"s_lshl_b32 s51, s{S_KQ}, 3"); a(f"s_add_u32 s51, s51, s{S_HQ}")
    a("s_lshl_b32 s53, s51, 8")
    a(f"s_lshl_b32 s56, s{S_RB}, 20"); a("s_lshl_b32 s41, s51, 13"); a("s_add_u32 s57, s56, s41")
    a(f"s_lshl_b32 s41, s{S_KQ}, 16"); a("s_add_u32 s58, s56, s41")
    a(f"s_lshl_b32 s59, s{S_KQ}, 21")
    if not opt.wox: a(f"s_lshl_b32 s41, s{S_IDX}, 8"); a("s_add_u32 s59, s59, s41")
    a("v_lshlrev_b32 v16, 7, v0")
    a("s_lshl_b32 s61, s40, 18")
    a("v_lshlrev_b32 v17, 11, v0")
    a("s_add_u32 s60, s50, 1"); a("s_and_b32 s60, s60, 15"); a("s_lshl_b32 s60, s60, 7"); a("s_lshl_b32 s41, s40, 17"); a("s_add_u32 s60, s60, s41")
    if opt.lstamps: a("s_memrealtime s[92:93]")
    def lst():
        if opt.lstamps:
            a("s_memrealtime s[92:93]"); a("s_waitcnt lgkmcnt(0)"); a("s_mov_b32 m0, s94"); a("v_writelane_b32 v30, s92, m0"); a("s_add_u32 s94, s94, 1")
    def dma(vo, sr, sbase, lit, ldsoff, fl=""):
        a(f"s_add_u32 m0, s{S_W}, {ldsoff}")
        a(f"s_add_u32 s41, s{sbase}, {hex(lit)}")
        a(f"buffer_load_dwordx4 v{vo}, {srd(sr)}, s41 offen {fl} lds")
    def loader_body(P1, KAT, VT, HORD, lo, hi, prev_n):
        def prep(n):
            if n < 16:
                a(f"s_bfe_u32 s54, s{42 + (n >> 3)}, {hex(4*(n & 7) | (4 << 16))}")
                a("s_add_u32 s54, s54, s50"); a("s_and_b32 s54, s54, 15")
                if opt.samek: a("s_and_b32 s54, s54, 1")
                a(f"s_lshl_b32 s55, s54, 7"); a(f"s_add_u32 s{S_OFFR}, s52, s55")
                a(f"s_lshl_b32 s55, s54, 19"); a(f"s_add_u32 s{S_OFFW}, s53, s55")
            elif n % 2 == 0:
                a(f"s_bfe_u32 s54, s{S_HT}, {hex(4*((n - 16) >> 1) | (4 << 16))}")
                if opt.samek: a("s_mov_b32 s54, 0")
                a("s_lshl_b32 s55, s54, 13"); a(f"s_add_u32 s{S_OFFR}, s58, s55")
                a("s_lshl_b32 s55, s54, 18"); a(f"s_add_u32 s{S_OFFW}, s59, s55")
        def ops(n):
            so = slot(n) * SLOT
            X = []
            for c2, kk in enumerate(KAT):
                if kk == n and opt.kbyb: X += [("d", 11, SRD_K, 57, (m//2)*262144 + (m % 2)*4096 + h*128, KSLOT + h*16384 + m*2048, opt.kflags) for m in range(4*c2, 4*c2+4) for h in range(2)]
                elif kk == n: X += [("d", 11, SRD_K, 57, (m//2)*262144 + (m % 2)*4096 + c2*128, KSLOT + c2*16384 + m*2048, opt.kflags) for m in range(8)]
            if n == opt.xt: X += [("x",)]
            if VT == n: X += [("v", 0), ("v", 1)]
            if n < 16:
                return [("d", 12 + (m & 1), SRD_WQ, S_OFFW, m*8*8192, so + 16384 + m*2048) for m in range(8)] + X + \
                       [("d", 10, SRD_X, S_OFFR, m*16*2048, so + m*2048) for m in range(8)]
            c2 = n & 1
            return [("d", 14 + (m & 1), SRD_WO, S_OFFW, m*8*2048 + c2*64*2048, so + 16384 + m*2048) for m in range(8)] + X + \
                   [("d", 11, SRD_V, S_OFFR, (m//2)*262144 + (m % 2)*4096 + c2*128, so + m*2048) for m in range(8)]
        def emit(op):
            if op[0] == "d": dma(*op[1:]); return
            if op[0] == "x":
                a("s_add_u32 s41, s52, s60"); a(f"buffer_load_dword v20, v17, {srd(SRD_X)}, s41 offen"); return
            a(f"s_lshl_b32 s55, s{S_HQ}, 13"); a("s_add_u32 s41, s58, s55"); a(f"s_add_u32 s41, s41, {op[1]*2*262144}"); a("s_add_u32 s41, s41, s61")
            a(f"buffer_load_dword v20, v16, {srd(SRD_V)}, s41 offen")
        for n in range(lo, hi):
            prep(n)
            if n == 0:
                a("s_waitcnt lgkmcnt(0)")
                if opt.lstamps:
                    a("v_mov_b32 v30, 0"); a("s_mov_b32 s94, 3")
                    a("v_writelane_b32 v30, s98, 0"); a("v_writelane_b32 v30, s92, 1")
                    a("s_memrealtime s[92:93]"); a("s_waitcnt lgkmcnt(0)"); a("v_writelane_b32 v30, s92, 2")
            L = ops(n)
            if n < 2: q = len(L)
            elif n == 2 or n == 3: q = min(opt.q0, len(L))
            elif n <= 20: q = 0
            else: q = min(opt.q2, len(L))
            for op in L[:q]: emit(op)
            if n >= 2:
                a(f"s_waitcnt vmcnt({prev_n + q})"); lst(); a("s_barrier")
            for op in L[q:]: emit(op)
            prev_n = len(L)
        return prev_n
    def p1_table(p1, p2, p3):
        seq = [None] * 16
        Ms = {0: 0, p1: 2, p2: 1, p3: 3}
        avail = []
        for n in range(16):
            if n in Ms:
                seq[n] = Ms[n]; avail += [(n + 1, Ms[n] + 4*j) for j in (1, 2, 3)]
            else:
                t, c = avail.pop(0); assert t <= n; seq[n] = c
        assert sorted(x % 16 for x in seq) == list(range(16))
        return seq
    def pack(seq): return sum((x & 15) << (4*i) for i, x in enumerate(seq))
    P1S = list(map(int, opt.p1.split(","))); P3S = list(map(int, opt.p3.split(","))); P2S = list(map(int, opt.p2.split(",")))
    VTS = list(map(int, opt.vt.split(",")))
    NV = len(P1S)
    KOV = tuple(map(int, opt.kat.split(","))) if opt.kat else None
    KAT = KOV or (max(P1S), max(P3S))
    if NV > 1:
        a(f"s_and_b32 s41, s{S_HQ}, {NV-1}")
        for v in range(1, NV):
            a(f"s_cmp_eq_u32 s41, {v}"); a(f"s_cbranch_scc1 L_var{v}")
    for v in range(NV):
        if v: a.lab(f"L_var{v}")
        tabs = [pack(p1_table(P1S[v], p2, P3S[v])) for p2 in P2S]
        a(f"s_mov_b32 s42, {hex(tabs[0] & 0xffffffff)}"); a(f"s_mov_b32 s43, {hex(tabs[0] >> 32)}")
        for u in range(1, len(P2S)):
            a(f"s_and_b32 s41, s2, {len(P2S)-1}"); a(f"s_cmp_eq_u32 s41, {u}")
            a(f"s_cselect_b32 s42, {hex(tabs[u] & 0xffffffff)}, s42"); a(f"s_cselect_b32 s43, {hex(tabs[u] >> 32)}, s43")
        pn = loader_body(None, KOV or (P1S[v], P3S[v]), VTS[v % len(VTS)], None, 0, 16, 0)
        assert pn == 16
        if v < NV - 1: a("s_branch L_ld2")
    a.lab("L_ld2")
    pn = loader_body(None, (-1, -1), -1, None, 16, 32, 16)
    a(f"s_waitcnt vmcnt({pn})"); lst(); a("s_barrier")
    a("s_waitcnt vmcnt(0)"); lst(); a("s_barrier")
    if opt.lstamps:
        a(f"s_cmp_lg_u32 s{S_WAVE}, 4"); a("s_cbranch_scc1 L_end")
        a("s_mul_i32 s40, s2, 512"); a("s_add_u32 s40, s40, 0x8000000")
        a(f"s_add_u32 s42, s{SRD_WS}, s40"); a(f"s_addc_u32 s43, s{SRD_WS+1}, 0")
        a("v_lshlrev_b32 v1, 3, v0"); a("v_mov_b32 v31, 0")
        a("global_store_dwordx2 v1, v[30:31], s[42:43]")
    a("s_endpgm")

    def tag_hash():
        a(f"s_mul_i32 s{S_TAG}, s{S_TAG}, 0x9e3779b1"); a(f"s_add_u32 s{S_TAG}, s{S_TAG}, 0x7f4a7c15")
        a(f"s_mul_i32 s{S_TAG+1}, s{S_TAG+1}, 0x85ebca6b"); a(f"s_add_u32 s{S_TAG+1}, s{S_TAG+1}, 0xc2b2ae35")
    GATE = 20 + opt.pl
    a.lab("L_aux")
    if opt.ctouch:
        a(f"s_cmp_eq_u32 s{S_WAVE}, 7"); a("s_cbranch_scc1 L_poller")
        a("s_getpc_b64 s[40:41]")
        a.lab("L_pc")
        a(f"s_sub_u32 s40, s40, L_pc-{NAME}_kernel"); a("s_subb_u32 s41, s41, 0")
        a("s_lshr_b32 s42, s2, 3"); a(f"s_lshl_b32 s42, s42, {7 + opt.ctouch}")
        a(f"v_and_b32 v1, {(1 << opt.ctouch) - 1}, v0"); a("v_lshlrev_b32 v1, 7, v1"); a("v_add_u32 v1, s42, v1")
        a(f"v_min_u32 v1, L_code_end-{NAME}_kernel-4, v1")
        a("global_load_dword v2, v1, s[40:41]")
        a("s_endpgm")
        a.lab("L_poller")
    else:
        a(f"s_cmp_eq_u32 s{S_WAVE}, 6"); a("s_cbranch_scc1 L_end")
    a("s_waitcnt lgkmcnt(0)")
    a(f"s_lshl_b32 s40, s{S_CL}, 7")
    a(f"s_load_dwordx2 s[{S_TAG}:{S_TAG+1}], s[{SRD_WS}:{SRD_WS+1}], s40")
    a("v_bfe_u32 v1, v0, 2, 3"); a("v_and_b32 v2, 3, v0"); a("v_lshlrev_b32 v2, 3, v2"); a("v_lshl_add_u32 v4, v1, 7, v2")
    a(f"s_lshl_b32 s40, s{S_CL}, 5"); a(f"s_lshl_b32 s41, s{S_KQ}, 3"); a("s_add_u32 s40, s40, s41")
    a("s_lshl_b32 s40, s40, 7"); a(f"s_add_u32 s43, s40, {hex(PFLAG)}")
    a("s_waitcnt lgkmcnt(0)")
    tag_hash()
    a(f"v_mov_b32 v2, s{S_TAG}"); a(f"v_mov_b32 v3, s{S_TAG+1}")
    a(f"s_mov_b32 s44, {GATE + 1}")
    a.lab("L_pb"); a("s_barrier"); a("s_sub_u32 s44, s44, 1"); a("s_cmp_lg_u32 s44, 0"); a("s_cbranch_scc1 L_pb")
    a(f"s_mov_b32 s44, {opt.spin}")
    a.lab("L_ppoll")
    a(f"buffer_load_dwordx2 v[8:9], v4, {srd(SRD_WS)}, s43 offen sc1")
    a("s_sub_u32 s44, s44, 1"); a("s_cmp_eq_u32 s44, 0"); a("s_cbranch_scc1 L_pgo")
    a("s_waitcnt vmcnt(0)")
    a("v_cmp_eq_u64 vcc, v[8:9], v[2:3]")
    a("s_cmp_eq_u64 vcc, exec"); a("s_cbranch_scc1 L_pgo")
    a("s_sleep 2"); a("s_branch L_ppoll")
    a.lab("L_pgo")
    a("s_barrier")
    a.lab("L_end")
    a("s_endpgm")

    a.lab("L_compute")
    mark = [len(a.L)]; rep = []
    def flush_passes():
        body = hazard_fix(auto_wait(a.L[mark[0]:]), report=rep)
        a.L = a.L[:mark[0]] + body
        mark[0] = len(a.L)
    if opt.prio: a(f"s_setprio {opt.prio}")
    a(f"s_lshr_b32 s{S_WM}, s{S_WAVE}, 1"); a(f"s_and_b32 s{S_WN}, s{S_WAVE}, 1")
    a("v_and_b32 v1, 15, v0"); a("v_lshrrev_b32 v2, 4, v0")
    a("v_lshrrev_b32 v3, 1, v1"); a("v_xor_b32 v4, v3, v2"); a("v_lshlrev_b32 v4, 4, v4"); a("v_lshl_add_u32 v4, v1, 7, v4")
    a(f"s_lshl_b32 s43, s{S_WAVE}, 12"); a("s_xor_b32 s42, s43, 4096")
    a(f"v_add_u32 v{V_AR}, s42, v4"); a(f"v_add_u32 v{V_AR+1}, s43, v4")
    a(f"v_xor_b32 v{V_AR+2}, 64, v{V_AR}"); a(f"v_xor_b32 v{V_AR+3}, 64, v{V_AR+1}")
    a("v_lshrrev_b32 v5, 1, v2"); a("v_xor_b32 v5, v5, v3"); a("v_lshlrev_b32 v5, 4, v5"); a("v_lshl_add_u32 v5, v1, 7, v5")
    a("v_and_b32 v6, 1, v2"); a("v_lshl_add_u32 v5, v6, 3, v5")
    a(f"s_lshl_b32 s44, s{S_WN}, 14"); a(f"s_add_u32 s44, s44, {KSLOT}")
    a("s_add_u32 s42, s42, s44"); a("s_add_u32 s43, s43, s44")
    a(f"v_add_u32 v{V_T}, s42, v5"); a(f"v_add_u32 v{V_T+1}, s43, v5")
    for bb in range(2):
        for uz in range(1, 4): a(f"v_xor_b32 v{V_T+4+3*bb+uz-1}, {32*uz}, v{V_T+bb}")
    a("v_bfe_u32 v5, v0, 2, 2"); a("v_lshl_add_u32 v4, v2, 3, v5"); a("v_lshlrev_b32 v4, 8, v4")
    a("v_and_b32 v3, 3, v0"); a("v_lshl_add_u32 v4, v3, 3, v4"); a("v_add_u32 v4, 16384, v4")
    a("v_lshlrev_b32 v5, 1, v5"); a("v_or_b32 v5, v5, v6")
    a(f"s_lshl_b32 s40, s{S_WN}, 2")
    for b in range(4):
        a(f"s_add_u32 s41, s40, {b}"); a("v_xor_b32 v3, s41, v5"); a(f"v_lshl_add_u32 v{V_AW+b}, v3, 5, v4")
    a(f"s_lshr_b32 s52, s{S_KQ}, 1"); a("s_lshl_b32 s52, s52, 12")
    a(f"s_lshl_b32 s53, s{S_KQ}, 10")
    a("v_lshlrev_b32 v7, 4, v0"); a(f"v_mov_b32 v{V_Z}, 0")
    a(f"s_mov_b32 s{S_UP}, 0x10000"); a(f"s_mov_b32 s{S_DN1}, 0xffff0000"); a(f"s_mov_b32 s{S_DN2}, 0xfffe0000"); a(f"s_mov_b32 s{S_C}, 0x3e0293ee")
    a(f"s_lshl_b32 s40, s{S_WM}, 13"); a("s_add_u32 s40, s40, s44")
    a(f"v_add_u32 v{V_T+10}, s40, v7"); a(f"v_xor_b32 v{V_T+11}, 0x4000, v{V_T+10}")
    a("s_waitcnt lgkmcnt(0)")
    a(f"s_lshl_b32 s40, s{S_CL}, 7")
    a(f"s_load_dwordx2 s[{S_TAG}:{S_TAG+1}], s[{SRD_WS}:{SRD_WS+1}], s40")
    a(f"s_lshl_b32 s40, s{S_CL}, 5"); a(f"s_lshl_b32 s41, s{S_KQ}, 3"); a("s_add_u32 s40, s40, s41")
    a(f"s_lshl_b32 s{S_PB}, s40, 13"); a(f"s_add_u32 s{S_PB}, s{S_PB}, {hex(PBUF)}")
    a(f"s_lshl_b32 s41, s{S_WAVE}, 11"); a("s_xor_b32 s42, s41, 2048")
    a(f"v_add_u32 v{V_T+2}, s42, v7"); a(f"v_add_u32 v{V_T+3}, s41, v7")
    a(f"s_add_u32 s40, s40, s{S_HQ}"); a("s_lshl_b32 s40, s40, 7"); a(f"s_lshl_b32 s41, s{S_WAVE}, 3"); a("s_add_u32 s40, s40, s41")
    a(f"s_add_u32 s{S_FL}, s40, {hex(PFLAG)}")
    a("s_waitcnt lgkmcnt(0)")
    tag_hash()
    a(f"v_mov_b32 v{V_TAG}, s{S_TAG}"); a(f"v_mov_b32 v{V_TAG+1}, s{S_TAG+1}")
    a("s_barrier")
    stamp()

    def rel(n): return (slot(n) & 1) * SLOT
    def upd(n):
        d = (slot(n + 1) >> 1) - (slot(n) >> 1)
        return {0: None, 1: S_UP, -1: S_DN1, -2: S_DN2}[d]
    def rdR(n, s, aa): return f"ds_read_b128 {vr(V_R+4*aa,4)}, v{V_AR + 2*s + (aa >> 1)} offset:{rel(n) + (aa & 1)*2048}"
    def rdW(n, s, b, z): return f"ds_read_b64_tr_b16 {vr(V_W + 16*s + 4*b + 2*z, 2)}, v{V_AW+b} offset:{rel(n) + s*8192 + z*1024}"
    WPOS = {(0,0): (0,0), (0,1): (0,1), (0,2): (1,0), (1,0): (1,1), (1,1): (2,0), (1,2): (2,1), (2,0): (3,0), (2,1): (3,1)}
    WAITPOS = {(0,0), (0,1), (0,2), (0,3), (2,0), (3,0)}
    def acc(aa, b): return vr(V_ACC + 16*aa + 4*b, 4)
    def item_gaps(n, zero, nxt, bar=True):
        G = []
        phase = 1 if n < 16 else 2
        for s in range(2):
            tk, ts = (n, 1) if s == 0 else (nxt, 0)
            for aa in range(4):
                for b in range(4):
                    post = []
                    W = vr(V_W + 16*s + 4*b, 4); R = vr(V_R + 4*aa, 4)
                    C = "0" if (zero and s == 0) else acc(aa, b)
                    m = f"{MF} {acc(aa,b)}, {W}, {R}, {C}" if phase == 1 else f"{MF} {acc(aa,b)}, {R}, {W}, {C}"
                    if tk is not None:
                        if (aa, b) in WPOS: post.append(rdW(tk, ts, *WPOS[(aa, b)]))
                        if b == 3: post.append(rdR(tk, ts, aa))
                    u = upd(n) if nxt is not None else None
                    if u is not None:
                        if s == 0 and aa == 3 and b < 3: post.append(f"v_add_u32 v{V_AW+b}, s{u}, v{V_AW+b}")
                        if s == 0 and aa == 2 and b == 2: post += [f"v_add_u32 v{V_AR}, s{u}, v{V_AR}", f"v_add_u32 v{V_AR+1}, s{u}, v{V_AR+1}"]
                        if s == 0 and aa == 3 and b == 2: post.append(f"v_add_u32 v{V_AW+3}, s{u}, v{V_AW+3}")
                        if s == 1 and aa == 3 and b < 2: post.append(f"v_add_u32 v{V_AR+2+b}, s{u}, v{V_AR+2+b}")
                    if bar and s == 0 and aa == 3 and b == 3: post.append("s_barrier")
                    G.append([1 if (aa, b) in WAITPOS else 0, m, post])
        return G
    def load_of(G, i): return len(G[i][2]) + (G[i+1][0] if i + 1 < len(G) else 0)
    def inject(G, start, opsl, cap=2, onelds=True):
        i = start
        for op in opsl:
            while i < len(G) and (load_of(G, i) >= cap or (onelds and op.startswith("ds_") and any(x.startswith("ds_") for x in G[i][2]))): i += 1
            if i >= len(G): G[-1][2].append(op); i = len(G) - 1; continue
            G[i][2].append(op)
        return i
    def emitG(G):
        for w, m, post in G:
            a(m)
            for x in post: a(x)
    kf = lambda bb, kt, u: V_KF + 16*bb + 8*kt + 4*u
    sp = lambda bb, kt, qt: V_SP + 16*bb + 8*kt + 4*qt
    kaddr = lambda bb, u, z: (V_T + bb) if (u == 0 and z == 0) else (V_T + 4 + 3*bb + 2*u + z - 1)
    kreads = [f"ds_read_b64 {vr(kf(bb,kt,u) + 2*z, 2)}, v{kaddr(bb,u,z)} offset:{kt*2048}" for bb in range(2) for kt in range(2) for u in range(2) for z in range(2)]
    qcvt = lambda aa: [f"v_cvt_pk_bf16_f32 v{V_BF+i}, v{V_ACC+2*i}, v{V_ACC+2*i+1}" for i in range(8*aa, 8*aa+8)]
    def smf(bb, Cin=None):
        r = []
        for u in range(2):
            for kt in range(2):
                for qt in range(2):
                    C = (("0" if Cin is None else vr(Cin + 8*kt + 4*qt, 4)) if u == 0 else vr(sp(bb,kt,qt), 4))
                    r.append(f"{MF} {vr(sp(bb,kt,qt),4)}, {vr(kf(bb,kt,u),4)}, {vr(V_BF + 8*(2*bb+qt) + 4*u, 4)}, {C}")
        return r

    for (aa, b) in [(x, y) for x in range(4) for y in range(4)]:
        if (aa, b) in WPOS: a(rdW(0, 0, *WPOS[(aa, b)]))
        if b == 3: a(rdR(0, 0, aa))
    kpos = max(KAT) + 1
    for n in range(16):
        G = item_gaps(n, n == 0, n + 1 if n < 15 else None, bar=(n < 15))
        if n == kpos: inject(G, 0, kreads[:8])
        if n == kpos + 1: inject(G, 0, kreads[8:])
        if n == 15:
            u = upd(15)
            inject(G, 16, [f"v_add_u32 v{r}, s{u}, v{r}" for r in list(range(V_AR, V_AR+4)) + list(range(V_AW, V_AW+4))] +
                   [f"v_xor_b32 v{r}, s52, v{r}" for r in range(V_AR, V_AR+4)] +
                   [f"v_xor_b32 v{V_T+4}, s53, v{V_T+2}", f"v_xor_b32 v{V_T+6}, s53, v{V_T+3}", f"v_xor_b32 v{V_T+5}, 0x400, v{V_T+4}", f"v_xor_b32 v{V_T+7}, 0x400, v{V_T+6}"])
            inject(G, 24, qcvt(0), cap=3); inject(G, 28, qcvt(1), cap=3)
        emitG(G)
    stamp()
    a.c("---- partial scores of the partner's batch")
    G = [[0, m, []] for m in smf(0)]
    inject(G, 0, qcvt(2) + qcvt(3))
    emitG(G)
    RXS = V_KF
    xw = [f"ds_write_b128 v{V_T+10}, {vr(V_SP + 4*j, 4)} offset:{j*1024}" for j in range(4)]
    xr = [f"ds_read_b128 {vr(RXS + 4*j, 4)}, v{V_T+11} offset:{j*1024}" for j in range(4)]
    S = lambda kt, qt, i: f"v{sp(1,kt,qt) + i}"
    sm = []
    M = [1, 3]; T = [2, 4]
    for qt in range(2):
        m = f"v{M[qt]}"
        sm += [f"v_max3_f32 {m}, {S(0,qt,0)}, {S(0,qt,1)}, {S(0,qt,2)}", f"v_max3_f32 {m}, {m}, {S(0,qt,3)}, {S(1,qt,0)}",
               f"v_max3_f32 {m}, {m}, {S(1,qt,1)}, {S(1,qt,2)}", f"v_max_f32 {m}, {m}, {S(1,qt,3)}"]
    def xl(op):
        o = []
        for sw in ("v_permlane16_swap_b32", "v_permlane32_swap_b32"):
            o += ["v_mov_b32 v2, v1", "v_mov_b32 v4, v3", f"{sw} v1, v2", f"{sw} v3, v4", f"{op} v1, v1, v2", f"{op} v3, v3, v4"]
        return o
    sm += xl("v_max_f32")
    sm += [f"v_mul_f32 v1, s{S_C}, v1", f"v_mul_f32 v3, s{S_C}, v3"]
    idx8 = [(kt, i) for kt in range(2) for i in range(4)]
    for qt in range(2):
        for kt, i in idx8: sm.append(f"v_fma_f32 {S(kt,qt,i)}, {S(kt,qt,i)}, s{S_C}, -v{M[qt]}")
    for qt in range(2):
        for kt, i in idx8: sm.append(f"v_exp_f32 {S(kt,qt,i)}, {S(kt,qt,i)}")
    for qt in range(2):
        m = f"v{M[qt]}"; t = f"v{T[qt]}"
        sm += [f"v_add_f32 {m}, {S(0,qt,0)}, {S(0,qt,1)}", f"v_add_f32 {t}, {S(0,qt,2)}, {S(0,qt,3)}",
               f"v_add_f32 {m}, {m}, {S(1,qt,0)}", f"v_add_f32 {t}, {t}, {S(1,qt,1)}",
               f"v_add_f32 {m}, {m}, {S(1,qt,2)}", f"v_add_f32 {t}, {t}, {S(1,qt,3)}", f"v_add_f32 {m}, {m}, {t}"]
    sm += xl("v_add_f32")
    sm += ["v_rcp_f32 v1, v1", "v_rcp_f32 v3, v3"]
    for qt in range(2):
        for kt, i in idx8: sm.append(f"v_mul_f32 {S(kt,qt,i)}, {S(kt,qt,i)}, v{M[qt]}")
    for qt in range(2):
        for kt in range(2):
            for h in range(2): sm.append(f"v_cvt_pk_bf16_f32 v{V_P + 4*qt + 2*kt + h}, {S(kt,qt,2*h)}, {S(kt,qt,2*h+1)}")
    sm += [f"s_lshl_b32 s40, s{S_HQ}, 13", f"s_add_u32 s40, s40, s{S_PB}",
           f"buffer_store_dwordx4 {vr(V_P,4)}, v{V_T+3}, {srd(SRD_WS)}, s40 offen sc1",
           f"buffer_store_dwordx4 {vr(V_P+4,4)}, v{V_T+3}, {srd(SRD_WS)}, s40 offen offset:1024 sc1"]
    flag_ops = ["s_waitcnt vmcnt(0)", f"buffer_store_dwordx2 {vr(V_TAG,2)}, v{V_Z}, {srd(SRD_WS)}, s{S_FL} offen sc1"]

    bf = lambda bb, nt: V_BF + 16*bb + 4*nt
    out = lambda bb, qt, nt: V_OUT + 16*(2*bb + qt) + 4*nt
    def cvt_ops(bb, nt):
        t0 = V_ACC + 16*(2*bb) + 4*nt; t1 = V_ACC + 16*(2*bb+1) + 4*nt; d = bf(bb, nt)
        return [f"v_cvt_pk_bf16_f32 v{d}, v{t0}, v{t0+1}", f"v_cvt_pk_bf16_f32 v{d+1}, v{t0+2}, v{t0+3}",
                f"v_cvt_pk_bf16_f32 v{d+2}, v{t1}, v{t1+1}", f"v_cvt_pk_bf16_f32 v{d+3}, v{t1+2}, v{t1+3}"]
    def pv_m(bb, qt, nt, P, zero):
        o = vr(out(bb,qt,nt), 4)
        return f"{MF} {o}, {vr(bf(bb,nt),4)}, {vr(P + 8*bb + 4*qt, 4)}, {'0' if zero else o}"
    def loadP(i, P):
        if opt.nopv: return []
        return [f"s_bfe_u32 s40, s{S_HT}, {hex(4*i | (4 << 16))}", "s_lshl_b32 s40, s40, 13", f"s_add_u32 s40, s40, s{S_PB}"] + \
               [f"buffer_load_dwordx4 {vr(P + 8*bb + 4*qt, 4)}, v{V_T+4+2*bb+qt}, {srd(SRD_WS)}, s40 offen sc1" for bb in range(2) for qt in range(2)]
    PN = V_W
    order = [(bb, nt) for bb in range(2) for nt in range(4)]
    def boundary(i):
        G = []
        if opt.nopv: return G
        prev = []
        for bb, nt in order:
            G.append([0, pv_m(bb, 0, nt, V_P, i == 1), prev[2:]])
            prev = cvt_ops(bb, nt)
            G.append([0, pv_m(bb, 1, nt, V_P, i == 1), prev[:2]])
        G[-1][2] += prev[2:]
        return G
    for x in xw: a(x)
    a(f"ds_write_b64 v{V_T+10}, {vr(V_TAG,2)} offset:4096")
    flush_passes()
    a(f"s_mov_b32 s44, {opt.spin}")
    a.lab("L_spoll")
    a(f"ds_read_b64 v[2:3], v{V_T+11} offset:4096")
    a("s_sub_u32 s44, s44, 1"); a("s_cmp_eq_u32 s44, 0")
    a("s_waitcnt lgkmcnt(0)")
    a("s_cbranch_scc1 L_sgo")
    a(f"v_cmp_ne_u64 vcc, v[2:3], {vr(V_TAG,2)}")
    a("s_cbranch_vccnz L_spoll")
    a.lab("L_sgo")
    mark[0] = len(a.L)
    for x in xr: a(x)
    for m in smf(1, RXS): a(m)
    nb = opt.smbar
    for x in sm[:nb]: a(x)
    a("s_barrier")
    for (aa, b) in [(x, y) for x in range(4) for y in range(4)]:
        if (aa, b) in WPOS: a(rdW(16, 0, *WPOS[(aa, b)]))
        if b == 3: a(rdR(16, 0, aa))
    npre = max(nb, len(sm) - opt.smpost)
    for x in sm[nb:npre]: a(x)
    stamp()
    G01 = item_gaps(16, True, 17) + item_gaps(17, False, 18)
    b0 = len(G01)
    cv0 = [x for bb, nt in order for x in cvt_ops(bb, nt)]
    G01[-1][2] += cv0
    G01 += item_gaps(18, True, 19) + item_gaps(19, False, 20)
    pos = inject(G01, 0, sm[npre:], cap=opt.cap)
    fp = pos + opt.flagdelay
    barp = b0 + 15 + 32*opt.pl
    assert fp <= barp, (fp, barp)
    if G01[fp][2] and G01[fp][2][-1] == "s_barrier": G01[fp][2][-1:-1] = flag_ops
    else: G01[fp][2].extend(flag_ops)
    inject(G01, barp + 1, loadP(0, V_P))
    if opt.hstamps: G01[b0-1][2].append(stamp_s())
    emitG(G01)
    if opt.hstamps: stamp()
    emitG(boundary(1))
    if opt.hstamps: stamp()
    for i in range(2, 8):
        nA, nB = 16 + 2*i, 17 + 2*i
        G = item_gaps(nA, True, nB) + item_gaps(nB, False, nB + 1 if i < 7 else None, bar=(i < 7))
        st = 16 + 32*opt.pl if not (i == 7 and opt.pl) else 32
        if i > 2 and opt.pl: st = 16
        inject(G, st, loadP(i - 1, V_P))
        if i == 7: inject(G, 48, loadP(7, PN))
        if i == 7:
            pass
        emitG(G)
        if opt.hstamps: stamp()
        emitG(boundary(i))
        if opt.hstamps: stamp()
    a(f"s_lshl_b32 s40, s{S_CL}, 5"); a(f"s_add_u32 s40, s40, s{S_IDX}")
    a(f"s_lshl_b32 s41, s{S_KQ}, 2"); a(f"s_add_u32 s41, s41, s{S_WAVE}")
    a("s_lshl_b32 s43, s41, 12"); a(f"s_add_u32 s43, s43, {hex(XBUF)}")
    for t in (1, 2, 3):
        a(f"s_xor_b32 s42, s{S_KQ}, {t}"); a("s_lshl_b32 s42, s42, 3"); a("s_add_u32 s42, s42, s40")
        a(f"s_lshl_b32 s{52+t}, s42, 7")
        a("s_lshl_b32 s42, s42, 16"); a(f"s_add_u32 s{44+t}, s42, s43")
    a("s_lshl_b32 s43, s41, 3"); a(f"s_add_u32 s43, s43, {hex(XFLAG)}")
    for t in (1, 2, 3): a(f"s_add_u32 s{52+t}, s{52+t}, s43")
    SX = V_ACC
    tagged = opt.xmode != "flag"
    DPOS = [0, 1, 2, 4, 5, 6, 8, 9] if tagged else list(range(8))
    NG = 3 if tagged else 2
    tags = [f"v_mov_b32 v{SX + 16*t + p}, v{V_TAG + (1 if p == 10 else 0)}" for t in (1, 2, 3) for p in (3, 7, 10, 11)] if tagged else []
    xflag = lambda t: f"buffer_store_dwordx2 {vr(V_TAG,2)}, v{V_Z}, {srd(SRD_WS)}, s{52+t} offen sc1"
    def send(t):
        o = [f"v_cvt_pk_bf16_f32 v{SX + 16*t + DPOS[j]}, v{V_OUT+16*t+2*j}, v{V_OUT+16*t+2*j+1}" for j in range(8)]
        st = [f"buffer_store_dwordx4 {vr(SX + 16*t + 4*g, 4)}, v7, {srd(SRD_WS)}, s{44+t} offen offset:{g*1024} sc1" for g in range(NG)]
        if not tagged: return o[:4] + st[:1] + o[4:] + st[1:]
        return o[:3] + st[:1] + o[3:6] + st[1:2] + o[6:] + st[2:] + ([xflag(t)] if opt.xmode == "opt" else [])
    G = [[0, pv_m(t >> 1, t & 1, nt, PN, False), []] for t in (1, 2, 3, 0) for nt in range(4)]
    inject(G, 0, tags)
    inject(G, 6, send(1) + send(2) + send(3), cap=3)
    emitG(G)
    stamp()
    if opt.xmode == "flag":
        for t in (1, 2, 3):
            a(f"s_waitcnt vmcnt({2*(3-t) + (t-1)})"); a(xflag(t))
    a(f"s_lshl_b32 s42, s{S_KQ}, 3"); a("s_add_u32 s42, s42, s40")
    a(f"s_lshl_b32 s56, s42, 7"); a(f"s_lshl_b32 s43, s{S_WAVE}, 3"); a("s_add_u32 s56, s56, s43"); a(f"s_add_u32 s56, s56, {hex(XFLAG)}")
    a("v_and_b32 v3, 3, v0"); a("v_min_u32 v3, 2, v3"); a(f"v_add_u32 v3, s{S_KQ}, v3"); a("v_add_u32 v3, 1, v3"); a("v_and_b32 v3, 3, v3"); a("v_lshlrev_b32 v3, 5, v3")
    a("s_lshl_b32 s42, s42, 16"); a(f"s_lshl_b32 s43, s{S_WAVE}, 12"); a("s_add_u32 s42, s42, s43"); a(f"s_add_u32 s42, s42, {hex(XBUF)}")
    for j in range(3):
        a(f"s_add_u32 s43, s{S_KQ}, {j+1}"); a("s_and_b32 s43, s43, 3"); a("s_lshl_b32 s43, s43, 14"); a(f"s_add_u32 s{51+j}, s43, s42")
    a("v_lshrrev_b32 v4, 3, v0"); a("v_lshlrev_b32 v4, 12, v4"); a("v_and_b32 v5, 7, v0"); a("v_lshl_add_u32 v4, v5, 4, v4")
    a(f"s_lshr_b32 s41, s{S_KQ}, 1"); a(f"s_xor_b32 s41, s41, s{S_WAVE}"); a("s_xor_b32 s41, s41, 1"); a("s_lshl_b32 s41, s41, 17")
    a(f"s_lshl_b32 s40, s{S_RB}, 19"); a("s_add_u32 s40, s40, s41")
    a(f"s_and_b32 s41, s{S_KQ}, 1"); a("s_lshl_b32 s41, s41, 16"); a("s_add_u32 s40, s40, s41")
    a(f"s_lshl_b32 s41, s{S_BR}, 11"); a("s_add_u32 s40, s40, s41")
    a(f"s_mul_i32 s41, s{S_WN}, {opt.wox}"); a(f"s_xor_b32 s41, s41, s{S_IDX}"); a("s_lshl_b32 s41, s41, 8"); a("s_add_u32 s40, s40, s41")
    a(f"s_lshl_b32 s41, s{S_WN}, 7"); a("s_add_u32 s40, s40, s41")
    a("s_add_u32 s41, s40, 0x8000")
    a(f"s_lshl_b32 s42, s{S_WAVE}, 11"); a(f"s_add_u32 s42, s42, {SLOT}")
    a("v_and_b32 v1, 15, v0"); a("v_lshrrev_b32 v2, 5, v0"); a("v_and_b32 v5, 7, v0"); a("v_xor_b32 v2, v2, v5"); a("v_lshlrev_b32 v2, 4, v2")
    a("v_lshl_add_u32 v1, v1, 7, v2"); a("v_bfe_u32 v2, v0, 4, 1"); a("v_lshl_add_u32 v1, v2, 3, v1"); a("v_add_u32 v1, s42, v1")
    for nt in range(1, 4): a(f"v_xor_b32 v{9+nt}, {32*nt}, v1")
    a("v_lshrrev_b32 v2, 3, v0"); a("v_xor_b32 v5, v5, v2"); a("v_lshlrev_b32 v5, 4, v5"); a("v_lshl_add_u32 v2, v2, 7, v5"); a("v_add_u32 v2, s42, v2")
    a(f"s_mov_b32 s44, {opt.spin}")
    flush_passes()
    if opt.verbose:
        for r in rep: print("pad", r)
    RX = V_BF
    def ld(j, g): a(f"buffer_load_dwordx4 {vr(RX + 12*j + 4*g, 4)}, v7, {srd(SRD_WS)}, s{51+j} offen offset:{g*1024} sc1")
    def chk(j, gs):
        regs = [(RX + 12*j + 4*g + 3, V_TAG) for g in gs] + ([(RX + 12*j + 10, V_TAG + 1)] if 2 in gs else [])
        for k, (r, t) in enumerate(regs): a(f"v_xor_b32 v{V_R+k}, v{r}, v{t}")
        for k in range(1, len(regs)): a(f"v_or_b32 v{V_R}, v{V_R}, v{V_R+k}")
        a(f"v_cmp_ne_u32 vcc, 0, v{V_R}")
    if opt.xmode != "tag":
        a.lab("L_xpoll")
        a(f"buffer_load_dwordx2 v[8:9], v3, {srd(SRD_WS)}, s56 offen sc1")
        a("s_sub_u32 s44, s44, 1"); a("s_cmp_eq_u32 s44, 0")
        a("s_waitcnt vmcnt(0)")
        a("s_cbranch_scc1 L_xrd")
        a(f"v_cmp_ne_u64 vcc, v[8:9], {vr(V_TAG,2)}")
        a("s_cbranch_vccnz L_xpoll")
        a.lab("L_xrd")
        stamp()
    for j in range(3):
        for g in range(NG): ld(j, g)
    for j in range(3 if tagged else 0):
        a(f"s_waitcnt vmcnt({6 - 3*j})")
        chk(j, (0, 1, 2))
        a(f"s_cbranch_vccz L_xok{j}")
        a.lab(f"L_xp{j}")
        a(f"s_sleep {opt.xsleep}")
        ld(j, 2)
        a("s_sub_u32 s44, s44, 1"); a("s_cmp_eq_u32 s44, 0")
        a("s_waitcnt vmcnt(0)")
        a(f"s_cbranch_scc1 L_xok{j}")
        chk(j, (2,))
        a(f"s_cbranch_vccnz L_xp{j}")
        ld(j, 0); ld(j, 1)
        a("s_waitcnt vmcnt(0)")
        chk(j, (0, 1))
        a(f"s_cbranch_vccnz L_xp{j}")
        a.lab(f"L_xok{j}")
    a.lab("L_xgo")
    if opt.xmode == "tag": stamp()
    for j in range(3):
        if not tagged: a(f"s_waitcnt vmcnt({4 - 2*j})")
        for i in range(8):
            r = RX + 12*j + DPOS[i]
            a(f"v_lshlrev_b32 v5, 16, v{r}"); a(f"v_and_b32 v6, 0xffff0000, v{r}")
            a(f"v_add_f32 v{V_OUT+2*i}, v{V_OUT+2*i}, v5"); a(f"v_add_f32 v{V_OUT+2*i+1}, v{V_OUT+2*i+1}, v6")
    for i in range(8): a(f"v_cvt_pk_bf16_f32 v{V_R+i}, v{V_OUT+2*i}, v{V_OUT+2*i+1}")
    for nt in range(4): a(f"ds_write_b64 v{9+nt if nt else 1}, {vr(V_R+2*nt,2)}")
    a(f"ds_read_b128 {vr(V_R+8,4)}, v2"); a(f"ds_read_b128 {vr(V_R+12,4)}, v2 offset:1024")
    a("s_waitcnt lgkmcnt(1)")
    a(f"buffer_store_dwordx4 {vr(V_R+8,4)}, v4, {srd(SRD_OUT)}, s40 offen {opt.outflags}")
    a("s_waitcnt lgkmcnt(0)")
    a(f"buffer_store_dwordx4 {vr(V_R+12,4)}, v4, {srd(SRD_OUT)}, s41 offen {opt.outflags}")
    a(f"s_or_b32 s40, s{S_KQ}, s{S_IDX}"); a(f"s_or_b32 s40, s40, s{S_WAVE}"); a("s_cmp_lg_u32 s40, 0"); a("s_cbranch_scc1 L_noep")
    a(f"s_lshl_b32 s40, s{S_CL}, 7")
    a(f"buffer_store_dwordx2 {vr(V_TAG,2)}, v{V_Z}, {srd(SRD_WS)}, s40 offen {opt.outflags}")
    a.lab("L_noep")
    if opt.fixdur:
        a.lab("L_fix")
        a("s_memrealtime s[92:93]"); a("s_waitcnt lgkmcnt(0)"); a("s_sub_u32 s92, s92, s98")
        a(f"s_cmp_lt_u32 s92, {opt.fixdur}"); a("s_cbranch_scc1 L_fix")
    if opt.stamps:
        a("s_waitcnt vmcnt(0)")
        stamp()
        a(f"s_cmp_lg_u32 s{S_WAVE}, 0"); a("s_cbranch_scc1 L_end2")
        a("s_waitcnt lgkmcnt(0)")
        n = nst[0]
        a(f"s_mul_i32 s40, s2, {n*8}"); a("s_add_u32 s40, s40, 0x8000000")
        a(f"s_add_u32 s42, s{SRD_WS}, s40"); a(f"s_addc_u32 s43, s{SRD_WS+1}, 0")
        for i in range(n):
            a(f"v_mov_b32 v8, s{S_ST+2*i}"); a(f"v_mov_b32 v9, s{S_ST+2*i+1}")
            a(f"global_store_dwordx2 v{V_Z}, v[8:9], s[42:43] offset:{i*8}"); a("s_nop 1")
        a.lab("L_end2")
    a("s_endpgm")
    a.lab("L_code_end")
    tail = ['.section .rodata,"a"', ".p2align 6", f".amdhsa_kernel {NAME}_kernel"]
    tail += ["  .amdhsa_" + l for l in ("next_free_vgpr 256", "next_free_sgpr 102", "accum_offset 256", "group_segment_fixed_size 0", "kernarg_size 104",
              "user_sgpr_count 2", "user_sgpr_kernarg_segment_ptr 1", "system_sgpr_workgroup_id_x 1")]
    tail += [".end_amdhsa_kernel"]
    txt = "\n".join(head + [(x if x.endswith(":") else "    " + x) for x in a.L] + tail) + "\n"
    return txt, nst[0], rep

def parse(argv):
    ap = argparse.ArgumentParser()
    ap.add_argument("-o", default="cdna_kernels/" + NAME + ".s")
    for f in ("stamps", "cyc", "lstamps", "nodma", "nolds", "nomfma", "samek", "hstamps", "verbose", "pairs", "nopv"): ap.add_argument("--" + f, action="store_true")
    ap.add_argument("--prio", type=int, default=0)
    ap.add_argument("--spin", type=int, default=100000)
    ap.add_argument("--fixdur", type=int, default=0)
    ap.add_argument("--q0", type=int, default=2)
    ap.add_argument("--q2", type=int, default=4)
    ap.add_argument("--pl", type=int, default=0)
    ap.add_argument("--cap", type=int, default=2)
    ap.add_argument("--keeppos", type=int, default=24)
    ap.add_argument("--flagdelay", type=int, default=40)
    ap.add_argument("--p1", default="4")
    ap.add_argument("--p2", default="8")
    ap.add_argument("--p3", default="12")
    ap.add_argument("--pm", default="4")
    ap.add_argument("--vt", default="-1")
    ap.add_argument("--smbar", type=int, default=60)
    ap.add_argument("--smpost", type=int, default=0)
    ap.add_argument("--xmode", default="flag")
    ap.add_argument("--ctouch", type=int, default=0)
    ap.add_argument("--idxx", type=int, default=0)
    ap.add_argument("--hqx", type=int, default=0)
    ap.add_argument("--kat", default="")
    ap.add_argument("--wox", type=int, default=0)
    ap.add_argument("--kbyb", type=int, default=1)
    ap.add_argument("--xt", type=int, default=-1)
    ap.add_argument("--xsleep", type=int, default=1)
    ap.add_argument("--kflags", default="")
    ap.add_argument("--outflags", default="sc1")
    return ap.parse_args(argv)

if __name__ == "__main__":
    opt = parse(sys.argv[1:])
    t, n, rep = gen(opt)
    open(opt.o, "w").write(t)
    print("wrote", opt.o, "stamps", n, "lines", t.count("\n"), "pads", len(rep))
```

```python
import sys, argparse
from passes import auto_wait, hazard_fix
NAME = "concat_heads__mha_block_cached__mha_block_cached__near_ridge"

class Asm:
    def __init__(self): self.L = []; self.drop = []
    def __call__(self, s):
        for pat in self.drop:
            if pat in s: return
        self.L.append(s)
    def lab(self, s): self.L.append(s + ":")
    def c(self, s): self.L.append("; " + s)

EPOCH = 0; PFLAG = 4096; XFLAG = 65536; PBUF = 0x100000; XBUF = 0x400000; WS_REC = 0x1400000
SLOT = 32768; KSLOT = 4 * SLOT
S_BR, S_KQ, S_RB, S_IDX, S_WAVE = 3, 4, 5, 6, 7
SRD_X, SRD_K, SRD_V, SRD_WQ, SRD_WO, SRD_WS, SRD_OUT = 8, 12, 16, 20, 24, 28, 32
S_TAG = 36; S_CL = 38; S_HQ = 39
S_C = 50; S_PB = 49; S_OFFR = 47; S_OFFW = 48; S_W = 45
S_WM, S_WN = 56, 57; S_UP = 58; S_DN1 = 59; S_FL = 60; S_DN2 = 61
S_ST = 62; S_HT = 46
def srd(b): return f"s[{b}:{b+3}]"
def vr(b, n): return f"v[{b}:{b+n-1}]"
V_AR = 8; V_AW = 12; V_R = 16; V_W = 32; V_BF = 64; V_P = 96; V_TAG = 112; V_Z = 114; V_T = 115
V_ACC = 128; V_OUT = 192; V_KF = 192; V_SP = 224
MF = "v_mfma_f32_16x16x32_bf16"
NS2 = [5]
def slot(n): return n % 4 if n < 16 else (n - 16) % NS2[0]

def gen(opt):
    a = Asm()
    NS2[0] = opt.ns2
    if opt.nodma: a.drop.append(" lds")
    if opt.nolds: a.drop += ["ds_read_b128 v[1", "ds_read_b128 v[2", "ds_read_b64_tr"]
    if opt.nomfma: a.drop += ["v_mfma"]
    head = ["; Fused double MHA block: Q-proj + scores + softmax | V*Wo + P*(V*Wo) | split-K reduce-scatter (gfx950)",
            f"; @launch grid=(256,1,1) block=(512,1,1) lds={SLOT*5}",
            '.amdgcn_target "amdgcn-amd-amdhsa--gfx950"', ".text", f".globl {NAME}_kernel", ".p2align 8", f".type {NAME}_kernel,@function"]
    a.lab(f"{NAME}_kernel")
    nst = [0]
    def stamp_s():
        if not opt.stamps or nst[0] >= 20: return None
        r = S_ST + 2 * nst[0]; nst[0] += 1
        return f"{'s_memtime' if opt.cyc else 's_memrealtime'} s[{r}:{r+1}]"
    def stamp():
        if opt.pairs:
            opt.cyc = False; a(stamp_s()); opt.cyc = True; a(stamp_s()); return
        s = stamp_s()
        if s: a(s)
    stamp()
    if opt.fixdur or opt.lstamps: a("s_memrealtime s[98:99]")
    a("s_cmp_ge_u32 s2, 256"); a("s_cbranch_scc1 L_end")
    a(f"s_bfe_u32 s{S_BR}, s2, 0x10002")
    a(f"s_mul_i32 s41, s{S_BR}, 40")
    a("s_add_u32 s42, s0, s41"); a("s_addc_u32 s43, s1, 0")
    for b, o in ((SRD_X, 0), (SRD_WQ, 24), (SRD_K, 8), (SRD_V, 16), (SRD_WO, 32)): a(f"s_load_dwordx2 s[{b}:{b+1}], s[42:43], {o}")
    a(f"s_load_dwordx2 s[{SRD_WS}:{SRD_WS+1}], s[0:1], 96")
    a(f"s_load_dwordx2 s[{SRD_OUT}:{SRD_OUT+1}], s[0:1], 80")
    a("v_lshrrev_b32 v1, 6, v0"); a("v_and_b32 v0, 63, v0")
    a(f"s_and_b32 s{S_KQ}, s2, 3")
    a(f"v_readfirstlane_b32 s{S_WAVE}, v1")
    a(f"s_lshr_b32 s{S_RB}, s2, 6"); a(f"s_bfe_u32 s{S_IDX}, s2, 0x30003")
    if opt.idxx: a(f"s_xor_b32 s{S_IDX}, s{S_IDX}, {opt.idxx}")
    a(f"s_lshl_b32 s{S_CL}, s{S_BR}, 2"); a(f"s_add_u32 s{S_CL}, s{S_CL}, s{S_RB}")
    a(f"s_lshl_b32 s{S_HQ}, s{S_RB}, 1"); a(f"s_add_u32 s{S_HQ}, s{S_HQ}, s{S_IDX}")
    if opt.hqx: a(f"s_add_u32 s{S_HQ}, s{S_HQ}, {opt.hqx}")
    a(f"s_and_b32 s{S_HQ}, s{S_HQ}, 7")
    for b, n in ((SRD_X, 0x100000), (SRD_WQ, 0x800000), (SRD_K, 0x400000), (SRD_V, 0x400000), (SRD_WO, 0x800000), (SRD_WS, WS_REC), (SRD_OUT, 0x200000)):
        a(f"s_mov_b32 s{b+2}, {hex(n)}"); a(f"s_mov_b32 s{b+3}, 0x20000")
    PMS = list(map(int, opt.pm.split(",")))
    def h_table(pm):
        seq = []; r1 = [2, 4, 6]; r2 = [3, 5, 7]
        for i in range(8):
            if i == 0: seq.append(0)
            elif i == pm: seq.append(1)
            elif r1 and (i < pm or True) and (i < pm or r1): seq.append(r1.pop(0))
            else: seq.append(r2.pop(0))
        return seq
    ht = [sum(x << (4*i) for i, x in enumerate(h_table(pm))) for pm in PMS]
    a(f"s_mov_b32 s{S_HT}, {hex(ht[0])}")
    for w in range(1, len(PMS)):
        a(f"s_and_b32 s41, s{S_IDX}, {len(PMS)-1}"); a(f"s_cmp_eq_u32 s41, {w}"); a(f"s_cselect_b32 s{S_HT}, {hex(ht[w])}, s{S_HT}")
    a(f"s_mul_i32 s41, s{S_HQ}, 0x11111111"); a(f"s_add_u32 s{S_HT}, s{S_HT}, s41"); a(f"s_and_b32 s{S_HT}, s{S_HT}, 0x77777777")
    a(f"s_cmp_lt_u32 s{S_WAVE}, 4"); a("s_cbranch_scc1 L_compute")
    a(f"s_cmp_ge_u32 s{S_WAVE}, 6"); a("s_cbranch_scc1 L_aux")

    a.c("---- loader waves")
    a(f"s_sub_u32 s40, s{S_WAVE}, 4")
    a("v_lshrrev_b32 v3, 4, v0"); a("v_and_b32 v2, 15, v0")
    a("v_lshlrev_b32 v4, 2, v3"); a("v_xor_b32 v2, v2, v4"); a("v_xor_b32 v5, 2, v2")
    a("v_lshlrev_b32 v2, 4, v2"); a("v_lshlrev_b32 v5, 4, v5")
    a("s_lshl_b32 s41, s40, 2"); a("v_add_u32 v1, s41, v3")
    a("v_lshl_add_u32 v12, v1, 13, v2"); a("v_lshl_add_u32 v13, v1, 13, v5")
    a("v_lshl_add_u32 v14, v1, 11, v2"); a("v_lshl_add_u32 v15, v1, 11, v5")
    if opt.wox:
        a(f"s_xor_b32 s42, s{S_IDX}, {opt.wox}"); a(f"s_sub_u32 s42, s42, s{S_IDX}"); a("s_lshl_b32 s42, s42, 8")
        a("v_bfe_u32 v6, v2, 7, 1"); a("v_mul_lo_u32 v6, v6, s42"); a(f"s_lshl_b32 s42, s{S_IDX}, 8"); a("v_add_u32 v6, s42, v6")
        a("v_add_u32 v14, v14, v6"); a("v_add_u32 v15, v15, v6")
    a("v_lshrrev_b32 v1, 3, v0"); a("v_and_b32 v2, 7, v0")
    a("v_add_u32 v4, s41, v3"); a("v_xor_b32 v2, v2, v4"); a("v_lshlrev_b32 v2, 4, v2")
    a("s_lshl_b32 s41, s40, 3"); a("v_add_u32 v1, s41, v1")
    a("v_lshl_add_u32 v10, v1, 11, v2"); a("v_lshl_add_u32 v11, v1, 8, v2")
    a(f"s_lshl_b32 s{S_W}, s40, 10")
    a(f"s_lshl_b32 s50, s{S_RB}, 2"); a(f"s_lshl_b32 s51, s{S_HQ}, 1"); a("s_add_u32 s50, s50, s51")
    a(f"s_lshl_b32 s52, s{S_RB}, 18")
    a(f"s_lshl_b32 s51, s{S_KQ}, 3"); a(f"s_add_u32 s51, s51, s{S_HQ}")
    a("s_lshl_b32 s53, s51, 8")
    a(f"s_lshl_b32 s56, s{S_RB}, 20"); a("s_lshl_b32 s41, s51, 13"); a("s_add_u32 s57, s56, s41")
    a(f"s_lshl_b32 s41, s{S_KQ}, 16"); a("s_add_u32 s58, s56, s41")
    a(f"s_lshl_b32 s59, s{S_KQ}, 21")
    if not opt.wox: a(f"s_lshl_b32 s41, s{S_IDX}, 8"); a("s_add_u32 s59, s59, s41")
    a("v_lshlrev_b32 v16, 7, v0")
    a("s_lshl_b32 s61, s40, 18")
    a("v_lshlrev_b32 v17, 11, v0")
    a("s_add_u32 s60, s50, 1"); a("s_and_b32 s60, s60, 15"); a("s_lshl_b32 s60, s60, 7"); a("s_lshl_b32 s41, s40, 17"); a("s_add_u32 s60, s60, s41")
    if opt.lstamps: a("s_memrealtime s[92:93]")
    def lst():
        if opt.lstamps:
            a("s_memrealtime s[92:93]"); a("s_waitcnt lgkmcnt(0)"); a("s_mov_b32 m0, s94"); a("v_writelane_b32 v30, s92, m0"); a("s_add_u32 s94, s94, 1")
    def dma(vo, sr, sbase, lit, ldsoff, fl=""):
        a(f"s_add_u32 m0, s{S_W}, {ldsoff}")
        a(f"s_add_u32 s41, s{sbase}, {hex(lit)}")
        a(f"buffer_load_dwordx4 v{vo}, {srd(sr)}, s41 offen {fl} lds")
    def loader_body(P1, KAT, VT, HORD, lo, hi, prev_n):
        def prep(n):
            if n < 16:
                a(f"s_bfe_u32 s54, s{42 + (n >> 3)}, {hex(4*(n & 7) | (4 << 16))}")
                a("s_add_u32 s54, s54, s50"); a("s_and_b32 s54, s54, 15")
                if opt.samek: a("s_and_b32 s54, s54, 1")
                a(f"s_lshl_b32 s55, s54, 7"); a(f"s_add_u32 s{S_OFFR}, s52, s55")
                a(f"s_lshl_b32 s55, s54, 19"); a(f"s_add_u32 s{S_OFFW}, s53, s55")
            elif n % 2 == 0:
                a(f"s_bfe_u32 s54, s{S_HT}, {hex(4*((n - 16) >> 1) | (4 << 16))}")
                if opt.samek: a("s_mov_b32 s54, 0")
                a("s_lshl_b32 s55, s54, 13"); a(f"s_add_u32 s{S_OFFR}, s58, s55")
                a("s_lshl_b32 s55, s54, 18"); a(f"s_add_u32 s{S_OFFW}, s59, s55")
        def ops(n):
            so = slot(n) * SLOT
            X = []
            for c2, kk in enumerate(KAT):
                if kk == n and opt.kbyb: X += [("d", 11, SRD_K, 57, (m//2)*262144 + (m % 2)*4096 + h*128, KSLOT + h*16384 + m*2048, opt.kflags) for m in range(4*c2, 4*c2+4) for h in range(2)]
                elif kk == n: X += [("d", 11, SRD_K, 57, (m//2)*262144 + (m % 2)*4096 + c2*128, KSLOT + c2*16384 + m*2048, opt.kflags) for m in range(8)]
            if n == opt.xt: X += [("x",)]
            if VT == n: X += [("v", 0), ("v", 1)]
            if n < 16:
                return [("d", 12 + (m & 1), SRD_WQ, S_OFFW, m*8*8192, so + 16384 + m*2048) for m in range(8)] + X + \
                       [("d", 10, SRD_X, S_OFFR, m*16*2048, so + m*2048) for m in range(8)]
            c2 = n & 1
            return [("d", 14 + (m & 1), SRD_WO, S_OFFW, m*8*2048 + c2*64*2048, so + 16384 + m*2048) for m in range(8)] + X + \
                   [("d", 11, SRD_V, S_OFFR, (m//2)*262144 + (m % 2)*4096 + c2*128, so + m*2048) for m in range(8)]
        def emit(op):
            if op[0] == "d": dma(*op[1:]); return
            if op[0] == "x":
                a("s_add_u32 s41, s52, s60"); a(f"buffer_load_dword v20, v17, {srd(SRD_X)}, s41 offen"); return
            a(f"s_lshl_b32 s55, s{S_HQ}, 13"); a("s_add_u32 s41, s58, s55"); a(f"s_add_u32 s41, s41, {op[1]*2*262144}"); a("s_add_u32 s41, s41, s61")
            a(f"buffer_load_dword v20, v16, {srd(SRD_V)}, s41 offen")
        for n in range(lo, hi):
            prep(n)
            if n == 0:
                a("s_waitcnt lgkmcnt(0)")
                if opt.lstamps:
                    a("v_mov_b32 v30, 0"); a("s_mov_b32 s94, 3")
                    a("v_writelane_b32 v30, s98, 0"); a("v_writelane_b32 v30, s92, 1")
                    a("s_memrealtime s[92:93]"); a("s_waitcnt lgkmcnt(0)"); a("v_writelane_b32 v30, s92, 2")
            L = ops(n)
            if n < 2: q = len(L)
            elif n == 2 or n == 3: q = min(opt.q0, len(L))
            elif n <= 20 or opt.ns2 == 4: q = 0
            else: q = min(opt.q2, len(L))
            for op in L[:q]: emit(op)
            if n >= 2:
                a(f"s_waitcnt vmcnt({prev_n + q})"); lst(); a("s_barrier")
            for op in L[q:]: emit(op)
            prev_n = len(L)
        return prev_n
    def p1_table(p1, p2, p3):
        seq = [None] * 16
        Ms = {0: 0, p1: 2, p2: 1, p3: 3}
        avail = []
        for n in range(16):
            if n in Ms:
                seq[n] = Ms[n]; avail += [(n + 1, Ms[n] + 4*j) for j in (1, 2, 3)]
            else:
                t, c = avail.pop(0); assert t <= n; seq[n] = c
        assert sorted(x % 16 for x in seq) == list(range(16))
        return seq
    def pack(seq): return sum((x & 15) << (4*i) for i, x in enumerate(seq))
    P1S = list(map(int, opt.p1.split(","))); P3S = list(map(int, opt.p3.split(","))); P2S = list(map(int, opt.p2.split(",")))
    VTS = list(map(int, opt.vt.split(",")))
    NV = len(P1S)
    KOV = tuple(map(int, opt.kat.split(","))) if opt.kat else None
    KAT = KOV or (max(P1S), max(P3S))
    if NV > 1:
        a(f"s_and_b32 s41, s{S_HQ}, {NV-1}")
        for v in range(1, NV):
            a(f"s_cmp_eq_u32 s41, {v}"); a(f"s_cbranch_scc1 L_var{v}")
    for v in range(NV):
        if v: a.lab(f"L_var{v}")
        tabs = [pack(p1_table(P1S[v], p2, P3S[v])) for p2 in P2S]
        a(f"s_mov_b32 s42, {hex(tabs[0] & 0xffffffff)}"); a(f"s_mov_b32 s43, {hex(tabs[0] >> 32)}")
        for u in range(1, len(P2S)):
            a(f"s_and_b32 s41, s2, {len(P2S)-1}"); a(f"s_cmp_eq_u32 s41, {u}")
            a(f"s_cselect_b32 s42, {hex(tabs[u] & 0xffffffff)}, s42"); a(f"s_cselect_b32 s43, {hex(tabs[u] >> 32)}, s43")
        pn = loader_body(None, KOV or (P1S[v], P3S[v]), VTS[v % len(VTS)], None, 0, 16, 0)
        assert pn == 16
        if v < NV - 1: a("s_branch L_ld2")
    a.lab("L_ld2")
    pn = loader_body(None, (-1, -1), -1, None, 16, 32, 16)
    a(f"s_waitcnt vmcnt({pn})"); lst(); a("s_barrier")
    a("s_waitcnt vmcnt(0)"); lst(); a("s_barrier")
    if opt.lstamps:
        a(f"s_cmp_lg_u32 s{S_WAVE}, 4"); a("s_cbranch_scc1 L_end")
        a("s_mul_i32 s40, s2, 512"); a("s_add_u32 s40, s40, 0x8000000")
        a(f"s_add_u32 s42, s{SRD_WS}, s40"); a(f"s_addc_u32 s43, s{SRD_WS+1}, 0")
        a("v_lshlrev_b32 v1, 3, v0"); a("v_mov_b32 v31, 0")
        a("global_store_dwordx2 v1, v[30:31], s[42:43]")
    a("s_endpgm")

    def tag_hash():
        a(f"s_mul_i32 s{S_TAG}, s{S_TAG}, 0x9e3779b1"); a(f"s_add_u32 s{S_TAG}, s{S_TAG}, 0x7f4a7c15")
        a(f"s_mul_i32 s{S_TAG+1}, s{S_TAG+1}, 0x85ebca6b"); a(f"s_add_u32 s{S_TAG+1}, s{S_TAG+1}, 0xc2b2ae35")
    GATE = 20 + opt.pl
    a.lab("L_aux")
    if opt.ctouch:
        a(f"s_cmp_eq_u32 s{S_WAVE}, 7"); a("s_cbranch_scc1 L_poller")
        a("s_getpc_b64 s[40:41]")
        a.lab("L_pc")
        a(f"s_sub_u32 s40, s40, L_pc-{NAME}_kernel"); a("s_subb_u32 s41, s41, 0")
        a("s_lshr_b32 s42, s2, 3"); a(f"s_lshl_b32 s42, s42, {7 + opt.ctouch}")
        a(f"v_and_b32 v1, {(1 << opt.ctouch) - 1}, v0"); a("v_lshlrev_b32 v1, 7, v1"); a("v_add_u32 v1, s42, v1")
        a(f"v_min_u32 v1, L_code_end-{NAME}_kernel-4, v1")
        a("global_load_dword v2, v1, s[40:41]")
        a("s_endpgm")
        a.lab("L_poller")
    else:
        a(f"s_cmp_eq_u32 s{S_WAVE}, 6"); a("s_cbranch_scc1 L_end")
    a("s_waitcnt lgkmcnt(0)")
    a(f"s_lshl_b32 s40, s{S_CL}, 7")
    a(f"s_load_dwordx2 s[{S_TAG}:{S_TAG+1}], s[{SRD_WS}:{SRD_WS+1}], s40")
    a("v_bfe_u32 v1, v0, 2, 3"); a("v_and_b32 v2, 3, v0"); a("v_lshlrev_b32 v2, 3, v2"); a("v_lshl_add_u32 v4, v1, 7, v2")
    a(f"s_lshl_b32 s40, s{S_CL}, 5"); a(f"s_lshl_b32 s41, s{S_KQ}, 3"); a("s_add_u32 s40, s40, s41")
    a("s_lshl_b32 s40, s40, 7"); a(f"s_add_u32 s43, s40, {hex(PFLAG)}")
    a("s_waitcnt lgkmcnt(0)")
    tag_hash()
    a(f"v_mov_b32 v2, s{S_TAG}"); a(f"v_mov_b32 v3, s{S_TAG+1}")
    a(f"s_mov_b32 s44, {GATE + 1}")
    a.lab("L_pb"); a("s_barrier"); a("s_sub_u32 s44, s44, 1"); a("s_cmp_lg_u32 s44, 0"); a("s_cbranch_scc1 L_pb")
    a(f"s_mov_b32 s44, {opt.spin}")
    a.lab("L_ppoll")
    a(f"buffer_load_dwordx2 v[8:9], v4, {srd(SRD_WS)}, s43 offen sc1")
    a("s_sub_u32 s44, s44, 1"); a("s_cmp_eq_u32 s44, 0"); a("s_cbranch_scc1 L_pgo")
    a("s_waitcnt vmcnt(0)")
    a("v_cmp_eq_u64 vcc, v[8:9], v[2:3]")
    a("s_cmp_eq_u64 vcc, exec"); a("s_cbranch_scc1 L_pgo")
    a("s_sleep 2"); a("s_branch L_ppoll")
    a.lab("L_pgo")
    a("s_barrier")
    a.lab("L_end")
    a("s_endpgm")

    a.lab("L_compute")
    mark = [len(a.L)]; rep = []
    def flush_passes():
        body = hazard_fix(auto_wait(a.L[mark[0]:]), report=rep)
        a.L = a.L[:mark[0]] + body
        mark[0] = len(a.L)
    if opt.prio: a(f"s_setprio {opt.prio}")
    a(f"s_lshr_b32 s{S_WM}, s{S_WAVE}, 1"); a(f"s_and_b32 s{S_WN}, s{S_WAVE}, 1")
    a("v_and_b32 v1, 15, v0"); a("v_lshrrev_b32 v2, 4, v0")
    a("v_lshrrev_b32 v3, 1, v1"); a("v_xor_b32 v4, v3, v2"); a("v_lshlrev_b32 v4, 4, v4"); a("v_lshl_add_u32 v4, v1, 7, v4")
    a(f"s_lshl_b32 s43, s{S_WAVE}, 12"); a("s_xor_b32 s42, s43, 4096")
    a(f"v_add_u32 v{V_AR}, s42, v4"); a(f"v_add_u32 v{V_AR+1}, s43, v4")
    a(f"v_xor_b32 v{V_AR+2}, 64, v{V_AR}"); a(f"v_xor_b32 v{V_AR+3}, 64, v{V_AR+1}")
    a("v_lshrrev_b32 v5, 1, v2"); a("v_xor_b32 v5, v5, v3"); a("v_lshlrev_b32 v5, 4, v5"); a("v_lshl_add_u32 v5, v1, 7, v5")
    a("v_and_b32 v6, 1, v2"); a("v_lshl_add_u32 v5, v6, 3, v5")
    a(f"s_lshl_b32 s44, s{S_WN}, 14"); a(f"s_add_u32 s44, s44, {KSLOT}")
    a("s_add_u32 s42, s42, s44"); a("s_add_u32 s43, s43, s44")
    a(f"v_add_u32 v{V_T}, s42, v5"); a(f"v_add_u32 v{V_T+1}, s43, v5")
    for bb in range(2):
        for uz in range(1, 4): a(f"v_xor_b32 v{V_T+4+3*bb+uz-1}, {32*uz}, v{V_T+bb}")
    a("v_bfe_u32 v5, v0, 2, 2"); a("v_lshl_add_u32 v4, v2, 3, v5"); a("v_lshlrev_b32 v4, 8, v4")
    a("v_and_b32 v3, 3, v0"); a("v_lshl_add_u32 v4, v3, 3, v4"); a("v_add_u32 v4, 16384, v4")
    a("v_lshlrev_b32 v5, 1, v5"); a("v_or_b32 v5, v5, v6")
    a(f"s_lshl_b32 s40, s{S_WN}, 2")
    for b in range(4):
        a(f"s_add_u32 s41, s40, {b}"); a("v_xor_b32 v3, s41, v5"); a(f"v_lshl_add_u32 v{V_AW+b}, v3, 5, v4")
    a(f"s_lshr_b32 s52, s{S_KQ}, 1"); a("s_lshl_b32 s52, s52, 12")
    a(f"s_lshl_b32 s53, s{S_KQ}, 10")
    a("v_lshlrev_b32 v7, 4, v0"); a(f"v_mov_b32 v{V_Z}, 0")
    a(f"s_mov_b32 s{S_UP}, 0x10000"); a(f"s_mov_b32 s{S_DN1}, 0xffff0000"); a(f"s_mov_b32 s{S_DN2}, 0xfffe0000"); a(f"s_mov_b32 s{S_C}, 0x3e0293ee")
    a(f"s_lshl_b32 s40, s{S_WM}, 13"); a("s_add_u32 s40, s40, s44")
    a(f"v_add_u32 v{V_T+10}, s40, v7"); a(f"v_xor_b32 v{V_T+11}, 0x4000, v{V_T+10}")
    a("s_waitcnt lgkmcnt(0)")
    a(f"s_lshl_b32 s40, s{S_CL}, 7")
    a(f"s_load_dwordx2 s[{S_TAG}:{S_TAG+1}], s[{SRD_WS}:{SRD_WS+1}], s40")
    a(f"s_lshl_b32 s40, s{S_CL}, 5"); a(f"s_lshl_b32 s41, s{S_KQ}, 3"); a("s_add_u32 s40, s40, s41")
    a(f"s_lshl_b32 s{S_PB}, s40, 13"); a(f"s_add_u32 s{S_PB}, s{S_PB}, {hex(PBUF)}")
    a(f"s_lshl_b32 s41, s{S_WAVE}, 11"); a("s_xor_b32 s42, s41, 2048")
    a(f"v_add_u32 v{V_T+2}, s42, v7"); a(f"v_add_u32 v{V_T+3}, s41, v7")
    a(f"s_add_u32 s40, s40, s{S_HQ}"); a("s_lshl_b32 s40, s40, 7"); a(f"s_lshl_b32 s41, s{S_WAVE}, 3"); a("s_add_u32 s40, s40, s41")
    a(f"s_add_u32 s{S_FL}, s40, {hex(PFLAG)}")
    a("s_waitcnt lgkmcnt(0)")
    tag_hash()
    a(f"v_mov_b32 v{V_TAG}, s{S_TAG}"); a(f"v_mov_b32 v{V_TAG+1}, s{S_TAG+1}")
    a("s_barrier")
    stamp()

    def rel(n): return (slot(n) & 1) * SLOT
    def upd(n):
        d = (slot(n + 1) >> 1) - (slot(n) >> 1)
        return {0: None, 1: S_UP, -1: S_DN1, -2: S_DN2}[d]
    def rdR(n, s, aa): return f"ds_read_b128 {vr(V_R+4*aa,4)}, v{V_AR + 2*s + (aa >> 1)} offset:{rel(n) + (aa & 1)*2048}"
    def rdW(n, s, b, z): return f"ds_read_b64_tr_b16 {vr(V_W + 16*s + 4*b + 2*z, 2)}, v{V_AW+b} offset:{rel(n) + s*8192 + z*1024}"
    WPOS = {(0,0): (0,0), (0,1): (0,1), (0,2): (1,0), (1,0): (1,1), (1,1): (2,0), (1,2): (2,1), (2,0): (3,0), (2,1): (3,1)}
    WAITPOS = {(0,0), (0,1), (0,2), (0,3), (2,0), (3,0)}
    def acc(aa, b): return vr(V_ACC + 16*aa + 4*b, 4)
    def item_gaps(n, zero, nxt, bar=True):
        G = []
        phase = 1 if n < 16 else 2
        for s in range(2):
            tk, ts = (n, 1) if s == 0 else (nxt, 0)
            for aa in range(4):
                for b in range(4):
                    post = []
                    W = vr(V_W + 16*s + 4*b, 4); R = vr(V_R + 4*aa, 4)
                    C = "0" if (zero and s == 0) else acc(aa, b)
                    m = f"{MF} {acc(aa,b)}, {W}, {R}, {C}" if phase == 1 else f"{MF} {acc(aa,b)}, {R}, {W}, {C}"
                    if tk is not None:
                        if (aa, b) in WPOS: post.append(rdW(tk, ts, *WPOS[(aa, b)]))
                        if b == 3: post.append(rdR(tk, ts, aa))
                    u = upd(n) if nxt is not None else None
                    if u is not None:
                        if s == 0 and aa == 3 and b < 3: post.append(f"v_add_u32 v{V_AW+b}, s{u}, v{V_AW+b}")
                        if s == 0 and aa == 2 and b == 2: post += [f"v_add_u32 v{V_AR}, s{u}, v{V_AR}", f"v_add_u32 v{V_AR+1}, s{u}, v{V_AR+1}"]
                        if s == 0 and aa == 3 and b == 2: post.append(f"v_add_u32 v{V_AW+3}, s{u}, v{V_AW+3}")
                        if s == 1 and aa == 3 and b < 2: post.append(f"v_add_u32 v{V_AR+2+b}, s{u}, v{V_AR+2+b}")
                    if bar and s == 0 and aa == 3 and b == 3: post.append("s_barrier")
                    G.append([1 if (aa, b) in WAITPOS else 0, m, post])
        return G
    def load_of(G, i): return len(G[i][2]) + (G[i+1][0] if i + 1 < len(G) else 0)
    def inject(G, start, opsl, cap=2, onelds=True):
        i = start
        for op in opsl:
            while i < len(G) and (load_of(G, i) >= cap or (onelds and op.startswith("ds_") and any(x.startswith("ds_") for x in G[i][2]))): i += 1
            if i >= len(G): G[-1][2].append(op); i = len(G) - 1; continue
            G[i][2].append(op)
        return i
    def emitG(G):
        for w, m, post in G:
            a(m)
            for x in post: a(x)
    kf = lambda bb, kt, u: V_KF + 16*bb + 8*kt + 4*u
    sp = lambda bb, kt, qt: V_SP + 16*bb + 8*kt + 4*qt
    kaddr = lambda bb, u, z: (V_T + bb) if (u == 0 and z == 0) else (V_T + 4 + 3*bb + 2*u + z - 1)
    kreads = [f"ds_read_b64 {vr(kf(bb,kt,u) + 2*z, 2)}, v{kaddr(bb,u,z)} offset:{kt*2048}" for bb in range(2) for kt in range(2) for u in range(2) for z in range(2)]
    qcvt = lambda aa: [f"v_cvt_pk_bf16_f32 v{V_BF+i}, v{V_ACC+2*i}, v{V_ACC+2*i+1}" for i in range(8*aa, 8*aa+8)]
    def smf(bb, Cin=None):
        r = []
        for u in range(2):
            for kt in range(2):
                for qt in range(2):
                    C = (("0" if Cin is None else vr(Cin + 8*kt + 4*qt, 4)) if u == 0 else vr(sp(bb,kt,qt), 4))
                    r.append(f"{MF} {vr(sp(bb,kt,qt),4)}, {vr(kf(bb,kt,u),4)}, {vr(V_BF + 8*(2*bb+qt) + 4*u, 4)}, {C}")
        return r

    for (aa, b) in [(x, y) for x in range(4) for y in range(4)]:
        if (aa, b) in WPOS: a(rdW(0, 0, *WPOS[(aa, b)]))
        if b == 3: a(rdR(0, 0, aa))
    kpos = max(KAT) + 1
    for n in range(16):
        G = item_gaps(n, n == 0, n + 1 if n < 15 else None, bar=(n < 15))
        if n == kpos: inject(G, 0, kreads[:8])
        if n == kpos + 1: inject(G, 0, kreads[8:])
        if n == 15:
            u = upd(15)
            inject(G, 16, [f"v_add_u32 v{r}, s{u}, v{r}" for r in list(range(V_AR, V_AR+4)) + list(range(V_AW, V_AW+4))] +
                   [f"v_xor_b32 v{r}, s52, v{r}" for r in range(V_AR, V_AR+4)] +
                   [f"v_xor_b32 v{V_T+4}, s53, v{V_T+2}", f"v_xor_b32 v{V_T+6}, s53, v{V_T+3}", f"v_xor_b32 v{V_T+5}, 0x400, v{V_T+4}", f"v_xor_b32 v{V_T+7}, 0x400, v{V_T+6}"])
            inject(G, 24, qcvt(0), cap=3); inject(G, 28, qcvt(1), cap=3)
        emitG(G)
    stamp()
    a.c("---- partial scores of the partner's batch")
    G = [[0, m, []] for m in smf(0)]
    inject(G, 0, qcvt(2) + qcvt(3))
    emitG(G)
    RXS = V_KF
    xw = [f"ds_write_b128 v{V_T+10}, {vr(V_SP + 4*j, 4)} offset:{j*1024}" for j in range(4)]
    xr = [f"ds_read_b128 {vr(RXS + 4*j, 4)}, v{V_T+11} offset:{j*1024}" for j in range(4)]
    S = lambda kt, qt, i: f"v{sp(1,kt,qt) + i}"
    sm = []
    M = [1, 3]; T = [2, 4]
    for qt in range(2):
        m = f"v{M[qt]}"
        sm += [f"v_max3_f32 {m}, {S(0,qt,0)}, {S(0,qt,1)}, {S(0,qt,2)}", f"v_max3_f32 {m}, {m}, {S(0,qt,3)}, {S(1,qt,0)}",
               f"v_max3_f32 {m}, {m}, {S(1,qt,1)}, {S(1,qt,2)}", f"v_max_f32 {m}, {m}, {S(1,qt,3)}"]
    def xl(op):
        o = []
        for sw in ("v_permlane16_swap_b32", "v_permlane32_swap_b32"):
            o += ["v_mov_b32 v2, v1", "v_mov_b32 v4, v3", f"{sw} v1, v2", f"{sw} v3, v4", f"{op} v1, v1, v2", f"{op} v3, v3, v4"]
        return o
    sm += xl("v_max_f32")
    sm += [f"v_mul_f32 v1, s{S_C}, v1", f"v_mul_f32 v3, s{S_C}, v3"]
    idx8 = [(kt, i) for kt in range(2) for i in range(4)]
    for qt in range(2):
        for kt, i in idx8: sm.append(f"v_fma_f32 {S(kt,qt,i)}, {S(kt,qt,i)}, s{S_C}, -v{M[qt]}")
    for qt in range(2):
        for kt, i in idx8: sm.append(f"v_exp_f32 {S(kt,qt,i)}, {S(kt,qt,i)}")
    for qt in range(2):
        m = f"v{M[qt]}"; t = f"v{T[qt]}"
        sm += [f"v_add_f32 {m}, {S(0,qt,0)}, {S(0,qt,1)}", f"v_add_f32 {t}, {S(0,qt,2)}, {S(0,qt,3)}",
               f"v_add_f32 {m}, {m}, {S(1,qt,0)}", f"v_add_f32 {t}, {t}, {S(1,qt,1)}",
               f"v_add_f32 {m}, {m}, {S(1,qt,2)}", f"v_add_f32 {t}, {t}, {S(1,qt,3)}", f"v_add_f32 {m}, {m}, {t}"]
    sm += xl("v_add_f32")
    sm += ["v_rcp_f32 v1, v1", "v_rcp_f32 v3, v3"]
    for qt in range(2):
        for kt, i in idx8: sm.append(f"v_mul_f32 {S(kt,qt,i)}, {S(kt,qt,i)}, v{M[qt]}")
    for qt in range(2):
        for kt in range(2):
            for h in range(2): sm.append(f"v_cvt_pk_bf16_f32 v{V_P + 4*qt + 2*kt + h}, {S(kt,qt,2*h)}, {S(kt,qt,2*h+1)}")
    sm += [f"s_lshl_b32 s40, s{S_HQ}, 13", f"s_add_u32 s40, s40, s{S_PB}",
           f"buffer_store_dwordx4 {vr(V_P,4)}, v{V_T+3}, {srd(SRD_WS)}, s40 offen sc1",
           f"buffer_store_dwordx4 {vr(V_P+4,4)}, v{V_T+3}, {srd(SRD_WS)}, s40 offen offset:1024 sc1"]
    flag_ops = ["s_waitcnt vmcnt(0)", f"buffer_store_dwordx2 {vr(V_TAG,2)}, v{V_Z}, {srd(SRD_WS)}, s{S_FL} offen sc1"]

    bf = lambda bb, nt: V_BF + 16*bb + 4*nt
    out = lambda bb, qt, nt: V_OUT + 16*(2*bb + qt) + 4*nt
    def cvt_ops(bb, nt):
        t0 = V_ACC + 16*(2*bb) + 4*nt; t1 = V_ACC + 16*(2*bb+1) + 4*nt; d = bf(bb, nt)
        return [f"v_cvt_pk_bf16_f32 v{d}, v{t0}, v{t0+1}", f"v_cvt_pk_bf16_f32 v{d+1}, v{t0+2}, v{t0+3}",
                f"v_cvt_pk_bf16_f32 v{d+2}, v{t1}, v{t1+1}", f"v_cvt_pk_bf16_f32 v{d+3}, v{t1+2}, v{t1+3}"]
    def pv_m(bb, qt, nt, P, zero):
        o = vr(out(bb,qt,nt), 4)
        return f"{MF} {o}, {vr(bf(bb,nt),4)}, {vr(P + 8*bb + 4*qt, 4)}, {'0' if zero else o}"
    def loadP(i, P):
        if opt.nopv: return []
        return [f"s_bfe_u32 s40, s{S_HT}, {hex(4*i | (4 << 16))}", "s_lshl_b32 s40, s40, 13", f"s_add_u32 s40, s40, s{S_PB}"] + \
               [f"buffer_load_dwordx4 {vr(P + 8*bb + 4*qt, 4)}, v{V_T+4+2*bb+qt}, {srd(SRD_WS)}, s40 offen sc1" for bb in range(2) for qt in range(2)]
    PN = V_W
    order = [(bb, nt) for bb in range(2) for nt in range(4)]
    def boundary(i):
        G = []
        if opt.nopv: return G
        prev = []
        for bb, nt in order:
            G.append([0, pv_m(bb, 0, nt, V_P, i == 1), prev[2:]])
            prev = cvt_ops(bb, nt)
            G.append([0, pv_m(bb, 1, nt, V_P, i == 1), prev[:2]])
        G[-1][2] += prev[2:]
        return G
    for x in xw: a(x)
    a(f"ds_write_b64 v{V_T+10}, {vr(V_TAG,2)} offset:4096")
    flush_passes()
    a(f"s_mov_b32 s44, {opt.spin}")
    a.lab("L_spoll")
    a(f"ds_read_b64 v[2:3], v{V_T+11} offset:4096")
    a("s_sub_u32 s44, s44, 1"); a("s_cmp_eq_u32 s44, 0")
    a("s_waitcnt lgkmcnt(0)")
    a("s_cbranch_scc1 L_sgo")
    a(f"v_cmp_ne_u64 vcc, v[2:3], {vr(V_TAG,2)}")
    a("s_cbranch_vccnz L_spoll")
    a.lab("L_sgo")
    mark[0] = len(a.L)
    for x in xr: a(x)
    for m in smf(1, RXS): a(m)
    nb = opt.smbar
    for x in sm[:nb]: a(x)
    a("s_barrier")
    for (aa, b) in [(x, y) for x in range(4) for y in range(4)]:
        if (aa, b) in WPOS: a(rdW(16, 0, *WPOS[(aa, b)]))
        if b == 3: a(rdR(16, 0, aa))
    npre = max(nb, len(sm) - opt.smpost)
    for x in sm[nb:npre]: a(x)
    stamp()
    G01 = item_gaps(16, True, 17) + item_gaps(17, False, 18)
    b0 = len(G01)
    cv0 = [x for bb, nt in order for x in cvt_ops(bb, nt)]
    G01[-1][2] += cv0
    G01 += item_gaps(18, True, 19) + item_gaps(19, False, 20)
    pos = inject(G01, 0, sm[npre:], cap=opt.cap)
    fp = pos + opt.flagdelay
    barp = b0 + 15 + 32*opt.pl
    assert fp <= barp, (fp, barp)
    if G01[fp][2] and G01[fp][2][-1] == "s_barrier": G01[fp][2][-1:-1] = flag_ops
    else: G01[fp][2].extend(flag_ops)
    inject(G01, barp + 1, loadP(0, V_P))
    if opt.hstamps: G01[b0-1][2].append(stamp_s())
    emitG(G01)
    if opt.hstamps: stamp()
    emitG(boundary(1))
    if opt.hstamps: stamp()
    for i in range(2, 8):
        nA, nB = 16 + 2*i, 17 + 2*i
        G = item_gaps(nA, True, nB) + item_gaps(nB, False, nB + 1 if i < 7 else None, bar=(i < 7))
        st = 16 + 32*opt.pl if not (i == 7 and opt.pl) else 32
        if i > 2 and opt.pl: st = 16
        inject(G, st, loadP(i - 1, V_P))
        if i == 7: inject(G, 48, loadP(7, PN))
        if i == 7:
            pass
        emitG(G)
        if opt.hstamps: stamp()
        emitG(boundary(i))
        if opt.hstamps: stamp()
    a(f"s_lshl_b32 s40, s{S_CL}, 5"); a(f"s_add_u32 s40, s40, s{S_IDX}")
    a(f"s_lshl_b32 s41, s{S_KQ}, 2"); a(f"s_add_u32 s41, s41, s{S_WAVE}")
    a("s_lshl_b32 s43, s41, 12"); a(f"s_add_u32 s43, s43, {hex(XBUF)}")
    for t in (1, 2, 3):
        a(f"s_xor_b32 s42, s{S_KQ}, {t}"); a("s_lshl_b32 s42, s42, 3"); a("s_add_u32 s42, s42, s40")
        a(f"s_lshl_b32 s{52+t}, s42, 7")
        a("s_lshl_b32 s42, s42, 16"); a(f"s_add_u32 s{44+t}, s42, s43")
    a("s_lshl_b32 s43, s41, 3"); a(f"s_add_u32 s43, s43, {hex(XFLAG)}")
    for t in (1, 2, 3): a(f"s_add_u32 s{52+t}, s{52+t}, s43")
    SX = V_ACC
    tagged = opt.xmode != "flag"
    DPOS = [0, 1, 2, 4, 5, 6, 8, 9] if tagged else list(range(8))
    NG = 3 if tagged else 2
    tags = [f"v_mov_b32 v{SX + 16*t + p}, v{V_TAG + (1 if p == 10 else 0)}" for t in (1, 2, 3) for p in (3, 7, 10, 11)] if tagged else []
    xflag = lambda t: f"buffer_store_dwordx2 {vr(V_TAG,2)}, v{V_Z}, {srd(SRD_WS)}, s{52+t} offen sc1"
    def send(t):
        o = [f"v_cvt_pk_bf16_f32 v{SX + 16*t + DPOS[j]}, v{V_OUT+16*t+2*j}, v{V_OUT+16*t+2*j+1}" for j in range(8)]
        st = [f"buffer_store_dwordx4 {vr(SX + 16*t + 4*g, 4)}, v7, {srd(SRD_WS)}, s{44+t} offen offset:{g*1024} sc1" for g in range(NG)]
        if not tagged: return o[:4] + st[:1] + o[4:] + st[1:]
        return o[:3] + st[:1] + o[3:6] + st[1:2] + o[6:] + st[2:] + ([xflag(t)] if opt.xmode == "opt" else [])
    G = [[0, pv_m(t >> 1, t & 1, nt, PN, False), []] for t in (1, 2, 3, 0) for nt in range(4)]
    inject(G, 0, tags)
    inject(G, 6, send(1) + send(2) + send(3), cap=3)
    emitG(G)
    stamp()
    if opt.xmode == "flag":
        for t in (1, 2, 3):
            a(f"s_waitcnt vmcnt({2*(3-t) + (t-1)})"); a(xflag(t))
    a(f"s_lshl_b32 s42, s{S_KQ}, 3"); a("s_add_u32 s42, s42, s40")
    a(f"s_lshl_b32 s56, s42, 7"); a(f"s_lshl_b32 s43, s{S_WAVE}, 3"); a("s_add_u32 s56, s56, s43"); a(f"s_add_u32 s56, s56, {hex(XFLAG)}")
    a("v_and_b32 v3, 3, v0"); a("v_min_u32 v3, 2, v3"); a(f"v_add_u32 v3, s{S_KQ}, v3"); a("v_add_u32 v3, 1, v3"); a("v_and_b32 v3, 3, v3"); a("v_lshlrev_b32 v3, 5, v3")
    a("s_lshl_b32 s42, s42, 16"); a(f"s_lshl_b32 s43, s{S_WAVE}, 12"); a("s_add_u32 s42, s42, s43"); a(f"s_add_u32 s42, s42, {hex(XBUF)}")
    for j in range(3):
        a(f"s_add_u32 s43, s{S_KQ}, {j+1}"); a("s_and_b32 s43, s43, 3"); a("s_lshl_b32 s43, s43, 14"); a(f"s_add_u32 s{51+j}, s43, s42")
    a("v_lshrrev_b32 v4, 3, v0"); a("v_lshlrev_b32 v4, 12, v4"); a("v_and_b32 v5, 7, v0"); a("v_lshl_add_u32 v4, v5, 4, v4")
    a(f"s_lshr_b32 s41, s{S_KQ}, 1"); a(f"s_xor_b32 s41, s41, s{S_WAVE}"); a("s_xor_b32 s41, s41, 1"); a("s_lshl_b32 s41, s41, 17")
    a(f"s_lshl_b32 s40, s{S_RB}, 19"); a("s_add_u32 s40, s40, s41")
    a(f"s_and_b32 s41, s{S_KQ}, 1"); a("s_lshl_b32 s41, s41, 16"); a("s_add_u32 s40, s40, s41")
    a(f"s_lshl_b32 s41, s{S_BR}, 11"); a("s_add_u32 s40, s40, s41")
    a(f"s_mul_i32 s41, s{S_WN}, {opt.wox}"); a(f"s_xor_b32 s41, s41, s{S_IDX}"); a("s_lshl_b32 s41, s41, 8"); a("s_add_u32 s40, s40, s41")
    a(f"s_lshl_b32 s41, s{S_WN}, 7"); a("s_add_u32 s40, s40, s41")
    a("s_add_u32 s41, s40, 0x8000")
    a(f"s_lshl_b32 s42, s{S_WAVE}, 11"); a(f"s_add_u32 s42, s42, {SLOT}")
    a("v_and_b32 v1, 15, v0"); a("v_lshrrev_b32 v2, 5, v0"); a("v_and_b32 v5, 7, v0"); a("v_xor_b32 v2, v2, v5"); a("v_lshlrev_b32 v2, 4, v2")
    a("v_lshl_add_u32 v1, v1, 7, v2"); a("v_bfe_u32 v2, v0, 4, 1"); a("v_lshl_add_u32 v1, v2, 3, v1"); a("v_add_u32 v1, s42, v1")
    for nt in range(1, 4): a(f"v_xor_b32 v{9+nt}, {32*nt}, v1")
    a("v_lshrrev_b32 v2, 3, v0"); a("v_xor_b32 v5, v5, v2"); a("v_lshlrev_b32 v5, 4, v5"); a("v_lshl_add_u32 v2, v2, 7, v5"); a("v_add_u32 v2, s42, v2")
    a(f"s_mov_b32 s44, {opt.spin}")
    flush_passes()
    if opt.verbose:
        for r in rep: print("pad", r)
    RX = V_BF
    def ld(j, g): a(f"buffer_load_dwordx4 {vr(RX + 12*j + 4*g, 4)}, v7, {srd(SRD_WS)}, s{51+j} offen offset:{g*1024} sc1")
    def chk(j, gs):
        regs = [(RX + 12*j + 4*g + 3, V_TAG) for g in gs] + ([(RX + 12*j + 10, V_TAG + 1)] if 2 in gs else [])
        for k, (r, t) in enumerate(regs): a(f"v_xor_b32 v{V_R+k}, v{r}, v{t}")
        for k in range(1, len(regs)): a(f"v_or_b32 v{V_R}, v{V_R}, v{V_R+k}")
        a(f"v_cmp_ne_u32 vcc, 0, v{V_R}")
    if opt.xmode != "tag":
        a.lab("L_xpoll")
        a(f"buffer_load_dwordx2 v[8:9], v3, {srd(SRD_WS)}, s56 offen sc1")
        a("s_sub_u32 s44, s44, 1"); a("s_cmp_eq_u32 s44, 0")
        a("s_waitcnt vmcnt(0)")
        a("s_cbranch_scc1 L_xrd")
        a(f"v_cmp_ne_u64 vcc, v[8:9], {vr(V_TAG,2)}")
        a("s_cbranch_vccnz L_xpoll")
        a.lab("L_xrd")
        stamp()
    for j in range(3):
        for g in range(NG): ld(j, g)
    for j in range(3 if tagged else 0):
        a(f"s_waitcnt vmcnt({6 - 3*j})")
        chk(j, (0, 1, 2))
        a(f"s_cbranch_vccz L_xok{j}")
        a.lab(f"L_xp{j}")
        a(f"s_sleep {opt.xsleep}")
        ld(j, 2)
        a("s_sub_u32 s44, s44, 1"); a("s_cmp_eq_u32 s44, 0")
        a("s_waitcnt vmcnt(0)")
        a(f"s_cbranch_scc1 L_xok{j}")
        chk(j, (2,))
        a(f"s_cbranch_vccnz L_xp{j}")
        ld(j, 0); ld(j, 1)
        a("s_waitcnt vmcnt(0)")
        chk(j, (0, 1))
        a(f"s_cbranch_vccnz L_xp{j}")
        a.lab(f"L_xok{j}")
    a.lab("L_xgo")
    if opt.xmode == "tag": stamp()
    for j in range(3):
        if not tagged: a(f"s_waitcnt vmcnt({4 - 2*j})")
        for i in range(8):
            r = RX + 12*j + DPOS[i]
            a(f"v_lshlrev_b32 v5, 16, v{r}"); a(f"v_and_b32 v6, 0xffff0000, v{r}")
            a(f"v_add_f32 v{V_OUT+2*i}, v{V_OUT+2*i}, v5"); a(f"v_add_f32 v{V_OUT+2*i+1}, v{V_OUT+2*i+1}, v6")
    for i in range(8): a(f"v_cvt_pk_bf16_f32 v{V_R+i}, v{V_OUT+2*i}, v{V_OUT+2*i+1}")
    for nt in range(4): a(f"ds_write_b64 v{9+nt if nt else 1}, {vr(V_R+2*nt,2)}")
    a(f"ds_read_b128 {vr(V_R+8,4)}, v2"); a(f"ds_read_b128 {vr(V_R+12,4)}, v2 offset:1024")
    a("s_waitcnt lgkmcnt(1)")
    a(f"buffer_store_dwordx4 {vr(V_R+8,4)}, v4, {srd(SRD_OUT)}, s40 offen {opt.outflags}")
    a("s_waitcnt lgkmcnt(0)")
    a(f"buffer_store_dwordx4 {vr(V_R+12,4)}, v4, {srd(SRD_OUT)}, s41 offen {opt.outflags}")
    a(f"s_or_b32 s40, s{S_KQ}, s{S_IDX}"); a(f"s_or_b32 s40, s40, s{S_WAVE}"); a("s_cmp_lg_u32 s40, 0"); a("s_cbranch_scc1 L_noep")
    a(f"s_lshl_b32 s40, s{S_CL}, 7")
    a(f"buffer_store_dwordx2 {vr(V_TAG,2)}, v{V_Z}, {srd(SRD_WS)}, s40 offen {opt.outflags}")
    a.lab("L_noep")
    if opt.fixdur:
        a.lab("L_fix")
        a("s_memrealtime s[92:93]"); a("s_waitcnt lgkmcnt(0)"); a("s_sub_u32 s92, s92, s98")
        a(f"s_cmp_lt_u32 s92, {opt.fixdur}"); a("s_cbranch_scc1 L_fix")
    if opt.stamps:
        a("s_waitcnt vmcnt(0)")
        stamp()
        a(f"s_cmp_lg_u32 s{S_WAVE}, 0"); a("s_cbranch_scc1 L_end2")
        a("s_waitcnt lgkmcnt(0)")
        n = nst[0]
        a(f"s_mul_i32 s40, s2, {n*8}"); a("s_add_u32 s40, s40, 0x8000000")
        a(f"s_add_u32 s42, s{SRD_WS}, s40"); a(f"s_addc_u32 s43, s{SRD_WS+1}, 0")
        for i in range(n):
            a(f"v_mov_b32 v8, s{S_ST+2*i}"); a(f"v_mov_b32 v9, s{S_ST+2*i+1}")
            a(f"global_store_dwordx2 v{V_Z}, v[8:9], s[42:43] offset:{i*8}"); a("s_nop 1")
        a.lab("L_end2")
    a("s_endpgm")
    a.lab("L_code_end")
    tail = ['.section .rodata,"a"', ".p2align 6", f".amdhsa_kernel {NAME}_kernel"]
    tail += ["  .amdhsa_" + l for l in ("next_free_vgpr 256", "next_free_sgpr 102", "accum_offset 256", "group_segment_fixed_size 0", "kernarg_size 104",
              "user_sgpr_count 2", "user_sgpr_kernarg_segment_ptr 1", "system_sgpr_workgroup_id_x 1")]
    tail += [".end_amdhsa_kernel"]
    txt = "\n".join(head + [(x if x.endswith(":") else "    " + x) for x in a.L] + tail) + "\n"
    return txt, nst[0], rep

def parse(argv):
    ap = argparse.ArgumentParser()
    ap.add_argument("-o", default="cdna_kernels/" + NAME + ".s")
    for f in ("stamps", "cyc", "lstamps", "nodma", "nolds", "nomfma", "samek", "hstamps", "verbose", "pairs", "nopv"): ap.add_argument("--" + f, action="store_true")
    ap.add_argument("--prio", type=int, default=0)
    ap.add_argument("--spin", type=int, default=100000)
    ap.add_argument("--fixdur", type=int, default=0)
    ap.add_argument("--q0", type=int, default=2)
    ap.add_argument("--q2", type=int, default=4)
    ap.add_argument("--pl", type=int, default=0)
    ap.add_argument("--cap", type=int, default=2)
    ap.add_argument("--keeppos", type=int, default=24)
    ap.add_argument("--flagdelay", type=int, default=40)
    ap.add_argument("--p1", default="4")
    ap.add_argument("--p2", default="8")
    ap.add_argument("--p3", default="12")
    ap.add_argument("--pm", default="4")
    ap.add_argument("--vt", default="-1")
    ap.add_argument("--smbar", type=int, default=60)
    ap.add_argument("--smpost", type=int, default=0)
    ap.add_argument("--xmode", default="flag")
    ap.add_argument("--ctouch", type=int, default=0)
    ap.add_argument("--idxx", type=int, default=0)
    ap.add_argument("--hqx", type=int, default=0)
    ap.add_argument("--kat", default="")
    ap.add_argument("--wox", type=int, default=0)
    ap.add_argument("--ns2", type=int, default=5)
    ap.add_argument("--kbyb", type=int, default=1)
    ap.add_argument("--xt", type=int, default=-1)
    ap.add_argument("--xsleep", type=int, default=1)
    ap.add_argument("--kflags", default="")
    ap.add_argument("--outflags", default="sc1")
    return ap.parse_args(argv)

if __name__ == "__main__":
    opt = parse(sys.argv[1:])
    t, n, rep = gen(opt)
    open(opt.o, "w").write(t)
    print("wrote", opt.o, "stamps", n, "lines", t.count("\n"), "pads", len(rep))
```

```python
import sys, argparse
from passes import auto_wait, hazard_fix
NAME = "concat_heads__mha_block_cached__mha_block_cached__near_ridge"

class Asm:
    def __init__(self): self.L = []; self.drop = []
    def __call__(self, s):
        for pat in self.drop:
            if pat in s: return
        self.L.append(s)
    def lab(self, s): self.L.append(s + ":")
    def c(self, s): self.L.append("; " + s)

EPOCH = 0; PFLAG = 4096; XFLAG = 65536; PBUF = 0x100000; XBUF = 0x400000; WS_REC = 0x1400000
SLOT = 32768; KSLOT = 4 * SLOT
S_BR, S_KQ, S_RB, S_IDX, S_WAVE = 3, 4, 5, 6, 7
SRD_X, SRD_K, SRD_V, SRD_WQ, SRD_WO, SRD_WS, SRD_OUT = 8, 12, 16, 20, 24, 28, 32
S_TAG = 36; S_CL = 38; S_HQ = 39
S_C = 50; S_PB = 49; S_OFFR = 47; S_OFFW = 48; S_W = 45
S_WM, S_WN = 56, 57; S_UP = 58; S_DN1 = 59; S_FL = 60; S_DN2 = 61
S_ST = 62; S_HT = 46
def srd(b): return f"s[{b}:{b+3}]"
def vr(b, n): return f"v[{b}:{b+n-1}]"
V_AR = 8; V_AW = 12; V_R = 16; V_W = 32; V_BF = 64; V_P = 96; V_TAG = 112; V_Z = 114; V_T = 115
V_ACC = 128; V_OUT = 192; V_KF = 192; V_SP = 224
MF = "v_mfma_f32_16x16x32_bf16"
NS2 = [5]
def slot(n): return n % 4 if n < 16 else (n - 16) % NS2[0]

def gen(opt):
    a = Asm()
    NS2[0] = opt.ns2
    if opt.nodma: a.drop.append(" lds")
    if opt.nolds: a.drop += ["ds_read_b128 v[1", "ds_read_b128 v[2", "ds_read_b64_tr"]
    if opt.nomfma: a.drop += ["v_mfma"]
    head = ["; Fused double MHA block: Q-proj + scores + softmax | V*Wo + P*(V*Wo) | split-K reduce-scatter (gfx950)",
            f"; @launch grid=(256,1,1) block=(512,1,1) lds={SLOT*5}",
            '.amdgcn_target "amdgcn-amd-amdhsa--gfx950"', ".text", f".globl {NAME}_kernel", ".p2align 8", f".type {NAME}_kernel,@function"]
    a.lab(f"{NAME}_kernel")
    nst = [0]
    def stamp_s():
        if not opt.stamps or nst[0] >= 20: return None
        r = S_ST + 2 * nst[0]; nst[0] += 1
        return f"{'s_memtime' if opt.cyc else 's_memrealtime'} s[{r}:{r+1}]"
    def stamp():
        if opt.pairs:
            opt.cyc = False; a(stamp_s()); opt.cyc = True; a(stamp_s()); return
        s = stamp_s()
        if s: a(s)
    stamp()
    if opt.fixdur or opt.lstamps: a("s_memrealtime s[98:99]")
    a("s_cmp_ge_u32 s2, 256"); a("s_cbranch_scc1 L_end")
    a(f"s_bfe_u32 s{S_BR}, s2, 0x10002")
    a(f"s_mul_i32 s41, s{S_BR}, 40")
    a("s_add_u32 s42, s0, s41"); a("s_addc_u32 s43, s1, 0")
    for b, o in ((SRD_X, 0), (SRD_WQ, 24), (SRD_K, 8), (SRD_V, 16), (SRD_WO, 32)): a(f"s_load_dwordx2 s[{b}:{b+1}], s[42:43], {o}")
    a(f"s_load_dwordx2 s[{SRD_WS}:{SRD_WS+1}], s[0:1], 96")
    a(f"s_load_dwordx2 s[{SRD_OUT}:{SRD_OUT+1}], s[0:1], 80")
    a("v_lshrrev_b32 v1, 6, v0"); a("v_and_b32 v0, 63, v0")
    a(f"s_and_b32 s{S_KQ}, s2, 3")
    a(f"v_readfirstlane_b32 s{S_WAVE}, v1")
    a(f"s_lshr_b32 s{S_RB}, s2, 6"); a(f"s_bfe_u32 s{S_IDX}, s2, 0x30003")
    if opt.idxx: a(f"s_xor_b32 s{S_IDX}, s{S_IDX}, {opt.idxx}")
    a(f"s_lshl_b32 s{S_CL}, s{S_BR}, 2"); a(f"s_add_u32 s{S_CL}, s{S_CL}, s{S_RB}")
    a(f"s_lshl_b32 s{S_HQ}, s{S_RB}, 1"); a(f"s_add_u32 s{S_HQ}, s{S_HQ}, s{S_IDX}")
    if opt.hqx: a(f"s_add_u32 s{S_HQ}, s{S_HQ}, {opt.hqx}")
    a(f"s_and_b32 s{S_HQ}, s{S_HQ}, 7")
    for b, n in ((SRD_X, 0x100000), (SRD_WQ, 0x800000), (SRD_K, 0x400000), (SRD_V, 0x400000), (SRD_WO, 0x800000), (SRD_WS, WS_REC), (SRD_OUT, 0x200000)):
        a(f"s_mov_b32 s{b+2}, {hex(n)}"); a(f"s_mov_b32 s{b+3}, 0x20000")
    PMS = list(map(int, opt.pm.split(",")))
    def h_table(pm):
        seq = []; r1 = [2, 4, 6]; r2 = [3, 5, 7]
        for i in range(8):
            if i == 0: seq.append(0)
            elif i == pm: seq.append(1)
            elif r1 and (i < pm or True) and (i < pm or r1): seq.append(r1.pop(0))
            else: seq.append(r2.pop(0))
        return seq
    ht = [sum(x << (4*i) for i, x in enumerate(h_table(pm))) for pm in PMS]
    a(f"s_mov_b32 s{S_HT}, {hex(ht[0])}")
    for w in range(1, len(PMS)):
        if opt.pmkey: a(f"s_add_u32 s41, s{S_IDX}, s2"); a(f"s_and_b32 s41, s41, {len(PMS)-1}")
        else: a(f"s_and_b32 s41, s{S_IDX}, {len(PMS)-1}")
        a(f"s_cmp_eq_u32 s41, {w}"); a(f"s_cselect_b32 s{S_HT}, {hex(ht[w])}, s{S_HT}")
    a(f"s_mul_i32 s41, s{S_HQ}, 0x11111111"); a(f"s_add_u32 s{S_HT}, s{S_HT}, s41"); a(f"s_and_b32 s{S_HT}, s{S_HT}, 0x77777777")
    a(f"s_cmp_lt_u32 s{S_WAVE}, 4"); a("s_cbranch_scc1 L_compute")
    a(f"s_cmp_ge_u32 s{S_WAVE}, 6"); a("s_cbranch_scc1 L_aux")

    a.c("---- loader waves")
    a(f"s_sub_u32 s40, s{S_WAVE}, 4")
    a("v_lshrrev_b32 v3, 4, v0"); a("v_and_b32 v2, 15, v0")
    a("v_lshlrev_b32 v4, 2, v3"); a("v_xor_b32 v2, v2, v4"); a("v_xor_b32 v5, 2, v2")
    a("v_lshlrev_b32 v2, 4, v2"); a("v_lshlrev_b32 v5, 4, v5")
    a("s_lshl_b32 s41, s40, 2"); a("v_add_u32 v1, s41, v3")
    a("v_lshl_add_u32 v12, v1, 13, v2"); a("v_lshl_add_u32 v13, v1, 13, v5")
    a("v_lshl_add_u32 v14, v1, 11, v2"); a("v_lshl_add_u32 v15, v1, 11, v5")
    if opt.wox:
        a(f"s_xor_b32 s42, s{S_IDX}, {opt.wox}"); a(f"s_sub_u32 s42, s42, s{S_IDX}"); a("s_lshl_b32 s42, s42, 8")
        a("v_bfe_u32 v6, v2, 7, 1"); a("v_mul_lo_u32 v6, v6, s42"); a(f"s_lshl_b32 s42, s{S_IDX}, 8"); a("v_add_u32 v6, s42, v6")
        a("v_add_u32 v14, v14, v6"); a("v_add_u32 v15, v15, v6")
    a("v_lshrrev_b32 v1, 3, v0"); a("v_and_b32 v2, 7, v0")
    a("v_add_u32 v4, s41, v3"); a("v_xor_b32 v2, v2, v4"); a("v_lshlrev_b32 v2, 4, v2")
    a("s_lshl_b32 s41, s40, 3"); a("v_add_u32 v1, s41, v1")
    a("v_lshl_add_u32 v10, v1, 11, v2"); a("v_lshl_add_u32 v11, v1, 8, v2")
    a(f"s_lshl_b32 s{S_W}, s40, 10")
    a(f"s_lshl_b32 s50, s{S_RB}, 2"); a(f"s_lshl_b32 s51, s{S_HQ}, 1"); a("s_add_u32 s50, s50, s51")
    a(f"s_lshl_b32 s52, s{S_RB}, 18")
    a(f"s_lshl_b32 s51, s{S_KQ}, 3"); a(f"s_add_u32 s51, s51, s{S_HQ}")
    a("s_lshl_b32 s53, s51, 8")
    a(f"s_lshl_b32 s56, s{S_RB}, 20"); a("s_lshl_b32 s41, s51, 13"); a("s_add_u32 s57, s56, s41")
    a(f"s_lshl_b32 s41, s{S_KQ}, 16"); a("s_add_u32 s58, s56, s41")
    a(f"s_lshl_b32 s59, s{S_KQ}, 21")
    if not opt.wox: a(f"s_lshl_b32 s41, s{S_IDX}, 8"); a("s_add_u32 s59, s59, s41")
    a("v_lshlrev_b32 v16, 7, v0")
    a("s_lshl_b32 s61, s40, 18")
    a("v_lshlrev_b32 v17, 11, v0")
    a("s_add_u32 s60, s50, 1"); a("s_and_b32 s60, s60, 15"); a("s_lshl_b32 s60, s60, 7"); a("s_lshl_b32 s41, s40, 17"); a("s_add_u32 s60, s60, s41")
    if opt.lstamps: a("s_memrealtime s[92:93]")
    def lst():
        if opt.lstamps:
            a("s_memrealtime s[92:93]"); a("s_waitcnt lgkmcnt(0)"); a("s_mov_b32 m0, s94"); a("v_writelane_b32 v30, s92, m0"); a("s_add_u32 s94, s94, 1")
    def dma(vo, sr, sbase, lit, ldsoff, fl=""):
        a(f"s_add_u32 m0, s{S_W}, {ldsoff}")
        a(f"s_add_u32 s41, s{sbase}, {hex(lit)}")
        a(f"buffer_load_dwordx4 v{vo}, {srd(sr)}, s41 offen {fl} lds")
    def loader_body(P1, KAT, VT, HORD, lo, hi, prev_n):
        def prep(n):
            if n < 16:
                a(f"s_bfe_u32 s54, s{42 + (n >> 3)}, {hex(4*(n & 7) | (4 << 16))}")
                a("s_add_u32 s54, s54, s50"); a("s_and_b32 s54, s54, 15")
                if opt.samek: a("s_and_b32 s54, s54, 1")
                a(f"s_lshl_b32 s55, s54, 7"); a(f"s_add_u32 s{S_OFFR}, s52, s55")
                a(f"s_lshl_b32 s55, s54, 19"); a(f"s_add_u32 s{S_OFFW}, s53, s55")
            elif n % 2 == 0:
                a(f"s_bfe_u32 s54, s{S_HT}, {hex(4*((n - 16) >> 1) | (4 << 16))}")
                if opt.samek: a("s_mov_b32 s54, 0")
                a("s_lshl_b32 s55, s54, 13"); a(f"s_add_u32 s{S_OFFR}, s58, s55")
                a("s_lshl_b32 s55, s54, 18"); a(f"s_add_u32 s{S_OFFW}, s59, s55")
        def ops(n):
            so = slot(n) * SLOT
            X = []
            for c2, kk in enumerate(KAT):
                if kk == n and opt.kbyb: X += [("d", 11, SRD_K, 57, (m//2)*262144 + (m % 2)*4096 + h*128, KSLOT + h*16384 + m*2048, opt.kflags) for m in range(4*c2, 4*c2+4) for h in range(2)]
                elif kk == n: X += [("d", 11, SRD_K, 57, (m//2)*262144 + (m % 2)*4096 + c2*128, KSLOT + c2*16384 + m*2048, opt.kflags) for m in range(8)]
            if n == opt.xt: X += [("x",)]
            if VT == n: X += [("v", 0), ("v", 1)]
            if n < 16:
                return [("d", 12 + (m & 1), SRD_WQ, S_OFFW, m*8*8192, so + 16384 + m*2048) for m in range(8)] + X + \
                       [("d", 10, SRD_X, S_OFFR, m*16*2048, so + m*2048) for m in range(8)]
            c2 = n & 1
            return [("d", 14 + (m & 1), SRD_WO, S_OFFW, m*8*2048 + c2*64*2048, so + 16384 + m*2048) for m in range(8)] + X + \
                   [("d", 11, SRD_V, S_OFFR, (m//2)*262144 + (m % 2)*4096 + c2*128, so + m*2048) for m in range(8)]
        def emit(op):
            if op[0] == "d": dma(*op[1:]); return
            if op[0] == "x":
                a("s_add_u32 s41, s52, s60"); a(f"buffer_load_dword v20, v17, {srd(SRD_X)}, s41 offen"); return
            a(f"s_lshl_b32 s55, s{S_HQ}, 13"); a("s_add_u32 s41, s58, s55"); a(f"s_add_u32 s41, s41, {op[1]*2*262144}"); a("s_add_u32 s41, s41, s61")
            a(f"buffer_load_dword v20, v16, {srd(SRD_V)}, s41 offen")
        for n in range(lo, hi):
            prep(n)
            if n == 0:
                a("s_waitcnt lgkmcnt(0)")
                if opt.lstamps:
                    a("v_mov_b32 v30, 0"); a("s_mov_b32 s94, 3")
                    a("v_writelane_b32 v30, s98, 0"); a("v_writelane_b32 v30, s92, 1")
                    a("s_memrealtime s[92:93]"); a("s_waitcnt lgkmcnt(0)"); a("v_writelane_b32 v30, s92, 2")
            L = ops(n)
            if n < 2: q = len(L)
            elif n == 2 or n == 3: q = min(opt.q0, len(L))
            elif n <= 20 or opt.ns2 == 4: q = 0
            else: q = min(opt.q2, len(L))
            for op in L[:q]: emit(op)
            if n >= 2:
                a(f"s_waitcnt vmcnt({prev_n + q})"); lst(); a("s_barrier")
            for op in L[q:]: emit(op)
            prev_n = len(L)
        return prev_n
    def p1_table(p1, p2, p3):
        seq = [None] * 16
        Ms = {0: 0, p1: 2, p2: 1, p3: 3}
        avail = []
        for n in range(16):
            if n in Ms:
                seq[n] = Ms[n]; avail += [(n + 1, Ms[n] + 4*j) for j in (1, 2, 3)]
            else:
                t, c = avail.pop(0); assert t <= n; seq[n] = c
        assert sorted(x % 16 for x in seq) == list(range(16))
        return seq
    def pack(seq): return sum((x & 15) << (4*i) for i, x in enumerate(seq))
    P1S = list(map(int, opt.p1.split(","))); P3S = list(map(int, opt.p3.split(","))); P2S = list(map(int, opt.p2.split(",")))
    VTS = list(map(int, opt.vt.split(",")))
    NV = len(P1S)
    KOV = tuple(map(int, opt.kat.split(","))) if opt.kat else None
    KAT = KOV or (max(P1S), max(P3S))
    if NV > 1:
        a(f"s_and_b32 s41, s{S_HQ}, {NV-1}")
        for v in range(1, NV):
            a(f"s_cmp_eq_u32 s41, {v}"); a(f"s_cbranch_scc1 L_var{v}")
    for v in range(NV):
        if v: a.lab(f"L_var{v}")
        tabs = [pack(p1_table(P1S[v], p2, P3S[v])) for p2 in P2S]
        a(f"s_mov_b32 s42, {hex(tabs[0] & 0xffffffff)}"); a(f"s_mov_b32 s43, {hex(tabs[0] >> 32)}")
        for u in range(1, len(P2S)):
            a(f"s_and_b32 s41, s2, {len(P2S)-1}"); a(f"s_cmp_eq_u32 s41, {u}")
            a(f"s_cselect_b32 s42, {hex(tabs[u] & 0xffffffff)}, s42"); a(f"s_cselect_b32 s43, {hex(tabs[u] >> 32)}, s43")
        pn = loader_body(None, KOV or (P1S[v], P3S[v]), VTS[v % len(VTS)], None, 0, 16, 0)
        assert pn == 16
        if v < NV - 1: a("s_branch L_ld2")
    a.lab("L_ld2")
    pn = loader_body(None, (-1, -1), -1, None, 16, 32, 16)
    a(f"s_waitcnt vmcnt({pn})"); lst(); a("s_barrier")
    a("s_waitcnt vmcnt(0)"); lst(); a("s_barrier")
    if opt.lstamps:
        a(f"s_cmp_lg_u32 s{S_WAVE}, 4"); a("s_cbranch_scc1 L_end")
        a("s_mul_i32 s40, s2, 512"); a("s_add_u32 s40, s40, 0x8000000")
        a(f"s_add_u32 s42, s{SRD_WS}, s40"); a(f"s_addc_u32 s43, s{SRD_WS+1}, 0")
        a("v_lshlrev_b32 v1, 3, v0"); a("v_mov_b32 v31, 0")
        a("global_store_dwordx2 v1, v[30:31], s[42:43]")
    a("s_endpgm")

    def tag_hash():
        a(f"s_mul_i32 s{S_TAG}, s{S_TAG}, 0x9e3779b1"); a(f"s_add_u32 s{S_TAG}, s{S_TAG}, 0x7f4a7c15")
        a(f"s_mul_i32 s{S_TAG+1}, s{S_TAG+1}, 0x85ebca6b"); a(f"s_add_u32 s{S_TAG+1}, s{S_TAG+1}, 0xc2b2ae35")
    GATE = 20 + opt.pl
    a.lab("L_aux")
    if opt.ctouch:
        a(f"s_cmp_eq_u32 s{S_WAVE}, 7"); a("s_cbranch_scc1 L_poller")
        a("s_getpc_b64 s[40:41]")
        a.lab("L_pc")
        a(f"s_sub_u32 s40, s40, L_pc-{NAME}_kernel"); a("s_subb_u32 s41, s41, 0")
        a("s_lshr_b32 s42, s2, 3"); a(f"s_lshl_b32 s42, s42, {7 + opt.ctouch}")
        a(f"v_and_b32 v1, {(1 << opt.ctouch) - 1}, v0"); a("v_lshlrev_b32 v1, 7, v1"); a("v_add_u32 v1, s42, v1")
        a(f"v_min_u32 v1, L_code_end-{NAME}_kernel-4, v1")
        a("global_load_dword v2, v1, s[40:41]")
        a("s_endpgm")
        a.lab("L_poller")
    else:
        a(f"s_cmp_eq_u32 s{S_WAVE}, 6"); a("s_cbranch_scc1 L_end")
    a("s_waitcnt lgkmcnt(0)")
    a(f"s_lshl_b32 s40, s{S_CL}, 7")
    a(f"s_load_dwordx2 s[{S_TAG}:{S_TAG+1}], s[{SRD_WS}:{SRD_WS+1}], s40")
    a("v_bfe_u32 v1, v0, 2, 3"); a("v_and_b32 v2, 3, v0"); a("v_lshlrev_b32 v2, 3, v2"); a("v_lshl_add_u32 v4, v1, 7, v2")
    a(f"s_lshl_b32 s40, s{S_CL}, 5"); a(f"s_lshl_b32 s41, s{S_KQ}, 3"); a("s_add_u32 s40, s40, s41")
    a("s_lshl_b32 s40, s40, 7"); a(f"s_add_u32 s43, s40, {hex(PFLAG)}")
    a("s_waitcnt lgkmcnt(0)")
    tag_hash()
    a(f"v_mov_b32 v2, s{S_TAG}"); a(f"v_mov_b32 v3, s{S_TAG+1}")
    a(f"s_mov_b32 s44, {GATE + 1}")
    a.lab("L_pb"); a("s_barrier"); a("s_sub_u32 s44, s44, 1"); a("s_cmp_lg_u32 s44, 0"); a("s_cbranch_scc1 L_pb")
    a(f"s_mov_b32 s44, {opt.spin}")
    a.lab("L_ppoll")
    a(f"buffer_load_dwordx2 v[8:9], v4, {srd(SRD_WS)}, s43 offen sc1")
    a("s_sub_u32 s44, s44, 1"); a("s_cmp_eq_u32 s44, 0"); a("s_cbranch_scc1 L_pgo")
    a("s_waitcnt vmcnt(0)")
    a("v_cmp_eq_u64 vcc, v[8:9], v[2:3]")
    a("s_cmp_eq_u64 vcc, exec"); a("s_cbranch_scc1 L_pgo")
    a("s_sleep 2"); a("s_branch L_ppoll")
    a.lab("L_pgo")
    a("s_barrier")
    a.lab("L_end")
    a("s_endpgm")

    a.lab("L_compute")
    mark = [len(a.L)]; rep = []
    def flush_passes():
        body = hazard_fix(auto_wait(a.L[mark[0]:]), report=rep)
        a.L = a.L[:mark[0]] + body
        mark[0] = len(a.L)
    if opt.prio: a(f"s_setprio {opt.prio}")
    a(f"s_lshr_b32 s{S_WM}, s{S_WAVE}, 1"); a(f"s_and_b32 s{S_WN}, s{S_WAVE}, 1")
    a("v_and_b32 v1, 15, v0"); a("v_lshrrev_b32 v2, 4, v0")
    a("v_lshrrev_b32 v3, 1, v1"); a("v_xor_b32 v4, v3, v2"); a("v_lshlrev_b32 v4, 4, v4"); a("v_lshl_add_u32 v4, v1, 7, v4")
    a(f"s_lshl_b32 s43, s{S_WAVE}, 12"); a("s_xor_b32 s42, s43, 4096")
    a(f"v_add_u32 v{V_AR}, s42, v4"); a(f"v_add_u32 v{V_AR+1}, s43, v4")
    a(f"v_xor_b32 v{V_AR+2}, 64, v{V_AR}"); a(f"v_xor_b32 v{V_AR+3}, 64, v{V_AR+1}")
    a("v_lshrrev_b32 v5, 1, v2"); a("v_xor_b32 v5, v5, v3"); a("v_lshlrev_b32 v5, 4, v5"); a("v_lshl_add_u32 v5, v1, 7, v5")
    a("v_and_b32 v6, 1, v2"); a("v_lshl_add_u32 v5, v6, 3, v5")
    a(f"s_lshl_b32 s44, s{S_WN}, 14"); a(f"s_add_u32 s44, s44, {KSLOT}")
    a("s_add_u32 s42, s42, s44"); a("s_add_u32 s43, s43, s44")
    a(f"v_add_u32 v{V_T}, s42, v5"); a(f"v_add_u32 v{V_T+1}, s43, v5")
    for bb in range(2):
        for uz in range(1, 4): a(f"v_xor_b32 v{V_T+4+3*bb+uz-1}, {32*uz}, v{V_T+bb}")
    a("v_bfe_u32 v5, v0, 2, 2"); a("v_lshl_add_u32 v4, v2, 3, v5"); a("v_lshlrev_b32 v4, 8, v4")
    a("v_and_b32 v3, 3, v0"); a("v_lshl_add_u32 v4, v3, 3, v4"); a("v_add_u32 v4, 16384, v4")
    a("v_lshlrev_b32 v5, 1, v5"); a("v_or_b32 v5, v5, v6")
    a(f"s_lshl_b32 s40, s{S_WN}, 2")
    for b in range(4):
        a(f"s_add_u32 s41, s40, {b}"); a("v_xor_b32 v3, s41, v5"); a(f"v_lshl_add_u32 v{V_AW+b}, v3, 5, v4")
    a(f"s_lshr_b32 s52, s{S_KQ}, 1"); a("s_lshl_b32 s52, s52, 12")
    a(f"s_lshl_b32 s53, s{S_KQ}, 10")
    a("v_lshlrev_b32 v7, 4, v0"); a(f"v_mov_b32 v{V_Z}, 0")
    a(f"s_mov_b32 s{S_UP}, 0x10000"); a(f"s_mov_b32 s{S_DN1}, 0xffff0000"); a(f"s_mov_b32 s{S_DN2}, 0xfffe0000"); a(f"s_mov_b32 s{S_C}, 0x3e0293ee")
    a(f"s_lshl_b32 s40, s{S_WM}, 13"); a("s_add_u32 s40, s40, s44")
    a(f"v_add_u32 v{V_T+10}, s40, v7"); a(f"v_xor_b32 v{V_T+11}, 0x4000, v{V_T+10}")
    a("s_waitcnt lgkmcnt(0)")
    a(f"s_lshl_b32 s40, s{S_CL}, 7")
    a(f"s_load_dwordx2 s[{S_TAG}:{S_TAG+1}], s[{SRD_WS}:{SRD_WS+1}], s40")
    a(f"s_lshl_b32 s40, s{S_CL}, 5"); a(f"s_lshl_b32 s41, s{S_KQ}, 3"); a("s_add_u32 s40, s40, s41")
    a(f"s_lshl_b32 s{S_PB}, s40, 13"); a(f"s_add_u32 s{S_PB}, s{S_PB}, {hex(PBUF)}")
    a(f"s_lshl_b32 s41, s{S_WAVE}, 11"); a("s_xor_b32 s42, s41, 2048")
    a(f"v_add_u32 v{V_T+2}, s42, v7"); a(f"v_add_u32 v{V_T+3}, s41, v7")
    a(f"s_add_u32 s40, s40, s{S_HQ}"); a("s_lshl_b32 s40, s40, 7"); a(f"s_lshl_b32 s41, s{S_WAVE}, 3"); a("s_add_u32 s40, s40, s41")
    a(f"s_add_u32 s{S_FL}, s40, {hex(PFLAG)}")
    a("s_waitcnt lgkmcnt(0)")
    tag_hash()
    a(f"v_mov_b32 v{V_TAG}, s{S_TAG}"); a(f"v_mov_b32 v{V_TAG+1}, s{S_TAG+1}")
    a("s_barrier")
    stamp()

    def rel(n): return (slot(n) & 1) * SLOT
    def upd(n):
        d = (slot(n + 1) >> 1) - (slot(n) >> 1)
        return {0: None, 1: S_UP, -1: S_DN1, -2: S_DN2}[d]
    def rdR(n, s, aa): return f"ds_read_b128 {vr(V_R+4*aa,4)}, v{V_AR + 2*s + (aa >> 1)} offset:{rel(n) + (aa & 1)*2048}"
    def rdW(n, s, b, z): return f"ds_read_b64_tr_b16 {vr(V_W + 16*s + 4*b + 2*z, 2)}, v{V_AW+b} offset:{rel(n) + s*8192 + z*1024}"
    WPOS = {(0,0): (0,0), (0,1): (0,1), (0,2): (1,0), (1,0): (1,1), (1,1): (2,0), (1,2): (2,1), (2,0): (3,0), (2,1): (3,1)}
    WAITPOS = {(0,0), (0,1), (0,2), (0,3), (2,0), (3,0)}
    def acc(aa, b): return vr(V_ACC + 16*aa + 4*b, 4)
    def item_gaps(n, zero, nxt, bar=True):
        G = []
        phase = 1 if n < 16 else 2
        for s in range(2):
            tk, ts = (n, 1) if s == 0 else (nxt, 0)
            for aa in range(4):
                for b in range(4):
                    post = []
                    W = vr(V_W + 16*s + 4*b, 4); R = vr(V_R + 4*aa, 4)
                    C = "0" if (zero and s == 0) else acc(aa, b)
                    m = f"{MF} {acc(aa,b)}, {W}, {R}, {C}" if phase == 1 else f"{MF} {acc(aa,b)}, {R}, {W}, {C}"
                    if tk is not None:
                        if (aa, b) in WPOS: post.append(rdW(tk, ts, *WPOS[(aa, b)]))
                        if b == 3: post.append(rdR(tk, ts, aa))
                    u = upd(n) if nxt is not None else None
                    if u is not None:
                        if s == 0 and aa == 3 and b < 3: post.append(f"v_add_u32 v{V_AW+b}, s{u}, v{V_AW+b}")
                        if s == 0 and aa == 2 and b == 2: post += [f"v_add_u32 v{V_AR}, s{u}, v{V_AR}", f"v_add_u32 v{V_AR+1}, s{u}, v{V_AR+1}"]
                        if s == 0 and aa == 3 and b == 2: post.append(f"v_add_u32 v{V_AW+3}, s{u}, v{V_AW+3}")
                        if s == 1 and aa == 3 and b < 2: post.append(f"v_add_u32 v{V_AR+2+b}, s{u}, v{V_AR+2+b}")
                    if bar and s == 0 and aa == 3 and b == 3: post.append("s_barrier")
                    G.append([1 if (aa, b) in WAITPOS else 0, m, post])
        return G
    def load_of(G, i): return len(G[i][2]) + (G[i+1][0] if i + 1 < len(G) else 0)
    def inject(G, start, opsl, cap=2, onelds=True):
        i = start
        for op in opsl:
            while i < len(G) and (load_of(G, i) >= cap or (onelds and op.startswith("ds_") and any(x.startswith("ds_") for x in G[i][2]))): i += 1
            if i >= len(G): G[-1][2].append(op); i = len(G) - 1; continue
            G[i][2].append(op)
        return i
    def emitG(G):
        for w, m, post in G:
            a(m)
            for x in post: a(x)
    kf = lambda bb, kt, u: V_KF + 16*bb + 8*kt + 4*u
    sp = lambda bb, kt, qt: V_SP + 16*bb + 8*kt + 4*qt
    kaddr = lambda bb, u, z: (V_T + bb) if (u == 0 and z == 0) else (V_T + 4 + 3*bb + 2*u + z - 1)
    kreads = [f"ds_read_b64 {vr(kf(bb,kt,u) + 2*z, 2)}, v{kaddr(bb,u,z)} offset:{kt*2048}" for bb in range(2) for kt in range(2) for u in range(2) for z in range(2)]
    qcvt = lambda aa: [f"v_cvt_pk_bf16_f32 v{V_BF+i}, v{V_ACC+2*i}, v{V_ACC+2*i+1}" for i in range(8*aa, 8*aa+8)]
    def smf(bb, Cin=None):
        r = []
        for u in range(2):
            for kt in range(2):
                for qt in range(2):
                    C = (("0" if Cin is None else vr(Cin + 8*kt + 4*qt, 4)) if u == 0 else vr(sp(bb,kt,qt), 4))
                    r.append(f"{MF} {vr(sp(bb,kt,qt),4)}, {vr(kf(bb,kt,u),4)}, {vr(V_BF + 8*(2*bb+qt) + 4*u, 4)}, {C}")
        return r

    for (aa, b) in [(x, y) for x in range(4) for y in range(4)]:
        if (aa, b) in WPOS: a(rdW(0, 0, *WPOS[(aa, b)]))
        if b == 3: a(rdR(0, 0, aa))
    kpos = max(KAT) + 1
    for n in range(16):
        G = item_gaps(n, n == 0, n + 1 if n < 15 else None, bar=(n < 15))
        if n == kpos: inject(G, 0, kreads[:8])
        if n == kpos + 1: inject(G, 0, kreads[8:])
        if n == 15:
            u = upd(15)
            inject(G, 16, [f"v_add_u32 v{r}, s{u}, v{r}" for r in list(range(V_AR, V_AR+4)) + list(range(V_AW, V_AW+4))] +
                   [f"v_xor_b32 v{r}, s52, v{r}" for r in range(V_AR, V_AR+4)] +
                   [f"v_xor_b32 v{V_T+4}, s53, v{V_T+2}", f"v_xor_b32 v{V_T+6}, s53, v{V_T+3}", f"v_xor_b32 v{V_T+5}, 0x400, v{V_T+4}", f"v_xor_b32 v{V_T+7}, 0x400, v{V_T+6}"])
            inject(G, 24, qcvt(0), cap=3); inject(G, 28, qcvt(1), cap=3)
        emitG(G)
    stamp()
    a.c("---- partial scores of the partner's batch")
    G = [[0, m, []] for m in smf(0)]
    inject(G, 0, qcvt(2) + qcvt(3))
    emitG(G)
    RXS = V_KF
    xw = [f"ds_write_b128 v{V_T+10}, {vr(V_SP + 4*j, 4)} offset:{j*1024}" for j in range(4)]
    xr = [f"ds_read_b128 {vr(RXS + 4*j, 4)}, v{V_T+11} offset:{j*1024}" for j in range(4)]
    S = lambda kt, qt, i: f"v{sp(1,kt,qt) + i}"
    sm = []
    M = [1, 3]; T = [2, 4]
    for qt in range(2):
        m = f"v{M[qt]}"
        sm += [f"v_max3_f32 {m}, {S(0,qt,0)}, {S(0,qt,1)}, {S(0,qt,2)}", f"v_max3_f32 {m}, {m}, {S(0,qt,3)}, {S(1,qt,0)}",
               f"v_max3_f32 {m}, {m}, {S(1,qt,1)}, {S(1,qt,2)}", f"v_max_f32 {m}, {m}, {S(1,qt,3)}"]
    def xl(op):
        o = []
        for sw in ("v_permlane16_swap_b32", "v_permlane32_swap_b32"):
            o += ["v_mov_b32 v2, v1", "v_mov_b32 v4, v3", f"{sw} v1, v2", f"{sw} v3, v4", f"{op} v1, v1, v2", f"{op} v3, v3, v4"]
        return o
    sm += xl("v_max_f32")
    sm += [f"v_mul_f32 v1, s{S_C}, v1", f"v_mul_f32 v3, s{S_C}, v3"]
    idx8 = [(kt, i) for kt in range(2) for i in range(4)]
    for qt in range(2):
        for kt, i in idx8: sm.append(f"v_fma_f32 {S(kt,qt,i)}, {S(kt,qt,i)}, s{S_C}, -v{M[qt]}")
    for qt in range(2):
        for kt, i in idx8: sm.append(f"v_exp_f32 {S(kt,qt,i)}, {S(kt,qt,i)}")
    for qt in range(2):
        m = f"v{M[qt]}"; t = f"v{T[qt]}"
        sm += [f"v_add_f32 {m}, {S(0,qt,0)}, {S(0,qt,1)}", f"v_add_f32 {t}, {S(0,qt,2)}, {S(0,qt,3)}",
               f"v_add_f32 {m}, {m}, {S(1,qt,0)}", f"v_add_f32 {t}, {t}, {S(1,qt,1)}",
               f"v_add_f32 {m}, {m}, {S(1,qt,2)}", f"v_add_f32 {t}, {t}, {S(1,qt,3)}", f"v_add_f32 {m}, {m}, {t}"]
    sm += xl("v_add_f32")
    sm += ["v_rcp_f32 v1, v1", "v_rcp_f32 v3, v3"]
    for qt in range(2):
        for kt, i in idx8: sm.append(f"v_mul_f32 {S(kt,qt,i)}, {S(kt,qt,i)}, v{M[qt]}")
    for qt in range(2):
        for kt in range(2):
            for h in range(2): sm.append(f"v_cvt_pk_bf16_f32 v{V_P + 4*qt + 2*kt + h}, {S(kt,qt,2*h)}, {S(kt,qt,2*h+1)}")
    sm += [f"s_lshl_b32 s40, s{S_HQ}, 13", f"s_add_u32 s40, s40, s{S_PB}",
           f"buffer_store_dwordx4 {vr(V_P,4)}, v{V_T+3}, {srd(SRD_WS)}, s40 offen sc1",
           f"buffer_store_dwordx4 {vr(V_P+4,4)}, v{V_T+3}, {srd(SRD_WS)}, s40 offen offset:1024 sc1"]
    flag_ops = ["s_waitcnt vmcnt(0)", f"buffer_store_dwordx2 {vr(V_TAG,2)}, v{V_Z}, {srd(SRD_WS)}, s{S_FL} offen sc1"]

    bf = lambda bb, nt: V_BF + 16*bb + 4*nt
    out = lambda bb, qt, nt: V_OUT + 16*(2*bb + qt) + 4*nt
    def cvt_ops(bb, nt):
        t0 = V_ACC + 16*(2*bb) + 4*nt; t1 = V_ACC + 16*(2*bb+1) + 4*nt; d = bf(bb, nt)
        return [f"v_cvt_pk_bf16_f32 v{d}, v{t0}, v{t0+1}", f"v_cvt_pk_bf16_f32 v{d+1}, v{t0+2}, v{t0+3}",
                f"v_cvt_pk_bf16_f32 v{d+2}, v{t1}, v{t1+1}", f"v_cvt_pk_bf16_f32 v{d+3}, v{t1+2}, v{t1+3}"]
    def pv_m(bb, qt, nt, P, zero):
        o = vr(out(bb,qt,nt), 4)
        return f"{MF} {o}, {vr(bf(bb,nt),4)}, {vr(P + 8*bb + 4*qt, 4)}, {'0' if zero else o}"
    def loadP(i, P):
        if opt.nopv: return []
        return [f"s_bfe_u32 s40, s{S_HT}, {hex(4*i | (4 << 16))}", "s_lshl_b32 s40, s40, 13", f"s_add_u32 s40, s40, s{S_PB}"] + \
               [f"buffer_load_dwordx4 {vr(P + 8*bb + 4*qt, 4)}, v{V_T+4+2*bb+qt}, {srd(SRD_WS)}, s40 offen sc1" for bb in range(2) for qt in range(2)]
    PN = V_W
    order = [(bb, nt) for bb in range(2) for nt in range(4)]
    def boundary(i):
        G = []
        if opt.nopv: return G
        prev = []
        for bb, nt in order:
            G.append([0, pv_m(bb, 0, nt, V_P, i == 1), prev[2:]])
            prev = cvt_ops(bb, nt)
            G.append([0, pv_m(bb, 1, nt, V_P, i == 1), prev[:2]])
        G[-1][2] += prev[2:]
        return G
    for x in xw: a(x)
    a(f"ds_write_b64 v{V_T+10}, {vr(V_TAG,2)} offset:4096")
    flush_passes()
    a(f"s_mov_b32 s44, {opt.spin}")
    a.lab("L_spoll")
    a(f"ds_read_b64 v[2:3], v{V_T+11} offset:4096")
    a("s_sub_u32 s44, s44, 1"); a("s_cmp_eq_u32 s44, 0")
    a("s_waitcnt lgkmcnt(0)")
    a("s_cbranch_scc1 L_sgo")
    a(f"v_cmp_ne_u64 vcc, v[2:3], {vr(V_TAG,2)}")
    a("s_cbranch_vccnz L_spoll")
    a.lab("L_sgo")
    mark[0] = len(a.L)
    for x in xr: a(x)
    for m in smf(1, RXS): a(m)
    nb = opt.smbar
    for x in sm[:nb]: a(x)
    a("s_barrier")
    for (aa, b) in [(x, y) for x in range(4) for y in range(4)]:
        if (aa, b) in WPOS: a(rdW(16, 0, *WPOS[(aa, b)]))
        if b == 3: a(rdR(16, 0, aa))
    npre = max(nb, len(sm) - opt.smpost)
    for x in sm[nb:npre]: a(x)
    stamp()
    G01 = item_gaps(16, True, 17) + item_gaps(17, False, 18)
    b0 = len(G01)
    cv0 = [x for bb, nt in order for x in cvt_ops(bb, nt)]
    G01[-1][2] += cv0
    G01 += item_gaps(18, True, 19) + item_gaps(19, False, 20)
    pos = inject(G01, 0, sm[npre:], cap=opt.cap)
    fp = pos + opt.flagdelay
    barp = b0 + 15 + 32*opt.pl
    assert fp <= barp, (fp, barp)
    if G01[fp][2] and G01[fp][2][-1] == "s_barrier": G01[fp][2][-1:-1] = flag_ops
    else: G01[fp][2].extend(flag_ops)
    inject(G01, barp + 1, loadP(0, V_P))
    if opt.hstamps: G01[b0-1][2].append(stamp_s())
    emitG(G01)
    if opt.hstamps: stamp()
    emitG(boundary(1))
    if opt.hstamps: stamp()
    for i in range(2, 8):
        nA, nB = 16 + 2*i, 17 + 2*i
        G = item_gaps(nA, True, nB) + item_gaps(nB, False, nB + 1 if i < 7 else None, bar=(i < 7))
        st = 16 + 32*opt.pl if not (i == 7 and opt.pl) else 32
        if i > 2 and opt.pl: st = 16
        inject(G, st, loadP(i - 1, V_P))
        if i == 7: inject(G, 48, loadP(7, PN))
        if i == 7:
            pass
        emitG(G)
        if opt.hstamps: stamp()
        emitG(boundary(i))
        if opt.hstamps: stamp()
    a(f"s_lshl_b32 s40, s{S_CL}, 5"); a(f"s_add_u32 s40, s40, s{S_IDX}")
    a(f"s_lshl_b32 s41, s{S_KQ}, 2"); a(f"s_add_u32 s41, s41, s{S_WAVE}")
    a("s_lshl_b32 s43, s41, 12"); a(f"s_add_u32 s43, s43, {hex(XBUF)}")
    for t in (1, 2, 3):
        a(f"s_xor_b32 s42, s{S_KQ}, {t}"); a("s_lshl_b32 s42, s42, 3"); a("s_add_u32 s42, s42, s40")
        a(f"s_lshl_b32 s{52+t}, s42, 7")
        a("s_lshl_b32 s42, s42, 16"); a(f"s_add_u32 s{44+t}, s42, s43")
    a("s_lshl_b32 s43, s41, 3"); a(f"s_add_u32 s43, s43, {hex(XFLAG)}")
    for t in (1, 2, 3): a(f"s_add_u32 s{52+t}, s{52+t}, s43")
    SX = V_ACC
    tagged = opt.xmode != "flag"
    DPOS = [0, 1, 2, 4, 5, 6, 8, 9] if tagged else list(range(8))
    NG = 3 if tagged else 2
    tags = [f"v_mov_b32 v{SX + 16*t + p}, v{V_TAG + (1 if p == 10 else 0)}" for t in (1, 2, 3) for p in (3, 7, 10, 11)] if tagged else []
    xflag = lambda t: f"buffer_store_dwordx2 {vr(V_TAG,2)}, v{V_Z}, {srd(SRD_WS)}, s{52+t} offen sc1"
    def send(t):
        o = [f"v_cvt_pk_bf16_f32 v{SX + 16*t + DPOS[j]}, v{V_OUT+16*t+2*j}, v{V_OUT+16*t+2*j+1}" for j in range(8)]
        st = [f"buffer_store_dwordx4 {vr(SX + 16*t + 4*g, 4)}, v7, {srd(SRD_WS)}, s{44+t} offen offset:{g*1024} sc1" for g in range(NG)]
        if not tagged: return o[:4] + st[:1] + o[4:] + st[1:]
        return o[:3] + st[:1] + o[3:6] + st[1:2] + o[6:] + st[2:] + ([xflag(t)] if opt.xmode == "opt" else [])
    G = [[0, pv_m(t >> 1, t & 1, nt, PN, False), []] for t in (1, 2, 3, 0) for nt in range(4)]
    inject(G, 0, tags)
    inject(G, 6, send(1) + send(2) + send(3), cap=3)
    emitG(G)
    stamp()
    if opt.xmode == "flag":
        for t in (1, 2, 3):
            a(f"s_waitcnt vmcnt({2*(3-t) + (t-1)})"); a(xflag(t))
    a(f"s_lshl_b32 s42, s{S_KQ}, 3"); a("s_add_u32 s42, s42, s40")
    a(f"s_lshl_b32 s56, s42, 7"); a(f"s_lshl_b32 s43, s{S_WAVE}, 3"); a("s_add_u32 s56, s56, s43"); a(f"s_add_u32 s56, s56, {hex(XFLAG)}")
    a("v_and_b32 v3, 3, v0"); a("v_min_u32 v3, 2, v3"); a(f"v_add_u32 v3, s{S_KQ}, v3"); a("v_add_u32 v3, 1, v3"); a("v_and_b32 v3, 3, v3"); a("v_lshlrev_b32 v3, 5, v3")
    a("s_lshl_b32 s42, s42, 16"); a(f"s_lshl_b32 s43, s{S_WAVE}, 12"); a("s_add_u32 s42, s42, s43"); a(f"s_add_u32 s42, s42, {hex(XBUF)}")
    for j in range(3):
        a(f"s_add_u32 s43, s{S_KQ}, {j+1}"); a("s_and_b32 s43, s43, 3"); a("s_lshl_b32 s43, s43, 14"); a(f"s_add_u32 s{51+j}, s43, s42")
    a("v_lshrrev_b32 v4, 3, v0"); a("v_lshlrev_b32 v4, 12, v4"); a("v_and_b32 v5, 7, v0"); a("v_lshl_add_u32 v4, v5, 4, v4")
    a(f"s_lshr_b32 s41, s{S_KQ}, 1"); a(f"s_xor_b32 s41, s41, s{S_WAVE}"); a("s_xor_b32 s41, s41, 1"); a("s_lshl_b32 s41, s41, 17")
    a(f"s_lshl_b32 s40, s{S_RB}, 19"); a("s_add_u32 s40, s40, s41")
    a(f"s_and_b32 s41, s{S_KQ}, 1"); a("s_lshl_b32 s41, s41, 16"); a("s_add_u32 s40, s40, s41")
    a(f"s_lshl_b32 s41, s{S_BR}, 11"); a("s_add_u32 s40, s40, s41")
    a(f"s_mul_i32 s41, s{S_WN}, {opt.wox}"); a(f"s_xor_b32 s41, s41, s{S_IDX}"); a("s_lshl_b32 s41, s41, 8"); a("s_add_u32 s40, s40, s41")
    a(f"s_lshl_b32 s41, s{S_WN}, 7"); a("s_add_u32 s40, s40, s41")
    a("s_add_u32 s41, s40, 0x8000")
    a(f"s_lshl_b32 s42, s{S_WAVE}, 11"); a(f"s_add_u32 s42, s42, {SLOT}")
    a("v_and_b32 v1, 15, v0"); a("v_lshrrev_b32 v2, 5, v0"); a("v_and_b32 v5, 7, v0"); a("v_xor_b32 v2, v2, v5"); a("v_lshlrev_b32 v2, 4, v2")
    a("v_lshl_add_u32 v1, v1, 7, v2"); a("v_bfe_u32 v2, v0, 4, 1"); a("v_lshl_add_u32 v1, v2, 3, v1"); a("v_add_u32 v1, s42, v1")
    for nt in range(1, 4): a(f"v_xor_b32 v{9+nt}, {32*nt}, v1")
    a("v_lshrrev_b32 v2, 3, v0"); a("v_xor_b32 v5, v5, v2"); a("v_lshlrev_b32 v5, 4, v5"); a("v_lshl_add_u32 v2, v2, 7, v5"); a("v_add_u32 v2, s42, v2")
    a(f"s_mov_b32 s44, {opt.spin}")
    flush_passes()
    if opt.verbose:
        for r in rep: print("pad", r)
    RX = V_BF
    def ld(j, g): a(f"buffer_load_dwordx4 {vr(RX + 12*j + 4*g, 4)}, v7, {srd(SRD_WS)}, s{51+j} offen offset:{g*1024} sc1")
    def chk(j, gs):
        regs = [(RX + 12*j + 4*g + 3, V_TAG) for g in gs] + ([(RX + 12*j + 10, V_TAG + 1)] if 2 in gs else [])
        for k, (r, t) in enumerate(regs): a(f"v_xor_b32 v{V_R+k}, v{r}, v{t}")
        for k in range(1, len(regs)): a(f"v_or_b32 v{V_R}, v{V_R}, v{V_R+k}")
        a(f"v_cmp_ne_u32 vcc, 0, v{V_R}")
    if opt.xmode != "tag":
        a.lab("L_xpoll")
        a(f"buffer_load_dwordx2 v[8:9], v3, {srd(SRD_WS)}, s56 offen sc1")
        a("s_sub_u32 s44, s44, 1"); a("s_cmp_eq_u32 s44, 0")
        a("s_waitcnt vmcnt(0)")
        a("s_cbranch_scc1 L_xrd")
        a(f"v_cmp_ne_u64 vcc, v[8:9], {vr(V_TAG,2)}")
        a("s_cbranch_vccnz L_xpoll")
        a.lab("L_xrd")
        stamp()
    for j in range(3):
        for g in range(NG): ld(j, g)
    for j in range(3 if tagged else 0):
        a(f"s_waitcnt vmcnt({6 - 3*j})")
        chk(j, (0, 1, 2))
        a(f"s_cbranch_vccz L_xok{j}")
        a.lab(f"L_xp{j}")
        a(f"s_sleep {opt.xsleep}")
        ld(j, 2)
        a("s_sub_u32 s44, s44, 1"); a("s_cmp_eq_u32 s44, 0")
        a("s_waitcnt vmcnt(0)")
        a(f"s_cbranch_scc1 L_xok{j}")
        chk(j, (2,))
        a(f"s_cbranch_vccnz L_xp{j}")
        ld(j, 0); ld(j, 1)
        a("s_waitcnt vmcnt(0)")
        chk(j, (0, 1))
        a(f"s_cbranch_vccnz L_xp{j}")
        a.lab(f"L_xok{j}")
    a.lab("L_xgo")
    if opt.xmode == "tag": stamp()
    for j in range(3):
        if not tagged: a(f"s_waitcnt vmcnt({4 - 2*j})")
        for i in range(8):
            r = RX + 12*j + DPOS[i]
            a(f"v_lshlrev_b32 v5, 16, v{r}"); a(f"v_and_b32 v6, 0xffff0000, v{r}")
            a(f"v_add_f32 v{V_OUT+2*i}, v{V_OUT+2*i}, v5"); a(f"v_add_f32 v{V_OUT+2*i+1}, v{V_OUT+2*i+1}, v6")
    for i in range(8): a(f"v_cvt_pk_bf16_f32 v{V_R+i}, v{V_OUT+2*i}, v{V_OUT+2*i+1}")
    for nt in range(4): a(f"ds_write_b64 v{9+nt if nt else 1}, {vr(V_R+2*nt,2)}")
    a(f"ds_read_b128 {vr(V_R+8,4)}, v2"); a(f"ds_read_b128 {vr(V_R+12,4)}, v2 offset:1024")
    a("s_waitcnt lgkmcnt(1)")
    a(f"buffer_store_dwordx4 {vr(V_R+8,4)}, v4, {srd(SRD_OUT)}, s40 offen {opt.outflags}")
    a("s_waitcnt lgkmcnt(0)")
    a(f"buffer_store_dwordx4 {vr(V_R+12,4)}, v4, {srd(SRD_OUT)}, s41 offen {opt.outflags}")
    a(f"s_or_b32 s40, s{S_KQ}, s{S_IDX}"); a(f"s_or_b32 s40, s40, s{S_WAVE}"); a("s_cmp_lg_u32 s40, 0"); a("s_cbranch_scc1 L_noep")
    a(f"s_lshl_b32 s40, s{S_CL}, 7")
    a(f"buffer_store_dwordx2 {vr(V_TAG,2)}, v{V_Z}, {srd(SRD_WS)}, s40 offen {opt.outflags}")
    a.lab("L_noep")
    if opt.fixdur:
        a.lab("L_fix")
        a("s_memrealtime s[92:93]"); a("s_waitcnt lgkmcnt(0)"); a("s_sub_u32 s92, s92, s98")
        a(f"s_cmp_lt_u32 s92, {opt.fixdur}"); a("s_cbranch_scc1 L_fix")
    if opt.stamps:
        a("s_waitcnt vmcnt(0)")
        stamp()
        a(f"s_cmp_lg_u32 s{S_WAVE}, 0"); a("s_cbranch_scc1 L_end2")
        a("s_waitcnt lgkmcnt(0)")
        n = nst[0]
        a(f"s_mul_i32 s40, s2, {n*8}"); a("s_add_u32 s40, s40, 0x8000000")
        a(f"s_add_u32 s42, s{SRD_WS}, s40"); a(f"s_addc_u32 s43, s{SRD_WS+1}, 0")
        for i in range(n):
            a(f"v_mov_b32 v8, s{S_ST+2*i}"); a(f"v_mov_b32 v9, s{S_ST+2*i+1}")
            a(f"global_store_dwordx2 v{V_Z}, v[8:9], s[42:43] offset:{i*8}"); a("s_nop 1")
        a.lab("L_end2")
    a("s_endpgm")
    a.lab("L_code_end")
    tail = ['.section .rodata,"a"', ".p2align 6", f".amdhsa_kernel {NAME}_kernel"]
    tail += ["  .amdhsa_" + l for l in ("next_free_vgpr 256", "next_free_sgpr 102", "accum_offset 256", "group_segment_fixed_size 0", "kernarg_size 104",
              "user_sgpr_count 2", "user_sgpr_kernarg_segment_ptr 1", "system_sgpr_workgroup_id_x 1")]
    tail += [".end_amdhsa_kernel"]
    txt = "\n".join(head + [(x if x.endswith(":") else "    " + x) for x in a.L] + tail) + "\n"
    return txt, nst[0], rep

def parse(argv):
    ap = argparse.ArgumentParser()
    ap.add_argument("-o", default="cdna_kernels/" + NAME + ".s")
    for f in ("stamps", "cyc", "lstamps", "nodma", "nolds", "nomfma", "samek", "hstamps", "verbose", "pairs", "nopv"): ap.add_argument("--" + f, action="store_true")
    ap.add_argument("--prio", type=int, default=0)
    ap.add_argument("--spin", type=int, default=100000)
    ap.add_argument("--fixdur", type=int, default=0)
    ap.add_argument("--q0", type=int, default=2)
    ap.add_argument("--q2", type=int, default=4)
    ap.add_argument("--pl", type=int, default=0)
    ap.add_argument("--cap", type=int, default=2)
    ap.add_argument("--keeppos", type=int, default=24)
    ap.add_argument("--flagdelay", type=int, default=40)
    ap.add_argument("--p1", default="4")
    ap.add_argument("--p2", default="8")
    ap.add_argument("--p3", default="12")
    ap.add_argument("--pm", default="4")
    ap.add_argument("--vt", default="-1")
    ap.add_argument("--smbar", type=int, default=60)
    ap.add_argument("--smpost", type=int, default=0)
    ap.add_argument("--xmode", default="flag")
    ap.add_argument("--ctouch", type=int, default=0)
    ap.add_argument("--idxx", type=int, default=0)
    ap.add_argument("--hqx", type=int, default=0)
    ap.add_argument("--kat", default="")
    ap.add_argument("--wox", type=int, default=0)
    ap.add_argument("--ns2", type=int, default=5)
    ap.add_argument("--pmkey", type=int, default=0)
    ap.add_argument("--kbyb", type=int, default=1)
    ap.add_argument("--xt", type=int, default=-1)
    ap.add_argument("--xsleep", type=int, default=1)
    ap.add_argument("--kflags", default="")
    ap.add_argument("--outflags", default="sc1")
    return ap.parse_args(argv)

if __name__ == "__main__":
    opt = parse(sys.argv[1:])
    t, n, rep = gen(opt)
    open(opt.o, "w").write(t)
    print("wrote", opt.o, "stamps", n, "lines", t.count("\n"), "pads", len(rep))
```

```python
import sys, argparse
from passes import auto_wait, hazard_fix
NAME = "concat_heads__mha_block_cached__mha_block_cached__near_ridge"

class Asm:
    def __init__(self): self.L = []; self.drop = []
    def __call__(self, s):
        for pat in self.drop:
            if pat in s: return
        self.L.append(s)
    def lab(self, s): self.L.append(s + ":")
    def c(self, s): self.L.append("; " + s)

PFLAG = 0x4000; XFLAG = 0x10000; PBUF = 0x100000; XBUF = 0x400000; WS_REC = 0xC00000
SLOT = 32768; AUX = 4 * SLOT
S_BR, S_KQ, S_RB, S_IDX, S_WAVE = 3, 4, 5, 6, 7
SRD_X, SRD_K, SRD_V, SRD_WQ, SRD_WO, SRD_WS, SRD_OUT = 8, 12, 16, 20, 24, 28, 32
S_TAG = 36; S_CL = 38; S_HQ = 39
S_C = 50; S_PB = 49; S_OFFR = 47; S_OFFW = 48; S_W = 45; S_HT = 46
S_WM, S_WN = 56, 57; S_FL = 60; S_GRP = 61
S_ST = 62
def srd(b): return f"s[{b}:{b+3}]"
def vr(b, n): return f"v[{b}:{b+n-1}]"
V_AR = 8; V_AW = 12; V_R = 16; V_W = 32; V_BF = 64; V_P = 96; V_TAG = 112; V_Z = 114; V_T = 115
V_ACC = 128; V_OUT = 192; V_KF = 192; V_SP = 224
MF = "v_mfma_f32_16x16x32_bf16"
NI = 32
def slot(n): return n % 4

def gen(opt):
    a = Asm()
    if opt.nodma: a.drop.append(" lds")
    if opt.nomfma: a.drop += ["v_mfma"]
    head = ["; Fused double MHA block: Q-proj + scores + softmax | V*Wo + P*(V*Wo) | split-K reduce-scatter (gfx950)",
            f"; @launch grid=(256,1,1) block=(512,1,1) lds={SLOT*5}",
            '.amdgcn_target "amdgcn-amd-amdhsa--gfx950"', ".text", f".globl {NAME}_kernel", ".p2align 8", f".type {NAME}_kernel,@function"]
    a.lab(f"{NAME}_kernel")
    nst = [0]
    def stamp_s():
        if not opt.stamps or nst[0] >= 18: return None
        r = S_ST + 2 * nst[0]; nst[0] += 1
        return f"{'s_memtime' if opt.cyc else 's_memrealtime'} s[{r}:{r+1}]"
    def stamp():
        if opt.pairs and opt.stamps:
            opt.cyc = False; a(stamp_s()); opt.cyc = True; a(stamp_s()); return
        s = stamp_s()
        if s: a(s)
    stamp()
    if opt.fixdur or opt.lstamps: a("s_memrealtime s[98:99]")
    a(f"s_bfe_u32 s{S_BR}, s2, 0x10002")
    a(f"s_mul_i32 s41, s{S_BR}, 40")
    a("s_add_u32 s42, s0, s41"); a("s_addc_u32 s43, s1, 0")
    a("s_cmp_ge_u32 s2, 256"); a("s_cbranch_scc1 L_end")
    a(f"s_load_dwordx2 s[{SRD_WQ}:{SRD_WQ+1}], s[42:43], 24")
    a(f"s_load_dwordx2 s[{SRD_X}:{SRD_X+1}], s[42:43], 0")
    a("v_lshrrev_b32 v1, 6, v0"); a("v_and_b32 v0, 63, v0")
    a(f"s_load_dwordx2 s[{SRD_WS}:{SRD_WS+1}], s[0:1], 96")
    a(f"v_readfirstlane_b32 s{S_WAVE}, v1")
    a(f"s_and_b32 s{S_KQ}, s2, 3"); a(f"s_lshr_b32 s{S_RB}, s2, 6"); a(f"s_bfe_u32 s{S_IDX}, s2, 0x30003")
    a(f"s_lshl_b32 s{S_HQ}, s{S_RB}, 1"); a(f"s_add_u32 s{S_HQ}, s{S_HQ}, s{S_IDX}"); a(f"s_and_b32 s{S_HQ}, s{S_HQ}, 7")
    a(f"s_sub_u32 s40, s{S_WAVE}, 4"); a("s_cmp_ge_u32 s40, 2"); a("s_cbranch_scc1 L_other")
    def mk(b, n): a(f"s_mov_b32 s{b+2}, {hex(n)}"); a(f"s_mov_b32 s{b+3}, 0x20000")
    def ids():
        a(f"s_lshl_b32 s{S_CL}, s{S_BR}, 2"); a(f"s_add_u32 s{S_CL}, s{S_CL}, s{S_RB}")
        a(f"s_lshl_b32 s{S_GRP}, s{S_CL}, 2"); a(f"s_add_u32 s{S_GRP}, s{S_GRP}, s{S_KQ}")
    def tag_hash():
        a(f"s_mul_i32 s{S_TAG}, s{S_TAG}, 0x9e3779b1"); a(f"s_add_u32 s{S_TAG}, s{S_TAG}, 0x7f4a7c15")
        a(f"s_mul_i32 s{S_TAG+1}, s{S_TAG+1}, 0x85ebca6b"); a(f"s_add_u32 s{S_TAG+1}, s{S_TAG+1}, 0xc2b2ae35")
    def tag_load():
        a(f"s_lshl_b32 s40, s{S_CL}, 7"); a(f"s_load_dwordx2 s[{S_TAG}:{S_TAG+1}], s[{SRD_WS}:{SRD_WS+1}], s40")

    a.c("---- loader waves")
    mk(SRD_WQ, 0x800000); mk(SRD_X, 0x100000)
    a("v_lshrrev_b32 v3, 4, v0"); a("v_and_b32 v2, 15, v0")
    a("v_lshlrev_b32 v4, 2, v3"); a("v_xor_b32 v2, v2, v4"); a("v_lshlrev_b32 v2, 4, v2"); a("v_xor_b32 v5, 32, v2")
    a("s_lshl_b32 s41, s40, 2"); a("v_add_u32 v6, s41, v3")
    a("v_lshl_add_u32 v12, v6, 13, v2"); a("v_lshl_add_u32 v13, v6, 13, v5")
    a(f"s_lshl_b32 s{S_W}, s40, 10")
    a(f"s_lshl_b32 s50, s{S_RB}, 2"); a(f"s_lshl_b32 s51, s{S_HQ}, 1"); a("s_add_u32 s50, s50, s51")
    a(f"s_lshl_b32 s51, s{S_KQ}, 3"); a(f"s_add_u32 s51, s51, s{S_HQ}"); a("s_lshl_b32 s53, s51, 8")
    a("s_and_b32 s54, s50, 15"); a("s_lshl_b32 s55, s54, 19"); a(f"s_add_u32 s{S_OFFW}, s53, s55")
    a(f"s_lshl_b32 s52, s{S_RB}, 18"); a("s_lshl_b32 s55, s54, 7"); a(f"s_add_u32 s{S_OFFR}, s52, s55")
    a("v_lshrrev_b32 v1, 3, v0"); a("v_and_b32 v7, 7, v0"); a("v_xor_b32 v7, v7, v6"); a("v_lshlrev_b32 v7, 4, v7")
    a("s_lshl_b32 s41, s40, 3"); a("v_add_u32 v1, s41, v1"); a("v_lshl_add_u32 v10, v1, 11, v7")
    if opt.lstamps: a("s_memrealtime s[92:93]")
    def lst():
        if opt.lstamps:
            a("s_memrealtime s[92:93]"); a("s_waitcnt lgkmcnt(0)"); a("s_mov_b32 m0, s94"); a("v_writelane_b32 v30, s92, m0"); a("s_add_u32 s94, s94, 1")
    issued = []
    def dma(tg, vo, sr, sbase, lit, ldsoff, fl=""):
        a(f"s_add_u32 m0, s{S_W}, {ldsoff}")
        a(f"s_add_u32 s41, s{sbase}, {hex(lit)}")
        a(f"buffer_load_dwordx4 v{vo}, {srd(sr)}, s41 offen {fl} lds")
        issued.append(tg)
    def prep(n):
        if n < 16:
            a(f"s_bfe_u32 s54, s{42 + (n >> 3)}, {hex(4*(n & 7) | (4 << 16))}")
            a("s_add_u32 s54, s54, s50"); a("s_and_b32 s54, s54, 15")
            if opt.samek: a("s_and_b32 s54, s54, 1")
            a(f"s_lshl_b32 s55, s54, 7"); a(f"s_add_u32 s{S_OFFR}, s52, s55")
            a(f"s_lshl_b32 s55, s54, 19"); a(f"s_add_u32 s{S_OFFW}, s53, s55")
        elif n % 2 == 0:
            a(f"s_bfe_u32 s54, s{S_HT}, {hex(4*((n - 16) >> 1) | (4 << 16))}")
            if opt.samek: a("s_mov_b32 s54, 0")
            a("s_lshl_b32 s55, s54, 13"); a(f"s_add_u32 s{S_OFFR}, s58, s55")
            a("s_lshl_b32 s55, s54, 18"); a(f"s_add_u32 s{S_OFFW}, s59, s55")
    KAT = tuple(map(int, opt.kat.split(","))) if opt.kat else (opt.p1, opt.p3)
    def item_ops(n):
        so = slot(n) * SLOT; c2 = n & 1
        if n < 16:
            W = [(n, 12 + (m & 1), SRD_WQ, S_OFFW, m*8*8192, so + 16384 + m*2048) for m in range(8)]
            R = [(n, 10, SRD_X, S_OFFR, m*16*2048, so + m*2048) for m in range(8)]
        else:
            W = [(n, 14 + (m & 1), SRD_WO, S_OFFW, m*8*2048 + c2*64*2048, so + 16384 + m*2048) for m in range(8)]
            R = [(n, 11, SRD_V, S_OFFR, (m//2)*262144 + (m % 2)*4096 + c2*128, so + m*2048) for m in range(8)]
        X = []
        for c, kk in enumerate(KAT):
            if kk == n: X += [(n, 11, SRD_K, 57, (m//2)*262144 + (m % 2)*4096 + h*128, AUX + h*16384 + m*2048) for m in range(4*c, 4*c+4) for h in range(2)]
        return W + X + R
    def pdma(i):
        a(f"s_bfe_u32 s60, s{S_HT}, {hex(4*i | (4 << 16))}"); a("s_lshl_b32 s60, s60, 13"); a(f"s_add_u32 s60, s60, s{S_PB}")
        for m in range(4): dma(f"P{i}", 16, SRD_WS, 60, m*2048, AUX + (i % 4)*8192 + m*2048, opt.pflags)
    def bar(need):
        last = max(i for i, t in enumerate(issued) if t in need)
        a(f"s_waitcnt vmcnt({len(issued) - 1 - last})")
        lst(); a("s_barrier")
    a("s_waitcnt lgkmcnt(0)")
    if opt.lstamps:
        a("v_mov_b32 v30, 0"); a("s_mov_b32 s94, 3")
        a("v_writelane_b32 v30, s98, 0"); a("v_writelane_b32 v30, s92, 1")
        a("s_memrealtime s[92:93]"); a("s_waitcnt lgkmcnt(0)"); a("v_writelane_b32 v30, s92, 2")
    for o in item_ops(0): dma(*o)
    for b, o in ((SRD_K, 8), (SRD_V, 16), (SRD_WO, 32)): a(f"s_load_dwordx2 s[{b}:{b+1}], s[42:43], {o}")
    mk(SRD_K, 0x400000); mk(SRD_V, 0x400000); mk(SRD_WO, 0x800000); mk(SRD_WS, WS_REC)
    ids()
    a("v_lshl_add_u32 v11, v1, 8, v7")
    a("v_lshl_add_u32 v14, v6, 11, v2"); a("v_lshl_add_u32 v15, v6, 11, v5")
    a(f"s_xor_b32 s44, s{S_IDX}, {opt.wox}"); a(f"s_sub_u32 s44, s44, s{S_IDX}"); a("s_lshl_b32 s44, s44, 8")
    a("v_bfe_u32 v6, v2, 7, 1"); a("v_mul_lo_u32 v6, v6, s44"); a(f"s_lshl_b32 s44, s{S_IDX}, 8"); a("v_add_u32 v6, s44, v6")
    a("v_add_u32 v14, v14, v6"); a("v_add_u32 v15, v15, v6")
    a("v_lshlrev_b32 v16, 4, v0"); a(f"v_add_u32 v16, s{S_W}, v16")
    a(f"s_lshl_b32 s56, s{S_RB}, 20"); a("s_lshl_b32 s41, s51, 13"); a("s_add_u32 s57, s56, s41")
    a(f"s_lshl_b32 s41, s{S_KQ}, 16"); a("s_add_u32 s58, s56, s41")
    a(f"s_lshl_b32 s59, s{S_KQ}, 21")
    a(f"s_lshl_b32 s{S_PB}, s{S_GRP}, 16"); a(f"s_add_u32 s{S_PB}, s{S_PB}, {hex(PBUF)}")
    PMS = list(map(int, opt.pm.split(",")))
    def h_table(pm):
        seq = []; r = [2, 4, 6, 3, 5, 7]
        for i in range(8): seq.append(0 if i == 0 else 1 if i == pm else r.pop(0))
        return seq
    ht = [sum(x << (4*i) for i, x in enumerate(h_table(pm))) for pm in PMS]
    a(f"s_mov_b32 s{S_HT}, {hex(ht[0])}")
    for w in range(1, len(PMS)):
        a(f"s_and_b32 s41, s{S_IDX}, {len(PMS)-1}"); a(f"s_cmp_eq_u32 s41, {w}"); a(f"s_cselect_b32 s{S_HT}, {hex(ht[w])}, s{S_HT}")
    a(f"s_mul_i32 s41, s{S_HQ}, 0x11111111"); a(f"s_add_u32 s{S_HT}, s{S_HT}, s41"); a(f"s_and_b32 s{S_HT}, s{S_HT}, 0x77777777")
    def p1_table(p1, p2, p3):
        seq = [None] * 16; Ms = {0: 0, p1: 2, p2: 1, p3: 3}; avail = []
        for n in range(16):
            if n in Ms: seq[n] = Ms[n]; avail += [(n + 1, Ms[n] + 4*j) for j in (1, 2, 3)]
            else:
                t, c = avail.pop(0); assert t <= n; seq[n] = c
        return seq
    pack = lambda seq: sum((x & 15) << (4*i) for i, x in enumerate(seq))
    P2S = list(map(int, opt.p2.split(",")))
    tabs = [pack(p1_table(opt.p1, p2, opt.p3)) for p2 in P2S]
    a("s_waitcnt lgkmcnt(0)")
    a(f"s_mov_b32 s42, {hex(tabs[0] & 0xffffffff)}"); a(f"s_mov_b32 s43, {hex(tabs[0] >> 32)}")
    for u in range(1, len(P2S)):
        a(f"s_and_b32 s41, s2, {len(P2S)-1}"); a(f"s_cmp_eq_u32 s41, {u}")
        a(f"s_cselect_b32 s42, {hex(tabs[u] & 0xffffffff)}, s42"); a(f"s_cselect_b32 s43, {hex(tabs[u] >> 32)}, s43")
    prep(1)
    for o in item_ops(1): dma(*o)
    PAT = {20: [1], 21: [2, 3], 23: [4], 25: [5], 27: [6, 7]}
    PNEED = {21: "P1", 23: "P2", 25: "P3", 27: "P4", 29: "P5"}
    for n in range(2, NI):
        prep(n)
        L = item_ops(n); q = opt.q0 if n < 4 else 0
        for o in L[:q]: dma(*o)
        k = n - 3
        bar({n - 2, PNEED.get(k)})
        if not opt.plate or k == 20:
            for i in PAT.get(k, []): pdma(i)
        for o in L[q:]: dma(*o)
        if opt.plate and k != 20:
            for i in PAT.get(k, []): pdma(i)
    bar({NI - 2, "P5"}); bar({NI - 1, "P6", "P7"})
    if opt.lstamps:
        a(f"s_cmp_lg_u32 s{S_WAVE}, 4"); a("s_cbranch_scc1 L_end")
        a("s_mul_i32 s40, s2, 512"); a("s_add_u32 s40, s40, 0x8000000")
        a(f"s_add_u32 s42, s{SRD_WS}, s40"); a(f"s_addc_u32 s43, s{SRD_WS+1}, 0")
        a("v_lshlrev_b32 v1, 3, v0"); a("v_mov_b32 v31, 0")
        a("global_store_dwordx2 v1, v[30:31], s[42:43]")
    a("s_endpgm")

    a.lab("L_other")
    mk(SRD_WS, WS_REC); ids()
    a(f"s_cmp_lt_u32 s{S_WAVE}, 4"); a("s_cbranch_scc1 L_compute")
    a(f"s_cmp_eq_u32 s{S_WAVE}, 6"); a("s_cbranch_scc1 L_end")
    a("s_waitcnt lgkmcnt(0)")
    tag_load()
    a("v_bfe_u32 v1, v0, 2, 3"); a("v_and_b32 v2, 3, v0"); a("v_lshlrev_b32 v2, 3, v2"); a("v_lshl_add_u32 v4, v1, 7, v2")
    a(f"s_lshl_b32 s43, s{S_GRP}, 10"); a(f"s_add_u32 s43, s43, {hex(PFLAG)}")
    a("s_waitcnt lgkmcnt(0)")
    tag_hash()
    a(f"v_mov_b32 v2, s{S_TAG}"); a(f"v_mov_b32 v3, s{S_TAG+1}")
    a(f"s_mov_b32 s44, 21")
    a.lab("L_pb"); a("s_barrier"); a("s_sub_u32 s44, s44, 1"); a("s_cmp_lg_u32 s44, 0"); a("s_cbranch_scc1 L_pb")
    a(f"s_mov_b32 s44, {opt.spin}")
    a.lab("L_ppoll")
    a(f"buffer_load_dwordx2 v[8:9], v4, {srd(SRD_WS)}, s43 offen sc1")
    a("s_sub_u32 s44, s44, 1"); a("s_cmp_eq_u32 s44, 0")
    a("s_waitcnt vmcnt(0)")
    a("s_cbranch_scc1 L_end")
    a("v_cmp_ne_u64 vcc, v[8:9], v[2:3]")
    a("s_cbranch_vccz L_end")
    a("s_sleep 2"); a("s_branch L_ppoll")
    a.lab("L_end")
    a("s_endpgm")

    a.lab("L_compute")
    mark = [len(a.L)]; rep = []
    def flush_passes():
        body = hazard_fix(auto_wait(a.L[mark[0]:]), report=rep)
        a.L = a.L[:mark[0]] + body
        mark[0] = len(a.L)
    a(f"s_load_dwordx2 s[{SRD_OUT}:{SRD_OUT+1}], s[0:1], 80"); mk(SRD_OUT, 0x200000)
    if opt.prio: a(f"s_setprio {opt.prio}")
    a(f"s_lshr_b32 s{S_WM}, s{S_WAVE}, 1"); a(f"s_and_b32 s{S_WN}, s{S_WAVE}, 1")
    a("v_and_b32 v1, 15, v0"); a("v_lshrrev_b32 v2, 4, v0")
    a("v_lshrrev_b32 v3, 1, v1"); a("v_xor_b32 v4, v3, v2"); a("v_lshlrev_b32 v4, 4, v4"); a("v_lshl_add_u32 v4, v1, 7, v4")
    a(f"s_lshl_b32 s43, s{S_WAVE}, 12"); a("s_xor_b32 s42, s43, 4096")
    a(f"v_add_u32 v{V_AR}, s42, v4"); a(f"v_add_u32 v{V_AR+1}, s43, v4")
    a(f"v_xor_b32 v{V_AR+2}, 64, v{V_AR}"); a(f"v_xor_b32 v{V_AR+3}, 64, v{V_AR+1}")
    a("v_lshrrev_b32 v5, 1, v2"); a("v_xor_b32 v5, v5, v3"); a("v_lshlrev_b32 v5, 4, v5"); a("v_lshl_add_u32 v5, v1, 7, v5")
    a("v_and_b32 v6, 1, v2"); a("v_lshl_add_u32 v5, v6, 3, v5")
    a(f"s_lshl_b32 s44, s{S_WN}, 14"); a(f"s_add_u32 s44, s44, {AUX}")
    a("s_add_u32 s42, s42, s44"); a("s_add_u32 s43, s43, s44")
    a(f"v_add_u32 v{V_T}, s42, v5"); a(f"v_add_u32 v{V_T+1}, s43, v5")
    for bb in range(2):
        for uz in range(1, 4): a(f"v_xor_b32 v{V_T+4+3*bb+uz-1}, {32*uz}, v{V_T+bb}")
    a("v_bfe_u32 v5, v0, 2, 2"); a("v_lshl_add_u32 v4, v2, 3, v5"); a("v_lshlrev_b32 v4, 8, v4")
    a("v_and_b32 v3, 3, v0"); a("v_lshl_add_u32 v4, v3, 3, v4"); a("v_add_u32 v4, 16384, v4")
    a("v_lshlrev_b32 v5, 1, v5"); a("v_or_b32 v5, v5, v6")
    a(f"s_lshl_b32 s40, s{S_WN}, 2")
    for b in range(4):
        a(f"s_add_u32 s41, s40, {b}"); a("v_xor_b32 v3, s41, v5"); a(f"v_lshl_add_u32 v{V_AW+b}, v3, 5, v4")
    a(f"s_lshr_b32 s52, s{S_KQ}, 1"); a("s_lshl_b32 s52, s52, 12")
    a(f"s_lshl_b32 s53, s{S_KQ}, 10"); a(f"s_add_u32 s53, s53, {AUX}")
    a("v_lshlrev_b32 v7, 4, v0"); a(f"v_mov_b32 v{V_Z}, 0")
    a(f"s_mov_b32 s{S_C}, 0x3e0293ee")
    a(f"s_lshl_b32 s40, s{S_WM}, 13"); a("s_add_u32 s40, s40, s44")
    a(f"v_add_u32 v{V_T+10}, s40, v7"); a(f"v_xor_b32 v{V_T+11}, 0x4000, v{V_T+10}")
    a(f"s_lshl_b32 s41, s{S_WAVE}, 11"); a("s_xor_b32 s42, s41, 2048")
    a(f"v_add_u32 v{V_T+2}, s42, v7"); a(f"v_add_u32 v{V_T+3}, s41, v7")
    a(f"v_add_u32 v{V_T+12}, {AUX}, v{V_T+3}")
    a("s_waitcnt lgkmcnt(0)")
    tag_load()
    a(f"s_lshl_b32 s40, s{S_GRP}, 3"); a(f"s_add_u32 s40, s40, s{S_HQ}")
    a(f"s_lshl_b32 s{S_PB}, s40, 13"); a(f"s_add_u32 s{S_PB}, s{S_PB}, {hex(PBUF)}")
    a("s_lshl_b32 s40, s40, 7"); a(f"s_lshl_b32 s41, s{S_WAVE}, 3"); a("s_add_u32 s40, s40, s41"); a(f"s_add_u32 s{S_FL}, s40, {hex(PFLAG)}")
    a("s_waitcnt lgkmcnt(0)")
    tag_hash()
    a(f"v_mov_b32 v{V_TAG}, s{S_TAG}"); a(f"v_mov_b32 v{V_TAG+1}, s{S_TAG+1}")
    a("s_barrier")
    stamp()

    def rel(n): return (slot(n) & 1) * SLOT
    def upd(n): return {0: None, 1: "0x10000", -1: "0xffff0000"}[(slot(n + 1) >> 1) - (slot(n) >> 1)]
    def rdR(n, s, aa): return f"ds_read_b128 {vr(V_R+4*aa,4)}, v{V_AR + 2*s + (aa >> 1)} offset:{rel(n) + (aa & 1)*2048}"
    def rdW(n, s, b, z): return f"ds_read_b64_tr_b16 {vr(V_W + 16*s + 4*b + 2*z, 2)}, v{V_AW+b} offset:{rel(n) + s*8192 + z*1024}"
    WPOS = {(0,0): (0,0), (0,1): (0,1), (0,2): (1,0), (1,0): (1,1), (1,1): (2,0), (1,2): (2,1), (2,0): (3,0), (2,1): (3,1)}
    WAITPOS = {(0,0), (0,1), (0,2), (0,3), (2,0), (3,0)}
    def acc(aa, b): return vr(V_ACC + 16*aa + 4*b, 4)
    def first_reads(n):
        for aa in range(4):
            for b in range(4):
                if (aa, b) in WPOS: a(rdW(n, 0, *WPOS[(aa, b)]))
                if b == 3: a(rdR(n, 0, aa))
    def item_gaps(n, zero, nxt, bar=True):
        G = []
        for s in range(2):
            tk, ts = (n, 1) if s == 0 else (nxt, 0)
            for aa in range(4):
                for b in range(4):
                    post = []
                    W = vr(V_W + 16*s + 4*b, 4); R = vr(V_R + 4*aa, 4)
                    C = "0" if (zero and s == 0) else acc(aa, b)
                    m = f"{MF} {acc(aa,b)}, {W}, {R}, {C}" if n < 16 else f"{MF} {acc(aa,b)}, {R}, {W}, {C}"
                    if tk is not None:
                        if (aa, b) in WPOS: post.append(rdW(tk, ts, *WPOS[(aa, b)]))
                        if b == 3: post.append(rdR(tk, ts, aa))
                    u = upd(n) if nxt is not None else None
                    if u is not None:
                        if s == 0 and aa == 3 and b < 3: post.append(f"v_add_u32 v{V_AW+b}, {u}, v{V_AW+b}")
                        if s == 0 and aa == 2 and b == 2: post += [f"v_add_u32 v{V_AR}, {u}, v{V_AR}", f"v_add_u32 v{V_AR+1}, {u}, v{V_AR+1}"]
                        if s == 0 and aa == 3 and b == 2: post.append(f"v_add_u32 v{V_AW+3}, {u}, v{V_AW+3}")
                        if s == 1 and aa == 3 and b < 2: post.append(f"v_add_u32 v{V_AR+2+b}, {u}, v{V_AR+2+b}")
                    if bar and s == 0 and aa == 3 and b == 3: post.append("s_barrier")
                    G.append([1 if (aa, b) in WAITPOS else 0, m, post])
        return G
    def load_of(G, i): return len(G[i][2]) + (G[i+1][0] if i + 1 < len(G) else 0)
    def inject(G, start, opsl, cap=2, onelds=True):
        i = start
        for op in opsl:
            while i < len(G) and (load_of(G, i) >= cap or (onelds and op.startswith("ds_") and any(x.startswith("ds_") for x in G[i][2]))): i += 1
            if i >= len(G): G[-1][2].append(op); i = len(G) - 1; continue
            G[i][2].append(op)
        return i
    def emitG(G):
        for w, m, post in G:
            a(m)
            for x in post: a(x)
    kf = lambda bb, kt, u: V_KF + 16*bb + 8*kt + 4*u
    sp = lambda bb, kt, qt: V_SP + 16*bb + 8*kt + 4*qt
    kaddr = lambda bb, u, z: (V_T + bb) if (u == 0 and z == 0) else (V_T + 4 + 3*bb + 2*u + z - 1)
    kreads = [f"ds_read_b64 {vr(kf(bb,kt,u) + 2*z, 2)}, v{kaddr(bb,u,z)} offset:{kt*2048}" for bb in range(2) for kt in range(2) for u in range(2) for z in range(2)]
    qcvt = lambda aa: [f"v_cvt_pk_bf16_f32 v{V_BF+i}, v{V_ACC+2*i}, v{V_ACC+2*i+1}" for i in range(8*aa, 8*aa+8)]
    def smf(bb, Cin=None):
        r = []
        for u in range(2):
            for kt in range(2):
                for qt in range(2):
                    C = (("0" if Cin is None else vr(Cin + 8*kt + 4*qt, 4)) if u == 0 else vr(sp(bb,kt,qt), 4))
                    r.append(f"{MF} {vr(sp(bb,kt,qt),4)}, {vr(kf(bb,kt,u),4)}, {vr(V_BF + 8*(2*bb+qt) + 4*u, 4)}, {C}")
        return r
    first_reads(0)
    kpos = max(KAT) + 1
    for n in range(16):
        G = item_gaps(n, n == 0, n + 1 if n < 15 else None, bar=(n < 15))
        if n == kpos: inject(G, 0, kreads[:8])
        if n == kpos + 1: inject(G, 0, kreads[8:])
        if n == 15:
            u = upd(15)
            inject(G, 16, [f"v_add_u32 v{r}, {u}, v{r}" for r in list(range(V_AR, V_AR+4)) + list(range(V_AW, V_AW+4))] +
                   [f"v_xor_b32 v{r}, s52, v{r}" for r in range(V_AR, V_AR+4)] +
                   [f"v_xor_b32 v{V_T+4}, s53, v{V_T+2}", f"v_xor_b32 v{V_T+6}, s53, v{V_T+3}", f"v_xor_b32 v{V_T+5}, 0x400, v{V_T+4}", f"v_xor_b32 v{V_T+7}, 0x400, v{V_T+6}"])
            inject(G, 24, qcvt(0), cap=3); inject(G, 28, qcvt(1), cap=3)
        emitG(G)
    stamp()
    a.c("---- partial scores of the partner's batch")
    G = [[0, m, []] for m in smf(0)]
    inject(G, 0, qcvt(2) + qcvt(3))
    emitG(G)
    RXS = V_KF
    for j in range(4): a(f"ds_write_b128 v{V_T+10}, {vr(V_SP + 4*j, 4)} offset:{j*1024}")
    a(f"ds_write_b64 v{V_T+10}, {vr(V_TAG,2)} offset:4096")
    flush_passes()
    a(f"s_mov_b32 s44, {opt.spin}")
    a.lab("L_spoll")
    a(f"ds_read_b64 v[2:3], v{V_T+11} offset:4096")
    a("s_sub_u32 s44, s44, 1"); a("s_cmp_eq_u32 s44, 0")
    a("s_waitcnt lgkmcnt(0)")
    a("s_cbranch_scc1 L_sgo")
    a(f"v_cmp_ne_u64 vcc, v[2:3], {vr(V_TAG,2)}")
    a("s_cbranch_vccnz L_spoll")
    a.lab("L_sgo")
    mark[0] = len(a.L)
    for j in range(4): a(f"ds_read_b128 {vr(RXS + 4*j, 4)}, v{V_T+11} offset:{j*1024}")
    for m in smf(1, RXS): a(m)
    S = lambda kt, qt, i: f"v{sp(1,kt,qt) + i}"
    sm = []
    M = [1, 3]; T = [2, 4]
    for qt in range(2):
        m = f"v{M[qt]}"
        sm += [f"v_max3_f32 {m}, {S(0,qt,0)}, {S(0,qt,1)}, {S(0,qt,2)}", f"v_max3_f32 {m}, {m}, {S(0,qt,3)}, {S(1,qt,0)}",
               f"v_max3_f32 {m}, {m}, {S(1,qt,1)}, {S(1,qt,2)}", f"v_max_f32 {m}, {m}, {S(1,qt,3)}"]
    def xl(op):
        o = []
        for sw in ("v_permlane16_swap_b32", "v_permlane32_swap_b32"):
            o += ["v_mov_b32 v2, v1", "v_mov_b32 v4, v3", f"{sw} v1, v2", f"{sw} v3, v4", f"{op} v1, v1, v2", f"{op} v3, v3, v4"]
        return o
    sm += xl("v_max_f32")
    sm += [f"v_mul_f32 v1, s{S_C}, v1", f"v_mul_f32 v3, s{S_C}, v3"]
    idx8 = [(kt, i) for kt in range(2) for i in range(4)]
    for qt in range(2):
        for kt, i in idx8: sm.append(f"v_fma_f32 {S(kt,qt,i)}, {S(kt,qt,i)}, s{S_C}, -v{M[qt]}")
    for qt in range(2):
        for kt, i in idx8: sm.append(f"v_exp_f32 {S(kt,qt,i)}, {S(kt,qt,i)}")
    for qt in range(2):
        m = f"v{M[qt]}"; t = f"v{T[qt]}"
        sm += [f"v_add_f32 {m}, {S(0,qt,0)}, {S(0,qt,1)}", f"v_add_f32 {t}, {S(0,qt,2)}, {S(0,qt,3)}",
               f"v_add_f32 {m}, {m}, {S(1,qt,0)}", f"v_add_f32 {t}, {t}, {S(1,qt,1)}",
               f"v_add_f32 {m}, {m}, {S(1,qt,2)}", f"v_add_f32 {t}, {t}, {S(1,qt,3)}", f"v_add_f32 {m}, {m}, {t}"]
    sm += xl("v_add_f32")
    sm += ["v_rcp_f32 v1, v1", "v_rcp_f32 v3, v3"]
    for qt in range(2):
        for kt, i in idx8: sm.append(f"v_mul_f32 {S(kt,qt,i)}, {S(kt,qt,i)}, v{M[qt]}")
        for kt in range(2):
            for h in range(2): sm.append(f"v_cvt_pk_bf16_f32 v{V_P + 4*qt + 2*kt + h}, {S(kt,qt,2*h)}, {S(kt,qt,2*h+1)}")
        sm.append(f"buffer_store_dwordx4 {vr(V_P+4*qt,4)}, v{V_T+3}, {srd(SRD_WS)}, s{S_PB} offen offset:{qt*1024} sc1")
    pw = [f"ds_write_b128 v{V_T+12}, {vr(V_P+4*qt,4)} offset:{qt*1024}" for qt in range(2)]
    flag_ops = ["s_waitcnt vmcnt(0)", f"buffer_store_dwordx2 {vr(V_TAG,2)}, v{V_Z}, {srd(SRD_WS)}, s{S_FL} offen sc1"]
    if opt.smbar >= len(sm):
        for x in sm: a(x)
        if opt.flagpos < 0:
            for x in flag_ops: a(x)
        a("s_barrier")
        first_reads(16)
    else:
        for x in sm[:opt.smbar]: a(x)
        a("s_barrier")
        first_reads(16)
        for x in sm[opt.smbar:]: a(x)
    for x in pw: a(x)
    stamp()
    order = [(bb, nt) for bb in range(2) for nt in range(4)]
    bf = lambda bb, nt: V_BF + 16*bb + 4*nt
    out = lambda bb, qt, nt: V_OUT + 16*(2*bb + qt) + 4*nt
    def cvt_ops(bb, nt):
        t0 = V_ACC + 16*(2*bb) + 4*nt; t1 = V_ACC + 16*(2*bb+1) + 4*nt; d = bf(bb, nt)
        return [f"v_cvt_pk_bf16_f32 v{d}, v{t0}, v{t0+1}", f"v_cvt_pk_bf16_f32 v{d+1}, v{t0+2}, v{t0+3}",
                f"v_cvt_pk_bf16_f32 v{d+2}, v{t1}, v{t1+1}", f"v_cvt_pk_bf16_f32 v{d+3}, v{t1+2}, v{t1+3}"]
    def pv_m(bb, qt, nt, P, zero):
        o = vr(out(bb,qt,nt), 4)
        return f"{MF} {o}, {vr(bf(bb,nt),4)}, {vr(P + 8*bb + 4*qt, 4)}, {'0' if zero else o}"
    def readP(i, P): return [f"ds_read_b128 {vr(P + 8*bb + 4*qt, 4)}, v{V_T+4+2*bb+qt} offset:{(i % 4)*8192}" for bb in range(2) for qt in range(2)]
    PN = V_W
    def boundary(i):
        G = []; prev = []
        for bb, nt in order:
            G.append([0, pv_m(bb, 0, nt, V_P, i == 1), prev[2:]])
            prev = cvt_ops(bb, nt)
            G.append([0, pv_m(bb, 1, nt, V_P, i == 1), prev[:2]])
        G[-1][2] += prev[2:]
        return G
    pre = [f"s_lshl_b32 s40, s{S_CL}, 5", f"s_add_u32 s40, s40, s{S_IDX}", f"s_lshl_b32 s41, s{S_KQ}, 2", f"s_add_u32 s41, s41, s{S_WAVE}",
           "s_lshl_b32 s43, s41, 11", f"s_add_u32 s43, s43, {hex(XBUF)}"]
    for t in (1, 2, 3):
        pre += [f"s_xor_b32 s42, s{S_KQ}, {t}", "s_lshl_b32 s42, s42, 3", "s_add_u32 s42, s42, s40", f"s_lshl_b32 s{52+t}, s42, 7",
                "s_lshl_b32 s42, s42, 15", f"s_add_u32 s{44+t}, s42, s43"]
    pre += ["s_lshl_b32 s43, s41, 3", f"s_add_u32 s43, s43, {hex(XFLAG)}"] + [f"s_add_u32 s{52+t}, s{52+t}, s43" for t in (1, 2, 3)]
    for i in range(8):
        nA, nB = 16 + 2*i, 17 + 2*i
        G = item_gaps(nA, True, nB) + item_gaps(nB, False, nB + 1 if i < 7 else None, bar=(i < 7))
        if i == 0:
            if opt.flagpos >= 0:
                fp = opt.flagpos
                if G[fp][2] and G[fp][2][-1] == "s_barrier": G[fp][2][-1:-1] = flag_ops
                else: G[fp][2].extend(flag_ops)
            cv = [x for bb, nt in order for x in cvt_ops(bb, nt)]
            inject(G, 58, cv[:16], cap=3); G[-1][2] += cv[16:]
        else:
            inject(G, 48, readP(i - 1, V_P))
        if i == 7: inject(G, 52, readP(7, PN)); inject(G, 0, pre)
        emitG(G)
        if i: emitG(boundary(i))
        if opt.hstamps: stamp()
    def send(t):
        d = V_ACC + 8*t
        o = [f"v_cvt_pk_bf16_f32 v{d+j}, v{V_OUT+16*t+2*j}, v{V_OUT+16*t+2*j+1}" for j in range(8)]
        st = [f"buffer_store_dwordx4 {vr(d + 4*g, 4)}, v7, {srd(SRD_WS)}, s{44+t} offen offset:{g*1024} sc1" for g in range(2)]
        return o[:4] + st[:1] + o[4:] + st[1:]
    G = [[0, pv_m(t >> 1, t & 1, nt, PN, False), []] for t in (1, 2, 3, 0) for nt in range(4)]
    inject(G, 6, send(1) + send(2) + send(3), cap=3)
    emitG(G)
    stamp()
    a(f"s_lshl_b32 s42, s{S_KQ}, 3"); a("s_add_u32 s42, s42, s40")
    a(f"s_lshl_b32 s56, s42, 7"); a(f"s_lshl_b32 s43, s{S_WAVE}, 3"); a("s_add_u32 s56, s56, s43"); a(f"s_add_u32 s56, s56, {hex(XFLAG)}")
    a("v_and_b32 v3, 3, v0"); a("v_min_u32 v3, 2, v3"); a(f"v_add_u32 v3, s{S_KQ}, v3"); a("v_add_u32 v3, 1, v3"); a("v_and_b32 v3, 3, v3"); a("v_lshlrev_b32 v3, 5, v3")
    a("s_lshl_b32 s42, s42, 15"); a(f"s_lshl_b32 s43, s{S_WAVE}, 11"); a("s_add_u32 s42, s42, s43"); a(f"s_add_u32 s42, s42, {hex(XBUF)}")
    for j in range(3):
        a(f"s_add_u32 s43, s{S_KQ}, {j+1}"); a("s_and_b32 s43, s43, 3"); a("s_lshl_b32 s43, s43, 13"); a(f"s_add_u32 s{58+j}, s43, s42")
    a("v_lshrrev_b32 v4, 3, v0"); a("v_lshlrev_b32 v4, 12, v4"); a("v_and_b32 v5, 7, v0"); a("v_lshl_add_u32 v4, v5, 4, v4")
    a(f"s_lshr_b32 s41, s{S_KQ}, 1"); a(f"s_xor_b32 s41, s41, s{S_WAVE}"); a("s_xor_b32 s41, s41, 1"); a("s_lshl_b32 s41, s41, 17")
    a(f"s_lshl_b32 s40, s{S_RB}, 19"); a("s_add_u32 s40, s40, s41")
    a(f"s_and_b32 s41, s{S_KQ}, 1"); a("s_lshl_b32 s41, s41, 16"); a("s_add_u32 s40, s40, s41")
    a(f"s_lshl_b32 s41, s{S_BR}, 11"); a("s_add_u32 s40, s40, s41")
    a(f"s_mul_i32 s41, s{S_WN}, {opt.wox}"); a(f"s_xor_b32 s41, s41, s{S_IDX}"); a("s_lshl_b32 s41, s41, 8"); a("s_add_u32 s40, s40, s41")
    a(f"s_lshl_b32 s41, s{S_WN}, 7"); a("s_add_u32 s40, s40, s41")
    a("s_add_u32 s41, s40, 0x8000")
    a(f"s_lshl_b32 s42, s{S_WAVE}, 11"); a(f"s_add_u32 s42, s42, {SLOT}")
    a("v_and_b32 v1, 15, v0"); a("v_lshrrev_b32 v2, 5, v0"); a("v_xor_b32 v2, v2, v5"); a("v_lshlrev_b32 v2, 4, v2")
    a("v_lshl_add_u32 v1, v1, 7, v2"); a("v_bfe_u32 v2, v0, 4, 1"); a("v_lshl_add_u32 v1, v2, 3, v1"); a("v_add_u32 v1, s42, v1")
    for nt in range(1, 4): a(f"v_xor_b32 v{12+nt}, {32*nt}, v1")
    a("v_lshrrev_b32 v2, 3, v0"); a("v_xor_b32 v5, v5, v2"); a("v_lshlrev_b32 v5, 4, v5"); a("v_lshl_add_u32 v2, v2, 7, v5"); a("v_add_u32 v2, s42, v2")
    a(f"s_mov_b32 s44, {opt.spin}")
    for t in (1, 2, 3):
        a(f"s_waitcnt vmcnt({2*(3-t) + (t-1)})")
        a(f"buffer_store_dwordx2 {vr(V_TAG,2)}, v{V_Z}, {srd(SRD_WS)}, s{52+t} offen sc1")
    flush_passes()
    if opt.verbose:
        for r in rep: print("pad", r)
    RX = V_BF
    a.lab("L_xpoll")
    a(f"buffer_load_dwordx2 v[8:9], v3, {srd(SRD_WS)}, s56 offen sc1")
    a("s_sub_u32 s44, s44, 1"); a("s_cmp_eq_u32 s44, 0")
    a("s_waitcnt vmcnt(0)")
    a("s_cbranch_scc1 L_xrd")
    a(f"v_cmp_ne_u64 vcc, v[8:9], {vr(V_TAG,2)}")
    a("s_cbranch_vccnz L_xpoll")
    a.lab("L_xrd")
    stamp()
    for j in range(3):
        for g in range(2): a(f"buffer_load_dwordx4 {vr(RX + 8*j + 4*g, 4)}, v7, {srd(SRD_WS)}, s{58+j} offen offset:{g*1024} sc1")
    for j in range(3):
        a(f"s_waitcnt vmcnt({4 - 2*j})")
        for i in range(8):
            r = RX + 8*j + i
            a(f"v_lshlrev_b32 v5, 16, v{r}"); a(f"v_and_b32 v6, 0xffff0000, v{r}")
            a(f"v_add_f32 v{V_OUT+2*i}, v{V_OUT+2*i}, v5"); a(f"v_add_f32 v{V_OUT+2*i+1}, v{V_OUT+2*i+1}, v6")
    for i in range(8): a(f"v_cvt_pk_bf16_f32 v{V_R+i}, v{V_OUT+2*i}, v{V_OUT+2*i+1}")
    for nt in range(4): a(f"ds_write_b64 v{12+nt if nt else 1}, {vr(V_R+2*nt,2)}")
    a(f"ds_read_b128 {vr(V_R+8,4)}, v2"); a(f"ds_read_b128 {vr(V_R+12,4)}, v2 offset:1024")
    a("s_waitcnt lgkmcnt(1)")
    a(f"buffer_store_dwordx4 {vr(V_R+8,4)}, v4, {srd(SRD_OUT)}, s40 offen {opt.outflags}")
    a("s_waitcnt lgkmcnt(0)")
    a(f"buffer_store_dwordx4 {vr(V_R+12,4)}, v4, {srd(SRD_OUT)}, s41 offen {opt.outflags}")
    a(f"s_or_b32 s40, s{S_KQ}, s{S_IDX}"); a(f"s_or_b32 s40, s40, s{S_WAVE}"); a("s_cmp_lg_u32 s40, 0"); a("s_cbranch_scc1 L_noep")
    a(f"s_lshl_b32 s40, s{S_CL}, 7")
    a(f"buffer_store_dwordx2 {vr(V_TAG,2)}, v{V_Z}, {srd(SRD_WS)}, s40 offen {opt.outflags}")
    a.lab("L_noep")
    if opt.fixdur:
        a.lab("L_fix")
        a("s_memrealtime s[92:93]"); a("s_waitcnt lgkmcnt(0)"); a("s_sub_u32 s92, s92, s98")
        a(f"s_cmp_lt_u32 s92, {opt.fixdur}"); a("s_cbranch_scc1 L_fix")
    if opt.stamps:
        a("s_waitcnt vmcnt(0)")
        stamp()
        a(f"s_cmp_lg_u32 s{S_WAVE}, 0"); a("s_cbranch_scc1 L_end2")
        a("s_waitcnt lgkmcnt(0)")
        n = nst[0]
        a(f"s_mul_i32 s40, s2, {n*8}"); a("s_add_u32 s40, s40, 0x8000000")
        a(f"s_add_u32 s42, s{SRD_WS}, s40"); a(f"s_addc_u32 s43, s{SRD_WS+1}, 0")
        for i in range(n):
            a(f"v_mov_b32 v8, s{S_ST+2*i}"); a(f"v_mov_b32 v9, s{S_ST+2*i+1}")
            a(f"global_store_dwordx2 v{V_Z}, v[8:9], s[42:43] offset:{i*8}"); a("s_nop 1")
        a.lab("L_end2")
    a("s_endpgm")
    tail = ['.section .rodata,"a"', ".p2align 6", f".amdhsa_kernel {NAME}_kernel"]
    tail += ["  .amdhsa_" + l for l in ("next_free_vgpr 256", "next_free_sgpr 102", "accum_offset 256", "group_segment_fixed_size 0", "kernarg_size 104",
              "user_sgpr_count 2", "user_sgpr_kernarg_segment_ptr 1", "system_sgpr_workgroup_id_x 1")]
    tail += [".end_amdhsa_kernel"]
    txt = "\n".join(head + [(x if x.endswith(":") else "    " + x) for x in a.L] + tail) + "\n"
    return txt, nst[0], rep

def parse(argv):
    ap = argparse.ArgumentParser()
    ap.add_argument("-o", default="cdna_kernels/" + NAME + ".s")
    for f in ("stamps", "cyc", "lstamps", "nodma", "nomfma", "samek", "hstamps", "verbose", "pairs"): ap.add_argument("--" + f, action="store_true")
    ap.add_argument("--prio", type=int, default=0)
    ap.add_argument("--spin", type=int, default=100000)
    ap.add_argument("--fixdur", type=int, default=0)
    ap.add_argument("--q0", type=int, default=2)
    ap.add_argument("--p1", type=int, default=4)
    ap.add_argument("--p2", default="6,8")
    ap.add_argument("--p3", type=int, default=12)
    ap.add_argument("--pm", default="2,3,4,3")
    ap.add_argument("--kat", default="")
    ap.add_argument("--wox", type=int, default=3)
    ap.add_argument("--smbar", type=int, default=60)
    ap.add_argument("--flagpos", type=int, default=24)
    ap.add_argument("--outflags", default="sc1")
    ap.add_argument("--pflags", default="sc1")
    ap.add_argument("--plate", type=int, default=0)
    return ap.parse_args(argv)

if __name__ == "__main__":
    opt = parse(sys.argv[1:])
    t, n, rep = gen(opt)
    open(opt.o, "w").write(t)
    print("wrote", opt.o, "stamps", n, "lines", t.count("\n"), "pads", len(rep))
```

```python
import sys, argparse
from passes import auto_wait, hazard_fix
NAME = "concat_heads__mha_block_cached__mha_block_cached__near_ridge"

class Asm:
    def __init__(self): self.L = []; self.drop = []
    def __call__(self, s):
        for pat in self.drop:
            if pat in s: return
        self.L.append(s)
    def lab(self, s): self.L.append(s + ":")
    def c(self, s): self.L.append("; " + s)

PFLAG = 0x4000; XFLAG = 0x10000; PBUF = 0x100000; XBUF = 0x400000; WS_REC = 0xC00000
SLOT = 32768; AUX = 4 * SLOT
S_BR, S_KQ, S_RB, S_IDX, S_WAVE = 3, 4, 5, 6, 7
SRD_X, SRD_K, SRD_V, SRD_WQ, SRD_WO, SRD_WS, SRD_OUT = 8, 12, 16, 20, 24, 28, 32
S_TAG = 36; S_CL = 38; S_HQ = 39
S_C = 50; S_PB = 49; S_OFFR = 47; S_OFFW = 48; S_W = 45; S_HT = 46
S_WM, S_WN = 56, 57; S_FL = 60; S_GRP = 61
S_ST = 62
def srd(b): return f"s[{b}:{b+3}]"
def vr(b, n): return f"v[{b}:{b+n-1}]"
V_AR = 8; V_AW = 12; V_R = 16; V_W = 32; V_BF = 64; V_P = 96; V_TAG = 112; V_Z = 114; V_T = 115
V_ACC = 128; V_OUT = 192; V_KF = 192; V_SP = 224
MF = "v_mfma_f32_16x16x32_bf16"
NI = 32
def slot(n): return n % 4

def gen(opt):
    a = Asm()
    if opt.nodma: a.drop.append(" lds")
    if opt.nomfma: a.drop += ["v_mfma"]
    head = ["; Fused double MHA block: Q-proj + scores + softmax | V*Wo + P*(V*Wo) | split-K reduce-scatter (gfx950)",
            f"; @launch grid=(256,1,1) block=(512,1,1) lds={SLOT*5}",
            '.amdgcn_target "amdgcn-amd-amdhsa--gfx950"', ".text", f".globl {NAME}_kernel", ".p2align 8", f".type {NAME}_kernel,@function"]
    a.lab(f"{NAME}_kernel")
    nst = [0]
    def stamp_s():
        if not opt.stamps or nst[0] >= 18: return None
        r = S_ST + 2 * nst[0]; nst[0] += 1
        return f"{'s_memtime' if opt.cyc else 's_memrealtime'} s[{r}:{r+1}]"
    def stamp():
        if opt.pairs and opt.stamps:
            opt.cyc = False; a(stamp_s()); opt.cyc = True; a(stamp_s()); return
        s = stamp_s()
        if s: a(s)
    stamp()
    if opt.fixdur or opt.lstamps: a("s_memrealtime s[98:99]")
    a(f"s_bfe_u32 s{S_BR}, s2, 0x10002")
    a(f"s_mul_i32 s41, s{S_BR}, 40")
    a("s_add_u32 s42, s0, s41"); a("s_addc_u32 s43, s1, 0")
    a("s_cmp_ge_u32 s2, 256"); a("s_cbranch_scc1 L_end")
    a(f"s_load_dwordx2 s[{SRD_WQ}:{SRD_WQ+1}], s[42:43], 24")
    a(f"s_load_dwordx2 s[{SRD_X}:{SRD_X+1}], s[42:43], 0")
    a("v_lshrrev_b32 v1, 6, v0"); a("v_and_b32 v0, 63, v0")
    a(f"s_load_dwordx2 s[{SRD_WS}:{SRD_WS+1}], s[0:1], 96")
    a(f"v_readfirstlane_b32 s{S_WAVE}, v1")
    a(f"s_and_b32 s{S_KQ}, s2, 3"); a(f"s_lshr_b32 s{S_RB}, s2, 6"); a(f"s_bfe_u32 s{S_IDX}, s2, 0x30003")
    a(f"s_lshl_b32 s{S_HQ}, s{S_RB}, 1"); a(f"s_add_u32 s{S_HQ}, s{S_HQ}, s{S_IDX}"); a(f"s_and_b32 s{S_HQ}, s{S_HQ}, 7")
    a(f"s_sub_u32 s40, s{S_WAVE}, 4"); a("s_cmp_ge_u32 s40, 2"); a("s_cbranch_scc1 L_other")
    def mk(b, n): a(f"s_mov_b32 s{b+2}, {hex(n)}"); a(f"s_mov_b32 s{b+3}, 0x20000")
    def ids():
        a(f"s_lshl_b32 s{S_CL}, s{S_BR}, 2"); a(f"s_add_u32 s{S_CL}, s{S_CL}, s{S_RB}")
        a(f"s_lshl_b32 s{S_GRP}, s{S_CL}, 2"); a(f"s_add_u32 s{S_GRP}, s{S_GRP}, s{S_KQ}")
    def tag_hash():
        a(f"s_mul_i32 s{S_TAG}, s{S_TAG}, 0x9e3779b1"); a(f"s_add_u32 s{S_TAG}, s{S_TAG}, 0x7f4a7c15")
        a(f"s_mul_i32 s{S_TAG+1}, s{S_TAG+1}, 0x85ebca6b"); a(f"s_add_u32 s{S_TAG+1}, s{S_TAG+1}, 0xc2b2ae35")
    def tag_load():
        a(f"s_lshl_b32 s40, s{S_CL}, 7"); a(f"s_load_dwordx2 s[{S_TAG}:{S_TAG+1}], s[{SRD_WS}:{SRD_WS+1}], s40")

    a.c("---- loader waves")
    mk(SRD_WQ, 0x800000); mk(SRD_X, 0x100000)
    a("v_lshrrev_b32 v3, 4, v0"); a("v_and_b32 v2, 15, v0")
    a("v_lshlrev_b32 v4, 2, v3"); a("v_xor_b32 v2, v2, v4"); a("v_lshlrev_b32 v2, 4, v2"); a("v_xor_b32 v5, 32, v2")
    a("s_lshl_b32 s41, s40, 2"); a("v_add_u32 v6, s41, v3")
    a("v_lshl_add_u32 v12, v6, 13, v2"); a("v_lshl_add_u32 v13, v6, 13, v5")
    a(f"s_lshl_b32 s{S_W}, s40, 10")
    a(f"s_lshl_b32 s50, s{S_RB}, 2"); a(f"s_xor_b32 s51, s{S_HQ}, {opt.pix}"); a("s_lshl_b32 s51, s51, 1"); a("s_add_u32 s50, s50, s51")
    a(f"s_lshl_b32 s51, s{S_KQ}, 3"); a(f"s_add_u32 s51, s51, s{S_HQ}"); a("s_lshl_b32 s53, s51, 8")
    a("s_and_b32 s54, s50, 15"); a("s_lshl_b32 s55, s54, 19"); a(f"s_add_u32 s{S_OFFW}, s53, s55")
    a(f"s_lshl_b32 s52, s{S_RB}, 18"); a("s_lshl_b32 s55, s54, 7"); a(f"s_add_u32 s{S_OFFR}, s52, s55")
    a("v_lshrrev_b32 v1, 3, v0"); a("v_and_b32 v7, 7, v0"); a("v_xor_b32 v7, v7, v6"); a("v_lshlrev_b32 v7, 4, v7")
    a("s_lshl_b32 s41, s40, 3"); a("v_add_u32 v1, s41, v1"); a("v_lshl_add_u32 v10, v1, 11, v7")
    if opt.lstamps: a("s_memrealtime s[92:93]")
    def lst():
        if opt.lstamps:
            a("s_memrealtime s[92:93]"); a("s_waitcnt lgkmcnt(0)"); a("s_mov_b32 m0, s94"); a("v_writelane_b32 v30, s92, m0"); a("s_add_u32 s94, s94, 1")
    issued = []
    def dma(tg, vo, sr, sbase, lit, ldsoff, fl=""):
        a(f"s_add_u32 m0, s{S_W}, {ldsoff}")
        a(f"s_add_u32 s41, s{sbase}, {hex(lit)}")
        a(f"buffer_load_dwordx4 v{vo}, {srd(sr)}, s41 offen {fl} lds")
        issued.append(tg)
    def prep(n):
        if n < 16:
            a(f"s_bfe_u32 s54, s{42 + (n >> 3)}, {hex(4*(n & 7) | (4 << 16))}")
            a("s_add_u32 s54, s54, s50"); a("s_and_b32 s54, s54, 15")
            if opt.samek: a("s_and_b32 s54, s54, 1")
            a(f"s_lshl_b32 s55, s54, 7"); a(f"s_add_u32 s{S_OFFR}, s52, s55")
            a(f"s_lshl_b32 s55, s54, 19"); a(f"s_add_u32 s{S_OFFW}, s53, s55")
        elif n % 2 == 0:
            a(f"s_bfe_u32 s54, s{S_HT}, {hex(4*((n - 16) >> 1) | (4 << 16))}")
            if opt.samek: a("s_mov_b32 s54, 0")
            a("s_lshl_b32 s55, s54, 13"); a(f"s_add_u32 s{S_OFFR}, s58, s55")
            a("s_lshl_b32 s55, s54, 18"); a(f"s_add_u32 s{S_OFFW}, s59, s55")
    KAT = tuple(map(int, opt.kat.split(","))) if opt.kat else (opt.p1, opt.p3)
    if opt.kd: KAT = (-1, -1)
    def item_ops(n):
        so = slot(n) * SLOT; c2 = n & 1
        if n < 16:
            W = [(n, 12 + (m & 1), SRD_WQ, S_OFFW, m*8*8192, so + 16384 + m*2048) for m in range(8)]
            R = [(n, 10, SRD_X, S_OFFR, m*16*2048, so + m*2048) for m in range(8)]
        else:
            W = [(n, 14 + (m & 1), SRD_WO, S_OFFW, m*8*2048 + c2*64*2048, so + 16384 + m*2048) for m in range(8)]
            R = [(n, 11, SRD_V, S_OFFR, (m//2)*262144 + (m % 2)*4096 + c2*128, so + m*2048) for m in range(8)]
        X = []
        for c, kk in enumerate(KAT):
            if kk == n: X += [(n, 11, SRD_K, 57, (m//2)*262144 + (m % 2)*4096 + h*128, AUX + h*16384 + m*2048) for m in range(4*c, 4*c+4) for h in range(2)]
        return W + X + R
    def pdma(i):
        a(f"s_bfe_u32 s60, s{S_HT}, {hex(4*i | (4 << 16))}"); a("s_lshl_b32 s60, s60, 13"); a(f"s_add_u32 s60, s60, s{S_PB}")
        for m in range(4): dma(f"P{i}", 16, SRD_WS, 60, m*2048, AUX + (i % 4)*8192 + m*2048, opt.pflags)
    def bar(need):
        last = max(i for i, t in enumerate(issued) if t in need)
        a(f"s_waitcnt vmcnt({len(issued) - 1 - last})")
        lst(); a("s_barrier")
    a("s_waitcnt lgkmcnt(0)")
    if opt.lstamps:
        a("v_mov_b32 v30, 0"); a("s_mov_b32 s94, 3")
        a("v_writelane_b32 v30, s98, 0"); a("v_writelane_b32 v30, s92, 1")
        a("s_memrealtime s[92:93]"); a("s_waitcnt lgkmcnt(0)"); a("v_writelane_b32 v30, s92, 2")
    for o in item_ops(0): dma(*o)
    for b, o in ((SRD_K, 8), (SRD_V, 16), (SRD_WO, 32)): a(f"s_load_dwordx2 s[{b}:{b+1}], s[42:43], {o}")
    mk(SRD_K, 0x400000); mk(SRD_V, 0x400000); mk(SRD_WO, 0x800000); mk(SRD_WS, WS_REC)
    ids()
    a("v_lshl_add_u32 v11, v1, 8, v7")
    a("v_lshl_add_u32 v14, v6, 11, v2"); a("v_lshl_add_u32 v15, v6, 11, v5")
    a(f"s_xor_b32 s44, s{S_IDX}, {opt.wox}"); a(f"s_sub_u32 s44, s44, s{S_IDX}"); a("s_lshl_b32 s44, s44, 8")
    a("v_bfe_u32 v6, v2, 7, 1"); a("v_mul_lo_u32 v6, v6, s44"); a(f"s_lshl_b32 s44, s{S_IDX}, 8"); a("v_add_u32 v6, s44, v6")
    a("v_add_u32 v14, v14, v6"); a("v_add_u32 v15, v15, v6")
    a("v_lshlrev_b32 v16, 4, v0"); a(f"v_add_u32 v16, s{S_W}, v16")
    a(f"s_lshl_b32 s56, s{S_RB}, 20"); a("s_lshl_b32 s41, s51, 13"); a("s_add_u32 s57, s56, s41")
    a(f"s_lshl_b32 s41, s{S_KQ}, 16"); a("s_add_u32 s58, s56, s41")
    a(f"s_lshl_b32 s59, s{S_KQ}, 21")
    a(f"s_lshl_b32 s{S_PB}, s{S_GRP}, 16"); a(f"s_add_u32 s{S_PB}, s{S_PB}, {hex(PBUF)}")
    PMS = list(map(int, opt.pm.split(",")))
    def h_table(pm):
        seq = []; r = [2, 4, 6, 3, 5, 7]
        for i in range(8): seq.append(0 if i == 0 else 1 if i == pm else r.pop(0))
        return seq
    ht = [sum(x << (4*i) for i, x in enumerate(h_table(pm))) for pm in PMS]
    a(f"s_mov_b32 s{S_HT}, {hex(ht[0])}")
    for w in range(1, len(PMS)):
        a(f"s_and_b32 s41, s{S_IDX}, {len(PMS)-1}"); a(f"s_cmp_eq_u32 s41, {w}"); a(f"s_cselect_b32 s{S_HT}, {hex(ht[w])}, s{S_HT}")
    a(f"s_mul_i32 s41, s{S_HQ}, 0x11111111"); a(f"s_add_u32 s{S_HT}, s{S_HT}, s41"); a(f"s_and_b32 s{S_HT}, s{S_HT}, 0x77777777")
    def p1_table(p1, p2, p3):
        seq = [None] * 16; Ms = {0: 0, p1: 2, p2: 1, p3: 3}; avail = []
        for n in range(16):
            if n in Ms: seq[n] = Ms[n]; avail += [(n + 1, Ms[n] + 4*j) for j in (1, 2, 3)]
            else:
                t, c = avail.pop(0); assert t <= n; seq[n] = c
        return seq
    pack = lambda seq: sum((x & 15) << (4*i) for i, x in enumerate(seq))
    P2S = list(map(int, opt.p2.split(",")))
    tabs = [pack(p1_table(opt.p1, p2, opt.p3)) for p2 in P2S]
    a("s_waitcnt lgkmcnt(0)")
    a(f"s_mov_b32 s42, {hex(tabs[0] & 0xffffffff)}"); a(f"s_mov_b32 s43, {hex(tabs[0] >> 32)}")
    for u in range(1, len(P2S)):
        a(f"s_and_b32 s41, s2, {len(P2S)-1}"); a(f"s_cmp_eq_u32 s41, {u}")
        a(f"s_cselect_b32 s42, {hex(tabs[u] & 0xffffffff)}, s42"); a(f"s_cselect_b32 s43, {hex(tabs[u] >> 32)}, s43")
    prep(1)
    for o in item_ops(1): dma(*o)
    PAT = {20: [1], 21: [2, 3], 23: [4], 25: [5], 27: [6, 7]}
    PNEED = {21: "P1", 23: "P2", 25: "P3", 27: "P4", 29: "P5"}
    KD = list(map(int, opt.kd.split(","))) if opt.kd else []
    if KD: a(f"s_and_b32 s62, s{S_IDX if opt.kdkey == 0 else S_HQ}, {len(KD)-1}")
    kops = [("K", 11, SRD_K, 57, (m//2)*262144 + (m % 2)*4096 + h*128, AUX + h*16384 + m*2048) for m in range(8) for h in range(2)]
    for n in range(2, NI):
        prep(n)
        L = item_ops(n); q = opt.q0 if n < 4 else 0
        for o in L[:q]: dma(*o)
        k = n - 3
        mask = sum(1 << t for t, c in enumerate(KD) if c in (n - 1, n - 2))
        if mask:
            last = max(i for i, t in enumerate(issued) if t == n - 2); N = len(issued) - 1 - last
            a(f"s_mov_b32 s63, {mask}"); a("s_bitcmp1_b32 s63, s62"); a(f"s_cbranch_scc1 L_kw{n}")
            a(f"s_waitcnt vmcnt({N})"); a.lab(f"L_kw{n}"); a(f"s_waitcnt vmcnt({N + 16})"); lst(); a("s_barrier")
        else:
            bar({n - 2, PNEED.get(k)})
        if not opt.plate or k == 20:
            for i in PAT.get(k, []): pdma(i)
        for o in L[q:]: dma(*o)
        if opt.plate and k != 20:
            for i in PAT.get(k, []): pdma(i)
        mask = sum(1 << t for t, c in enumerate(KD) if c == n)
        if mask:
            a(f"s_mov_b32 s63, {mask}"); a("s_bitcmp1_b32 s63, s62"); a(f"s_cbranch_scc0 L_kn{n}")
            for o in kops: dma(*o)
            del issued[-16:]
            a.lab(f"L_kn{n}")
    bar({NI - 2, "P5"}); bar({NI - 1, "P6", "P7"})
    if opt.lstamps:
        a(f"s_cmp_lg_u32 s{S_WAVE}, 4"); a("s_cbranch_scc1 L_end")
        a("s_mul_i32 s40, s2, 512"); a("s_add_u32 s40, s40, 0x8000000")
        a(f"s_add_u32 s42, s{SRD_WS}, s40"); a(f"s_addc_u32 s43, s{SRD_WS+1}, 0")
        a("v_lshlrev_b32 v1, 3, v0"); a("v_mov_b32 v31, 0")
        a("global_store_dwordx2 v1, v[30:31], s[42:43]")
    a("s_endpgm")

    a.lab("L_other")
    mk(SRD_WS, WS_REC); ids()
    a(f"s_cmp_lt_u32 s{S_WAVE}, 4"); a("s_cbranch_scc1 L_compute")
    a(f"s_cmp_eq_u32 s{S_WAVE}, 6"); a("s_cbranch_scc1 L_end")
    a("s_waitcnt lgkmcnt(0)")
    tag_load()
    a("v_bfe_u32 v1, v0, 2, 3"); a("v_and_b32 v2, 3, v0"); a("v_lshlrev_b32 v2, 3, v2"); a("v_lshl_add_u32 v4, v1, 7, v2")
    a(f"s_lshl_b32 s43, s{S_GRP}, 10"); a(f"s_add_u32 s43, s43, {hex(PFLAG)}")
    a("s_waitcnt lgkmcnt(0)")
    tag_hash()
    a(f"v_mov_b32 v2, s{S_TAG}"); a(f"v_mov_b32 v3, s{S_TAG+1}")
    a(f"s_mov_b32 s44, 21")
    a.lab("L_pb"); a("s_barrier"); a("s_sub_u32 s44, s44, 1"); a("s_cmp_lg_u32 s44, 0"); a("s_cbranch_scc1 L_pb")
    a(f"s_mov_b32 s44, {opt.spin}")
    a.lab("L_ppoll")
    a(f"buffer_load_dwordx2 v[8:9], v4, {srd(SRD_WS)}, s43 offen sc1")
    a("s_sub_u32 s44, s44, 1"); a("s_cmp_eq_u32 s44, 0")
    a("s_waitcnt vmcnt(0)")
    a("s_cbranch_scc1 L_end")
    a("v_cmp_ne_u64 vcc, v[8:9], v[2:3]")
    a("s_cbranch_vccz L_end")
    a("s_sleep 2"); a("s_branch L_ppoll")
    a.lab("L_end")
    a("s_endpgm")

    a.lab("L_compute")
    mark = [len(a.L)]; rep = []
    def flush_passes():
        body = hazard_fix(auto_wait(a.L[mark[0]:]), report=rep)
        a.L = a.L[:mark[0]] + body
        mark[0] = len(a.L)
    a(f"s_load_dwordx2 s[{SRD_OUT}:{SRD_OUT+1}], s[0:1], 80"); mk(SRD_OUT, 0x200000)
    if opt.prio: a(f"s_setprio {opt.prio}")
    a(f"s_lshr_b32 s{S_WM}, s{S_WAVE}, 1"); a(f"s_and_b32 s{S_WN}, s{S_WAVE}, 1")
    a("v_and_b32 v1, 15, v0"); a("v_lshrrev_b32 v2, 4, v0")
    a("v_lshrrev_b32 v3, 1, v1"); a("v_xor_b32 v4, v3, v2"); a("v_lshlrev_b32 v4, 4, v4"); a("v_lshl_add_u32 v4, v1, 7, v4")
    a(f"s_lshl_b32 s43, s{S_WAVE}, 12"); a("s_xor_b32 s42, s43, 4096")
    a(f"v_add_u32 v{V_AR}, s42, v4"); a(f"v_add_u32 v{V_AR+1}, s43, v4")
    a(f"v_xor_b32 v{V_AR+2}, 64, v{V_AR}"); a(f"v_xor_b32 v{V_AR+3}, 64, v{V_AR+1}")
    a("v_lshrrev_b32 v5, 1, v2"); a("v_xor_b32 v5, v5, v3"); a("v_lshlrev_b32 v5, 4, v5"); a("v_lshl_add_u32 v5, v1, 7, v5")
    a("v_and_b32 v6, 1, v2"); a("v_lshl_add_u32 v5, v6, 3, v5")
    a(f"s_lshl_b32 s44, s{S_WN}, 14"); a(f"s_add_u32 s44, s44, {AUX}")
    a("s_add_u32 s42, s42, s44"); a("s_add_u32 s43, s43, s44")
    a(f"v_add_u32 v{V_T}, s42, v5"); a(f"v_add_u32 v{V_T+1}, s43, v5")
    for bb in range(2):
        for uz in range(1, 4): a(f"v_xor_b32 v{V_T+4+3*bb+uz-1}, {32*uz}, v{V_T+bb}")
    a("v_bfe_u32 v5, v0, 2, 2"); a("v_lshl_add_u32 v4, v2, 3, v5"); a("v_lshlrev_b32 v4, 8, v4")
    a("v_and_b32 v3, 3, v0"); a("v_lshl_add_u32 v4, v3, 3, v4"); a("v_add_u32 v4, 16384, v4")
    a("v_lshlrev_b32 v5, 1, v5"); a("v_or_b32 v5, v5, v6")
    a(f"s_lshl_b32 s40, s{S_WN}, 2")
    for b in range(4):
        a(f"s_add_u32 s41, s40, {b}"); a("v_xor_b32 v3, s41, v5"); a(f"v_lshl_add_u32 v{V_AW+b}, v3, 5, v4")
    a(f"s_lshr_b32 s52, s{S_KQ}, 1"); a("s_lshl_b32 s52, s52, 12")
    a(f"s_lshl_b32 s53, s{S_KQ}, 10"); a(f"s_add_u32 s53, s53, {AUX}")
    a("v_lshlrev_b32 v7, 4, v0"); a(f"v_mov_b32 v{V_Z}, 0")
    a(f"s_mov_b32 s{S_C}, 0x3e0293ee")
    a(f"s_lshl_b32 s40, s{S_WM}, 13"); a("s_add_u32 s40, s40, s44")
    a(f"v_add_u32 v{V_T+10}, s40, v7"); a(f"v_xor_b32 v{V_T+11}, 0x4000, v{V_T+10}")
    a(f"s_lshl_b32 s41, s{S_WAVE}, 11"); a("s_xor_b32 s42, s41, 2048")
    a(f"v_add_u32 v{V_T+2}, s42, v7"); a(f"v_add_u32 v{V_T+3}, s41, v7")
    a(f"v_add_u32 v{V_T+12}, {AUX}, v{V_T+3}")
    a("s_waitcnt lgkmcnt(0)")
    tag_load()
    a(f"s_lshl_b32 s40, s{S_GRP}, 3"); a(f"s_add_u32 s40, s40, s{S_HQ}")
    a(f"s_lshl_b32 s{S_PB}, s40, 13"); a(f"s_add_u32 s{S_PB}, s{S_PB}, {hex(PBUF)}")
    a("s_lshl_b32 s40, s40, 7"); a(f"s_lshl_b32 s41, s{S_WAVE}, 3"); a("s_add_u32 s40, s40, s41"); a(f"s_add_u32 s{S_FL}, s40, {hex(PFLAG)}")
    a("s_waitcnt lgkmcnt(0)")
    tag_hash()
    a(f"v_mov_b32 v{V_TAG}, s{S_TAG}"); a(f"v_mov_b32 v{V_TAG+1}, s{S_TAG+1}")
    a("s_barrier")
    stamp()

    def rel(n): return (slot(n) & 1) * SLOT
    def upd(n): return {0: None, 1: "0x10000", -1: "0xffff0000"}[(slot(n + 1) >> 1) - (slot(n) >> 1)]
    def rdR(n, s, aa): return f"ds_read_b128 {vr(V_R+4*aa,4)}, v{V_AR + 2*s + (aa >> 1)} offset:{rel(n) + (aa & 1)*2048}"
    def rdW(n, s, b, z): return f"ds_read_b64_tr_b16 {vr(V_W + 16*s + 4*b + 2*z, 2)}, v{V_AW+b} offset:{rel(n) + s*8192 + z*1024}"
    WPOS = {(0,0): (0,0), (0,1): (0,1), (0,2): (1,0), (1,0): (1,1), (1,1): (2,0), (1,2): (2,1), (2,0): (3,0), (2,1): (3,1)}
    WAITPOS = {(0,0), (0,1), (0,2), (0,3), (2,0), (3,0)}
    def acc(aa, b): return vr(V_ACC + 16*aa + 4*b, 4)
    def first_reads(n):
        for aa in range(4):
            for b in range(4):
                if (aa, b) in WPOS: a(rdW(n, 0, *WPOS[(aa, b)]))
                if b == 3: a(rdR(n, 0, aa))
    def item_gaps(n, zero, nxt, bar=True):
        G = []
        for s in range(2):
            tk, ts = (n, 1) if s == 0 else (nxt, 0)
            for aa in range(4):
                for b in range(4):
                    post = []
                    W = vr(V_W + 16*s + 4*b, 4); R = vr(V_R + 4*aa, 4)
                    C = "0" if (zero and s == 0) else acc(aa, b)
                    m = f"{MF} {acc(aa,b)}, {W}, {R}, {C}" if n < 16 else f"{MF} {acc(aa,b)}, {R}, {W}, {C}"
                    if tk is not None:
                        if (aa, b) in WPOS: post.append(rdW(tk, ts, *WPOS[(aa, b)]))
                        if b == 3: post.append(rdR(tk, ts, aa))
                    u = upd(n) if nxt is not None else None
                    if u is not None:
                        if s == 0 and aa == 3 and b < 3: post.append(f"v_add_u32 v{V_AW+b}, {u}, v{V_AW+b}")
                        if s == 0 and aa == 2 and b == 2: post += [f"v_add_u32 v{V_AR}, {u}, v{V_AR}", f"v_add_u32 v{V_AR+1}, {u}, v{V_AR+1}"]
                        if s == 0 and aa == 3 and b == 2: post.append(f"v_add_u32 v{V_AW+3}, {u}, v{V_AW+3}")
                        if s == 1 and aa == 3 and b < 2: post.append(f"v_add_u32 v{V_AR+2+b}, {u}, v{V_AR+2+b}")
                    if bar and s == 0 and aa == 3 and b == 3: post.append("s_barrier")
                    G.append([1 if (aa, b) in WAITPOS else 0, m, post])
        return G
    def load_of(G, i): return len(G[i][2]) + (G[i+1][0] if i + 1 < len(G) else 0)
    def inject(G, start, opsl, cap=2, onelds=True):
        i = start
        for op in opsl:
            while i < len(G) and (load_of(G, i) >= cap or (onelds and op.startswith("ds_") and any(x.startswith("ds_") for x in G[i][2]))): i += 1
            if i >= len(G): G[-1][2].append(op); i = len(G) - 1; continue
            G[i][2].append(op)
        return i
    def emitG(G):
        for w, m, post in G:
            a(m)
            for x in post: a(x)
    kf = lambda bb, kt, u: V_KF + 16*bb + 8*kt + 4*u
    sp = lambda bb, kt, qt: V_SP + 16*bb + 8*kt + 4*qt
    kaddr = lambda bb, u, z: (V_T + bb) if (u == 0 and z == 0) else (V_T + 4 + 3*bb + 2*u + z - 1)
    kreads = [f"ds_read_b64 {vr(kf(bb,kt,u) + 2*z, 2)}, v{kaddr(bb,u,z)} offset:{kt*2048}" for bb in range(2) for kt in range(2) for u in range(2) for z in range(2)]
    qcvt = lambda aa: [f"v_cvt_pk_bf16_f32 v{V_BF+i}, v{V_ACC+2*i}, v{V_ACC+2*i+1}" for i in range(8*aa, 8*aa+8)]
    def smf(bb, Cin=None):
        r = []
        for u in range(2):
            for kt in range(2):
                for qt in range(2):
                    C = (("0" if Cin is None else vr(Cin + 8*kt + 4*qt, 4)) if u == 0 else vr(sp(bb,kt,qt), 4))
                    r.append(f"{MF} {vr(sp(bb,kt,qt),4)}, {vr(kf(bb,kt,u),4)}, {vr(V_BF + 8*(2*bb+qt) + 4*u, 4)}, {C}")
        return r
    first_reads(0)
    kpos = max(KAT) + 1 if not KD else max(max(KD) + 1, 12)
    for n in range(16):
        G = item_gaps(n, n == 0, n + 1 if n < 15 else None, bar=(n < 15))
        if n == kpos: inject(G, 0, kreads[:8])
        if n == kpos + 1: inject(G, 0, kreads[8:])
        if n == 15:
            u = upd(15)
            inject(G, 16, [f"v_add_u32 v{r}, {u}, v{r}" for r in list(range(V_AR, V_AR+4)) + list(range(V_AW, V_AW+4))] +
                   [f"v_xor_b32 v{r}, s52, v{r}" for r in range(V_AR, V_AR+4)] +
                   [f"v_xor_b32 v{V_T+4}, s53, v{V_T+2}", f"v_xor_b32 v{V_T+6}, s53, v{V_T+3}", f"v_xor_b32 v{V_T+5}, 0x400, v{V_T+4}", f"v_xor_b32 v{V_T+7}, 0x400, v{V_T+6}"])
            inject(G, 24, qcvt(0), cap=3); inject(G, 28, qcvt(1), cap=3)
        emitG(G)
    stamp()
    a.c("---- partial scores of the partner's batch")
    G = [[0, m, []] for m in smf(0)]
    inject(G, 0, qcvt(2) + qcvt(3))
    emitG(G)
    RXS = V_KF
    for j in range(4): a(f"ds_write_b128 v{V_T+10}, {vr(V_SP + 4*j, 4)} offset:{j*1024}")
    a(f"ds_write_b64 v{V_T+10}, {vr(V_TAG,2)} offset:4096")
    flush_passes()
    a(f"s_mov_b32 s44, {opt.spin}")
    a.lab("L_spoll")
    a(f"ds_read_b64 v[2:3], v{V_T+11} offset:4096")
    a("s_sub_u32 s44, s44, 1"); a("s_cmp_eq_u32 s44, 0")
    a("s_waitcnt lgkmcnt(0)")
    a("s_cbranch_scc1 L_sgo")
    a(f"v_cmp_ne_u64 vcc, v[2:3], {vr(V_TAG,2)}")
    a("s_cbranch_vccnz L_spoll")
    a.lab("L_sgo")
    mark[0] = len(a.L)
    for j in range(4): a(f"ds_read_b128 {vr(RXS + 4*j, 4)}, v{V_T+11} offset:{j*1024}")
    for m in smf(1, RXS): a(m)
    S = lambda kt, qt, i: f"v{sp(1,kt,qt) + i}"
    sm = []
    M = [1, 3]; T = [2, 4]
    for qt in range(2):
        m = f"v{M[qt]}"
        sm += [f"v_max3_f32 {m}, {S(0,qt,0)}, {S(0,qt,1)}, {S(0,qt,2)}", f"v_max3_f32 {m}, {m}, {S(0,qt,3)}, {S(1,qt,0)}",
               f"v_max3_f32 {m}, {m}, {S(1,qt,1)}, {S(1,qt,2)}", f"v_max_f32 {m}, {m}, {S(1,qt,3)}"]
    def xl(op):
        o = []
        for sw in ("v_permlane16_swap_b32", "v_permlane32_swap_b32"):
            o += ["v_mov_b32 v2, v1", "v_mov_b32 v4, v3", f"{sw} v1, v2", f"{sw} v3, v4", f"{op} v1, v1, v2", f"{op} v3, v3, v4"]
        return o
    sm += xl("v_max_f32")
    sm += [f"v_mul_f32 v1, s{S_C}, v1", f"v_mul_f32 v3, s{S_C}, v3"]
    idx8 = [(kt, i) for kt in range(2) for i in range(4)]
    for qt in range(2):
        for kt, i in idx8: sm.append(f"v_fma_f32 {S(kt,qt,i)}, {S(kt,qt,i)}, s{S_C}, -v{M[qt]}")
    for qt in range(2):
        for kt, i in idx8: sm.append(f"v_exp_f32 {S(kt,qt,i)}, {S(kt,qt,i)}")
    for qt in range(2):
        m = f"v{M[qt]}"; t = f"v{T[qt]}"
        sm += [f"v_add_f32 {m}, {S(0,qt,0)}, {S(0,qt,1)}", f"v_add_f32 {t}, {S(0,qt,2)}, {S(0,qt,3)}",
               f"v_add_f32 {m}, {m}, {S(1,qt,0)}", f"v_add_f32 {t}, {t}, {S(1,qt,1)}",
               f"v_add_f32 {m}, {m}, {S(1,qt,2)}", f"v_add_f32 {t}, {t}, {S(1,qt,3)}", f"v_add_f32 {m}, {m}, {t}"]
    sm += xl("v_add_f32")
    sm += ["v_rcp_f32 v1, v1", "v_rcp_f32 v3, v3"]
    for qt in range(2):
        for kt, i in idx8: sm.append(f"v_mul_f32 {S(kt,qt,i)}, {S(kt,qt,i)}, v{M[qt]}")
        for kt in range(2):
            for h in range(2): sm.append(f"v_cvt_pk_bf16_f32 v{V_P + 4*qt + 2*kt + h}, {S(kt,qt,2*h)}, {S(kt,qt,2*h+1)}")
        sm.append(f"buffer_store_dwordx4 {vr(V_P+4*qt,4)}, v{V_T+3}, {srd(SRD_WS)}, s{S_PB} offen offset:{qt*1024} sc1")
    pw = [f"ds_write_b128 v{V_T+12}, {vr(V_P+4*qt,4)} offset:{qt*1024}" for qt in range(2)]
    flag_ops = ["s_waitcnt vmcnt(0)", f"buffer_store_dwordx2 {vr(V_TAG,2)}, v{V_Z}, {srd(SRD_WS)}, s{S_FL} offen sc1"]
    if opt.smbar >= len(sm):
        for x in sm: a(x)
        if opt.flagpos < 0:
            for x in flag_ops: a(x)
        a("s_barrier")
        first_reads(16)
    else:
        for x in sm[:opt.smbar]: a(x)
        a("s_barrier")
        first_reads(16)
        for x in sm[opt.smbar:]: a(x)
    for x in pw: a(x)
    stamp()
    order = [(bb, nt) for bb in range(2) for nt in range(4)]
    bf = lambda bb, nt: V_BF + 16*bb + 4*nt
    out = lambda bb, qt, nt: V_OUT + 16*(2*bb + qt) + 4*nt
    def cvt_ops(bb, nt):
        t0 = V_ACC + 16*(2*bb) + 4*nt; t1 = V_ACC + 16*(2*bb+1) + 4*nt; d = bf(bb, nt)
        return [f"v_cvt_pk_bf16_f32 v{d}, v{t0}, v{t0+1}", f"v_cvt_pk_bf16_f32 v{d+1}, v{t0+2}, v{t0+3}",
                f"v_cvt_pk_bf16_f32 v{d+2}, v{t1}, v{t1+1}", f"v_cvt_pk_bf16_f32 v{d+3}, v{t1+2}, v{t1+3}"]
    def pv_m(bb, qt, nt, P, zero):
        o = vr(out(bb,qt,nt), 4)
        return f"{MF} {o}, {vr(bf(bb,nt),4)}, {vr(P + 8*bb + 4*qt, 4)}, {'0' if zero else o}"
    def readP(i, P): return [f"ds_read_b128 {vr(P + 8*bb + 4*qt, 4)}, v{V_T+4+2*bb+qt} offset:{(i % 4)*8192}" for bb in range(2) for qt in range(2)]
    PN = V_W
    def boundary(i):
        G = []; prev = []
        for bb, nt in order:
            G.append([0, pv_m(bb, 0, nt, V_P, i == 1), prev[2:]])
            prev = cvt_ops(bb, nt)
            G.append([0, pv_m(bb, 1, nt, V_P, i == 1), prev[:2]])
        G[-1][2] += prev[2:]
        return G
    pre = [f"s_lshl_b32 s40, s{S_CL}, 5", f"s_add_u32 s40, s40, s{S_IDX}", f"s_lshl_b32 s41, s{S_KQ}, 2", f"s_add_u32 s41, s41, s{S_WAVE}",
           "s_lshl_b32 s43, s41, 11", f"s_add_u32 s43, s43, {hex(XBUF)}"]
    for t in (1, 2, 3):
        pre += [f"s_xor_b32 s42, s{S_KQ}, {t}", "s_lshl_b32 s42, s42, 3", "s_add_u32 s42, s42, s40", f"s_lshl_b32 s{52+t}, s42, 7",
                "s_lshl_b32 s42, s42, 15", f"s_add_u32 s{44+t}, s42, s43"]
    pre += ["s_lshl_b32 s43, s41, 3", f"s_add_u32 s43, s43, {hex(XFLAG)}"] + [f"s_add_u32 s{52+t}, s{52+t}, s43" for t in (1, 2, 3)]
    for i in range(8):
        nA, nB = 16 + 2*i, 17 + 2*i
        G = item_gaps(nA, True, nB) + item_gaps(nB, False, nB + 1 if i < 7 else None, bar=(i < 7))
        if i == 0:
            if opt.flagpos >= 0:
                fp = opt.flagpos
                if G[fp][2] and G[fp][2][-1] == "s_barrier": G[fp][2][-1:-1] = flag_ops
                else: G[fp][2].extend(flag_ops)
            cv = [x for bb, nt in order for x in cvt_ops(bb, nt)]
            inject(G, 58, cv[:16], cap=3); G[-1][2] += cv[16:]
        else:
            inject(G, 48, readP(i - 1, V_P))
        if i == 7: inject(G, 52, readP(7, PN)); inject(G, 0, pre)
        emitG(G)
        if i: emitG(boundary(i))
        if opt.hstamps: stamp()
    def send(t):
        d = V_ACC + 8*t
        o = [f"v_cvt_pk_bf16_f32 v{d+j}, v{V_OUT+16*t+2*j}, v{V_OUT+16*t+2*j+1}" for j in range(8)]
        st = [f"buffer_store_dwordx4 {vr(d + 4*g, 4)}, v7, {srd(SRD_WS)}, s{44+t} offen offset:{g*1024} sc1" for g in range(2)]
        return o[:4] + st[:1] + o[4:] + st[1:]
    G = [[0, pv_m(t >> 1, t & 1, nt, PN, False), []] for t in (1, 2, 3, 0) for nt in range(4)]
    inject(G, 6, send(1) + send(2) + send(3), cap=3)
    emitG(G)
    stamp()
    a(f"s_lshl_b32 s42, s{S_KQ}, 3"); a("s_add_u32 s42, s42, s40")
    a(f"s_lshl_b32 s56, s42, 7"); a(f"s_lshl_b32 s43, s{S_WAVE}, 3"); a("s_add_u32 s56, s56, s43"); a(f"s_add_u32 s56, s56, {hex(XFLAG)}")
    a("v_and_b32 v3, 3, v0"); a("v_min_u32 v3, 2, v3"); a(f"v_add_u32 v3, s{S_KQ}, v3"); a("v_add_u32 v3, 1, v3"); a("v_and_b32 v3, 3, v3"); a("v_lshlrev_b32 v3, 5, v3")
    a("s_lshl_b32 s42, s42, 15"); a(f"s_lshl_b32 s43, s{S_WAVE}, 11"); a("s_add_u32 s42, s42, s43"); a(f"s_add_u32 s42, s42, {hex(XBUF)}")
    for j in range(3):
        a(f"s_add_u32 s43, s{S_KQ}, {j+1}"); a("s_and_b32 s43, s43, 3"); a("s_lshl_b32 s43, s43, 13"); a(f"s_add_u32 s{58+j}, s43, s42")
    a("v_lshrrev_b32 v4, 3, v0"); a("v_lshlrev_b32 v4, 12, v4"); a("v_and_b32 v5, 7, v0"); a("v_lshl_add_u32 v4, v5, 4, v4")
    a(f"s_lshr_b32 s41, s{S_KQ}, 1"); a(f"s_xor_b32 s41, s41, s{S_WAVE}"); a("s_xor_b32 s41, s41, 1"); a("s_lshl_b32 s41, s41, 17")
    a(f"s_lshl_b32 s40, s{S_RB}, 19"); a("s_add_u32 s40, s40, s41")
    a(f"s_and_b32 s41, s{S_KQ}, 1"); a("s_lshl_b32 s41, s41, 16"); a("s_add_u32 s40, s40, s41")
    a(f"s_lshl_b32 s41, s{S_BR}, 11"); a("s_add_u32 s40, s40, s41")
    a(f"s_mul_i32 s41, s{S_WN}, {opt.wox}"); a(f"s_xor_b32 s41, s41, s{S_IDX}"); a("s_lshl_b32 s41, s41, 8"); a("s_add_u32 s40, s40, s41")
    a(f"s_lshl_b32 s41, s{S_WN}, 7"); a("s_add_u32 s40, s40, s41")
    a("s_add_u32 s41, s40, 0x8000")
    a(f"s_lshl_b32 s42, s{S_WAVE}, 11"); a(f"s_add_u32 s42, s42, {SLOT}")
    a("v_and_b32 v1, 15, v0"); a("v_lshrrev_b32 v2, 5, v0"); a("v_xor_b32 v2, v2, v5"); a("v_lshlrev_b32 v2, 4, v2")
    a("v_lshl_add_u32 v1, v1, 7, v2"); a("v_bfe_u32 v2, v0, 4, 1"); a("v_lshl_add_u32 v1, v2, 3, v1"); a("v_add_u32 v1, s42, v1")
    for nt in range(1, 4): a(f"v_xor_b32 v{12+nt}, {32*nt}, v1")
    a("v_lshrrev_b32 v2, 3, v0"); a("v_xor_b32 v5, v5, v2"); a("v_lshlrev_b32 v5, 4, v5"); a("v_lshl_add_u32 v2, v2, 7, v5"); a("v_add_u32 v2, s42, v2")
    a(f"s_mov_b32 s44, {opt.spin}")
    for t in (1, 2, 3):
        a(f"s_waitcnt vmcnt({2*(3-t) + (t-1)})")
        a(f"buffer_store_dwordx2 {vr(V_TAG,2)}, v{V_Z}, {srd(SRD_WS)}, s{52+t} offen sc1")
    flush_passes()
    if opt.verbose:
        for r in rep: print("pad", r)
    RX = V_BF
    a.lab("L_xpoll")
    a(f"buffer_load_dwordx2 v[8:9], v3, {srd(SRD_WS)}, s56 offen sc1")
    a("s_sub_u32 s44, s44, 1"); a("s_cmp_eq_u32 s44, 0")
    a("s_waitcnt vmcnt(0)")
    a("s_cbranch_scc1 L_xrd")
    a(f"v_cmp_ne_u64 vcc, v[8:9], {vr(V_TAG,2)}")
    a("s_cbranch_vccnz L_xpoll")
    a.lab("L_xrd")
    stamp()
    for j in range(3):
        for g in range(2): a(f"buffer_load_dwordx4 {vr(RX + 8*j + 4*g, 4)}, v7, {srd(SRD_WS)}, s{58+j} offen offset:{g*1024} sc1")
    for j in range(3):
        a(f"s_waitcnt vmcnt({4 - 2*j})")
        for i in range(8):
            r = RX + 8*j + i
            a(f"v_lshlrev_b32 v5, 16, v{r}"); a(f"v_and_b32 v6, 0xffff0000, v{r}")
            a(f"v_add_f32 v{V_OUT+2*i}, v{V_OUT+2*i}, v5"); a(f"v_add_f32 v{V_OUT+2*i+1}, v{V_OUT+2*i+1}, v6")
    for i in range(8): a(f"v_cvt_pk_bf16_f32 v{V_R+i}, v{V_OUT+2*i}, v{V_OUT+2*i+1}")
    for nt in range(4): a(f"ds_write_b64 v{12+nt if nt else 1}, {vr(V_R+2*nt,2)}")
    a(f"ds_read_b128 {vr(V_R+8,4)}, v2"); a(f"ds_read_b128 {vr(V_R+12,4)}, v2 offset:1024")
    a("s_waitcnt lgkmcnt(1)")
    a(f"buffer_store_dwordx4 {vr(V_R+8,4)}, v4, {srd(SRD_OUT)}, s40 offen {opt.outflags}")
    a("s_waitcnt lgkmcnt(0)")
    a(f"buffer_store_dwordx4 {vr(V_R+12,4)}, v4, {srd(SRD_OUT)}, s41 offen {opt.outflags}")
    a(f"s_or_b32 s40, s{S_KQ}, s{S_IDX}"); a(f"s_or_b32 s40, s40, s{S_WAVE}"); a("s_cmp_lg_u32 s40, 0"); a("s_cbranch_scc1 L_noep")
    a(f"s_lshl_b32 s40, s{S_CL}, 7")
    a(f"buffer_store_dwordx2 {vr(V_TAG,2)}, v{V_Z}, {srd(SRD_WS)}, s40 offen {opt.outflags}")
    a.lab("L_noep")
    if opt.fixdur:
        a.lab("L_fix")
        a("s_memrealtime s[92:93]"); a("s_waitcnt lgkmcnt(0)"); a("s_sub_u32 s92, s92, s98")
        a(f"s_cmp_lt_u32 s92, {opt.fixdur}"); a("s_cbranch_scc1 L_fix")
    if opt.stamps:
        a("s_waitcnt vmcnt(0)")
        stamp()
        a(f"s_cmp_lg_u32 s{S_WAVE}, 0"); a("s_cbranch_scc1 L_end2")
        a("s_waitcnt lgkmcnt(0)")
        n = nst[0]
        a(f"s_mul_i32 s40, s2, {n*8}"); a("s_add_u32 s40, s40, 0x8000000")
        a(f"s_add_u32 s42, s{SRD_WS}, s40"); a(f"s_addc_u32 s43, s{SRD_WS+1}, 0")
        for i in range(n):
            a(f"v_mov_b32 v8, s{S_ST+2*i}"); a(f"v_mov_b32 v9, s{S_ST+2*i+1}")
            a(f"global_store_dwordx2 v{V_Z}, v[8:9], s[42:43] offset:{i*8}"); a("s_nop 1")
        a.lab("L_end2")
    a("s_endpgm")
    tail = ['.section .rodata,"a"', ".p2align 6", f".amdhsa_kernel {NAME}_kernel"]
    tail += ["  .amdhsa_" + l for l in ("next_free_vgpr 256", "next_free_sgpr 102", "accum_offset 256", "group_segment_fixed_size 0", "kernarg_size 104",
              "user_sgpr_count 2", "user_sgpr_kernarg_segment_ptr 1", "system_sgpr_workgroup_id_x 1")]
    tail += [".end_amdhsa_kernel"]
    txt = "\n".join(head + [(x if x.endswith(":") else "    " + x) for x in a.L] + tail) + "\n"
    return txt, nst[0], rep

def parse(argv):
    ap = argparse.ArgumentParser()
    ap.add_argument("-o", default="cdna_kernels/" + NAME + ".s")
    for f in ("stamps", "cyc", "lstamps", "nodma", "nomfma", "samek", "hstamps", "verbose", "pairs"): ap.add_argument("--" + f, action="store_true")
    ap.add_argument("--prio", type=int, default=0)
    ap.add_argument("--spin", type=int, default=100000)
    ap.add_argument("--fixdur", type=int, default=0)
    ap.add_argument("--q0", type=int, default=2)
    ap.add_argument("--p1", type=int, default=4)
    ap.add_argument("--p2", default="6,8")
    ap.add_argument("--p3", type=int, default=12)
    ap.add_argument("--pm", default="2,3,4,3")
    ap.add_argument("--kat", default="")
    ap.add_argument("--wox", type=int, default=3)
    ap.add_argument("--smbar", type=int, default=200)
    ap.add_argument("--flagpos", type=int, default=8)
    ap.add_argument("--outflags", default="sc1")
    ap.add_argument("--pflags", default="sc1")
    ap.add_argument("--plate", type=int, default=1)
    ap.add_argument("--pix", type=int, default=1)
    ap.add_argument("--kd", default="")
    ap.add_argument("--kdkey", type=int, default=0)
    return ap.parse_args(argv)

if __name__ == "__main__":
    opt = parse(sys.argv[1:])
    t, n, rep = gen(opt)
    open(opt.o, "w").write(t)
    print("wrote", opt.o, "stamps", n, "lines", t.count("\n"), "pads", len(rep))
```

```python
import sys, argparse
from passes import auto_wait, hazard_fix
NAME = "concat_heads__mha_block_cached__mha_block_cached__near_ridge"

class Asm:
    def __init__(self): self.L = []; self.drop = []
    def __call__(self, s):
        for pat in self.drop:
            if pat in s: return
        self.L.append(s)
    def lab(self, s): self.L.append(s + ":")
    def c(self, s): self.L.append("; " + s)

PFLAG = 0x4000; XFLAG = 0x10000; PBUF = 0x100000; XBUF = 0x400000; WS_REC = 0xC00000
SLOT = 32768; AUX = 4 * SLOT
S_BR, S_KQ, S_RB, S_IDX, S_WAVE = 3, 4, 5, 6, 7
SRD_X, SRD_K, SRD_V, SRD_WQ, SRD_WO, SRD_WS, SRD_OUT = 8, 12, 16, 20, 24, 28, 32
S_TAG = 36; S_CL = 38; S_HQ = 39
S_C = 50; S_PB = 49; S_OFFR = 47; S_OFFW = 48; S_W = 45; S_HT = 46
S_WM, S_WN = 56, 57; S_FL = 60; S_GRP = 61
S_ST = 62
def srd(b): return f"s[{b}:{b+3}]"
def vr(b, n): return f"v[{b}:{b+n-1}]"
V_AR = 8; V_AW = 12; V_R = 16; V_W = 32; V_BF = 64; V_P = 96; V_TAG = 112; V_Z = 114; V_T = 115
V_ACC = 128; V_OUT = 192; V_KF = 192; V_SP = 224
MF = "v_mfma_f32_16x16x32_bf16"
NI = 32
def slot(n): return n % 4

def gen(opt):
    a = Asm()
    if opt.nodma: a.drop.append(" lds")
    if opt.nomfma: a.drop += ["v_mfma"]
    head = ["; Fused double MHA block: Q-proj + scores + softmax | V*Wo + P*(V*Wo) | split-K reduce-scatter (gfx950)",
            f"; @launch grid=(256,1,1) block=({448 if opt.w7 else 512},1,1) lds={SLOT*5}",
            '.amdgcn_target "amdgcn-amd-amdhsa--gfx950"', ".text", f".globl {NAME}_kernel", ".p2align 8", f".type {NAME}_kernel,@function"]
    a.lab(f"{NAME}_kernel")
    nst = [0]
    def stamp_s():
        if not opt.stamps or nst[0] >= 18: return None
        r = S_ST + 2 * nst[0]; nst[0] += 1
        return f"{'s_memtime' if opt.cyc else 's_memrealtime'} s[{r}:{r+1}]"
    def stamp():
        if opt.pairs and opt.stamps:
            opt.cyc = False; a(stamp_s()); opt.cyc = True; a(stamp_s()); return
        s = stamp_s()
        if s: a(s)
    stamp()
    if opt.fixdur or opt.lstamps: a("s_memrealtime s[98:99]")
    a(f"s_bfe_u32 s{S_BR}, s2, 0x10002")
    a(f"s_mul_i32 s41, s{S_BR}, 40")
    a("s_add_u32 s42, s0, s41"); a("s_addc_u32 s43, s1, 0")
    a("s_cmp_ge_u32 s2, 256"); a("s_cbranch_scc1 L_end")
    a(f"s_load_dwordx2 s[{SRD_WQ}:{SRD_WQ+1}], s[42:43], 24")
    a(f"s_load_dwordx2 s[{SRD_X}:{SRD_X+1}], s[42:43], 0")
    a("v_lshrrev_b32 v1, 6, v0"); a("v_and_b32 v0, 63, v0")
    a(f"s_load_dwordx2 s[{SRD_WS}:{SRD_WS+1}], s[0:1], 96")
    a(f"v_readfirstlane_b32 s{S_WAVE}, v1")
    a(f"s_and_b32 s{S_KQ}, s2, 3"); a(f"s_lshr_b32 s{S_RB}, s2, 6"); a(f"s_bfe_u32 s{S_IDX}, s2, 0x30003")
    a(f"s_lshl_b32 s{S_HQ}, s{S_RB}, 1"); a(f"s_add_u32 s{S_HQ}, s{S_HQ}, s{S_IDX}"); a(f"s_and_b32 s{S_HQ}, s{S_HQ}, 7")
    a(f"s_sub_u32 s40, s{S_WAVE}, 4"); a("s_cmp_ge_u32 s40, 2"); a("s_cbranch_scc1 L_other")
    def mk(b, n): a(f"s_mov_b32 s{b+2}, {hex(n)}"); a(f"s_mov_b32 s{b+3}, 0x20000")
    def ids():
        a(f"s_lshl_b32 s{S_CL}, s{S_BR}, 2"); a(f"s_add_u32 s{S_CL}, s{S_CL}, s{S_RB}")
        a(f"s_lshl_b32 s{S_GRP}, s{S_CL}, 2"); a(f"s_add_u32 s{S_GRP}, s{S_GRP}, s{S_KQ}")
    def tag_hash():
        a(f"s_mul_i32 s{S_TAG}, s{S_TAG}, 0x9e3779b1"); a(f"s_add_u32 s{S_TAG}, s{S_TAG}, 0x7f4a7c15")
        a(f"s_mul_i32 s{S_TAG+1}, s{S_TAG+1}, 0x85ebca6b"); a(f"s_add_u32 s{S_TAG+1}, s{S_TAG+1}, 0xc2b2ae35")
    def tag_load():
        a(f"s_lshl_b32 s40, s{S_CL}, 7"); a(f"s_load_dwordx2 s[{S_TAG}:{S_TAG+1}], s[{SRD_WS}:{SRD_WS+1}], s40")

    a.c("---- loader waves")
    if opt.lprio: a(f"s_setprio {opt.lprio}")
    mk(SRD_WQ, 0x800000); mk(SRD_X, 0x100000)
    a("v_lshrrev_b32 v3, 4, v0"); a("v_and_b32 v2, 15, v0")
    a("v_lshlrev_b32 v4, 2, v3"); a("v_xor_b32 v2, v2, v4"); a("v_lshlrev_b32 v2, 4, v2"); a("v_xor_b32 v5, 32, v2")
    a("s_lshl_b32 s41, s40, 2"); a("v_add_u32 v6, s41, v3")
    a("v_lshl_add_u32 v12, v6, 13, v2"); a("v_lshl_add_u32 v13, v6, 13, v5")
    a(f"s_lshl_b32 s{S_W}, s40, 10")
    a(f"s_lshl_b32 s50, s{S_RB}, 2"); a(f"s_xor_b32 s51, s{S_HQ}, {opt.pix}"); a("s_lshl_b32 s51, s51, 1"); a("s_add_u32 s50, s50, s51")
    a(f"s_lshl_b32 s51, s{S_KQ}, 3"); a(f"s_add_u32 s51, s51, s{S_HQ}"); a("s_lshl_b32 s53, s51, 8")
    a("s_and_b32 s54, s50, 15"); a("s_lshl_b32 s55, s54, 19"); a(f"s_add_u32 s{S_OFFW}, s53, s55")
    a(f"s_lshl_b32 s52, s{S_RB}, 18"); a("s_lshl_b32 s55, s54, 7"); a(f"s_add_u32 s{S_OFFR}, s52, s55")
    a("v_lshrrev_b32 v1, 3, v0"); a("v_and_b32 v7, 7, v0"); a("v_xor_b32 v7, v7, v6"); a("v_lshlrev_b32 v7, 4, v7")
    a("s_lshl_b32 s41, s40, 3"); a("v_add_u32 v1, s41, v1"); a("v_lshl_add_u32 v10, v1, 11, v7")
    if opt.lstamps: a("s_memrealtime s[92:93]")
    def lst():
        if opt.lstamps:
            a("s_memrealtime s[92:93]"); a("s_waitcnt lgkmcnt(0)"); a("s_mov_b32 m0, s94"); a("v_writelane_b32 v30, s92, m0"); a("s_add_u32 s94, s94, 1")
    issued = []
    def dma(tg, vo, sr, sbase, lit, ldsoff, fl=""):
        a(f"s_add_u32 m0, s{S_W}, {ldsoff}")
        a(f"s_add_u32 s41, s{sbase}, {hex(lit)}")
        a(f"buffer_load_dwordx4 v{vo}, {srd(sr)}, s41 offen {fl} lds")
        issued.append(tg)
    def prep(n):
        if n < 16:
            a(f"s_bfe_u32 s54, s{42 + (n >> 3)}, {hex(4*(n & 7) | (4 << 16))}")
            a("s_add_u32 s54, s54, s50"); a("s_and_b32 s54, s54, 15")
            if opt.samek: a("s_and_b32 s54, s54, 1")
            a(f"s_lshl_b32 s55, s54, 7"); a(f"s_add_u32 s{S_OFFR}, s52, s55")
            a(f"s_lshl_b32 s55, s54, 19"); a(f"s_add_u32 s{S_OFFW}, s53, s55")
        elif n % 2 == 0:
            a(f"s_bfe_u32 s54, s{S_HT}, {hex(4*((n - 16) >> 1) | (4 << 16))}")
            if opt.samek: a("s_mov_b32 s54, 0")
            a("s_lshl_b32 s55, s54, 13"); a(f"s_add_u32 s{S_OFFR}, s58, s55")
            a("s_lshl_b32 s55, s54, 18"); a(f"s_add_u32 s{S_OFFW}, s59, s55")
    KAT = tuple(map(int, opt.kat.split(","))) if opt.kat else (opt.p1, opt.p3)
    if opt.kd: KAT = (-1, -1)
    def item_ops(n):
        so = slot(n) * SLOT; c2 = n & 1
        if n < 16:
            W = [(n, 12 + (m & 1), SRD_WQ, S_OFFW, m*8*8192, so + 16384 + m*2048) for m in range(8)]
            R = [(n, 10, SRD_X, S_OFFR, m*16*2048, so + m*2048) for m in range(8)]
        else:
            W = [(n, 14 + (m & 1), SRD_WO, S_OFFW, m*8*2048 + c2*64*2048, so + 16384 + m*2048) for m in range(8)]
            R = [(n, 11, SRD_V, S_OFFR, (m//2)*262144 + (m % 2)*4096 + c2*128, so + m*2048) for m in range(8)]
        X = []
        for c, kk in enumerate(KAT):
            if kk == n: X += [(n, 11, SRD_K, 57, (m//2)*262144 + (m % 2)*4096 + h*128, AUX + h*16384 + m*2048) for m in range(4*c, 4*c+4) for h in range(2)]
        return W + X + R
    def pdma(i):
        a(f"s_bfe_u32 s60, s{S_HT}, {hex(4*i | (4 << 16))}"); a("s_lshl_b32 s60, s60, 13"); a(f"s_add_u32 s60, s60, s{S_PB}")
        for m in range(4): dma(f"P{i}", 16, SRD_WS, 60, m*2048, AUX + (i % 4)*8192 + m*2048, opt.pflags)
    def bar(need):
        last = max(i for i, t in enumerate(issued) if t in need)
        a(f"s_waitcnt vmcnt({len(issued) - 1 - last})")
        lst(); a("s_barrier")
    a("s_waitcnt lgkmcnt(0)")
    if opt.lstamps:
        a("v_mov_b32 v30, 0"); a("s_mov_b32 s94, 3")
        a("v_writelane_b32 v30, s98, 0"); a("v_writelane_b32 v30, s92, 1")
        a("s_memrealtime s[92:93]"); a("s_waitcnt lgkmcnt(0)"); a("v_writelane_b32 v30, s92, 2")
    for o in item_ops(0): dma(*o)
    for b, o in ((SRD_K, 8), (SRD_V, 16), (SRD_WO, 32)): a(f"s_load_dwordx2 s[{b}:{b+1}], s[42:43], {o}")
    mk(SRD_K, 0x400000); mk(SRD_V, 0x400000); mk(SRD_WO, 0x800000); mk(SRD_WS, WS_REC)
    ids()
    a("v_lshl_add_u32 v11, v1, 8, v7")
    a("v_lshl_add_u32 v14, v6, 11, v2"); a("v_lshl_add_u32 v15, v6, 11, v5")
    a(f"s_xor_b32 s44, s{S_IDX}, {opt.wox}"); a(f"s_sub_u32 s44, s44, s{S_IDX}"); a("s_lshl_b32 s44, s44, 8")
    a("v_bfe_u32 v6, v2, 7, 1"); a("v_mul_lo_u32 v6, v6, s44"); a(f"s_lshl_b32 s44, s{S_IDX}, 8"); a("v_add_u32 v6, s44, v6")
    a("v_add_u32 v14, v14, v6"); a("v_add_u32 v15, v15, v6")
    a("v_lshlrev_b32 v16, 4, v0"); a(f"v_add_u32 v16, s{S_W}, v16")
    a(f"s_lshl_b32 s56, s{S_RB}, 20"); a("s_lshl_b32 s41, s51, 13"); a("s_add_u32 s57, s56, s41")
    a(f"s_lshl_b32 s41, s{S_KQ}, 16"); a("s_add_u32 s58, s56, s41")
    a(f"s_lshl_b32 s59, s{S_KQ}, 21")
    a(f"s_lshl_b32 s{S_PB}, s{S_GRP}, 16"); a(f"s_add_u32 s{S_PB}, s{S_PB}, {hex(PBUF)}")
    PMS = list(map(int, opt.pm.split(",")))
    def h_table(pm):
        seq = []; r = [2, 4, 6, 3, 5, 7]
        for i in range(8): seq.append(0 if i == 0 else 1 if i == pm else r.pop(0))
        return seq
    ht = [sum(x << (4*i) for i, x in enumerate(h_table(pm))) for pm in PMS]
    a(f"s_mov_b32 s{S_HT}, {hex(ht[0])}")
    for w in range(1, len(PMS)):
        a(f"s_and_b32 s41, s{S_IDX}, {len(PMS)-1}"); a(f"s_cmp_eq_u32 s41, {w}"); a(f"s_cselect_b32 s{S_HT}, {hex(ht[w])}, s{S_HT}")
    a(f"s_mul_i32 s41, s{S_HQ}, 0x11111111"); a(f"s_add_u32 s{S_HT}, s{S_HT}, s41"); a(f"s_and_b32 s{S_HT}, s{S_HT}, 0x77777777")
    def p1_table(p1, p2, p3):
        seq = [None] * 16; Ms = {0: 0, p1: 2, p2: 1, p3: 3}; avail = []
        for n in range(16):
            if n in Ms: seq[n] = Ms[n]; avail += [(n + 1, Ms[n] + 4*j) for j in (1, 2, 3)]
            else:
                t, c = avail.pop(0); assert t <= n; seq[n] = c
        return seq
    pack = lambda seq: sum((x & 15) << (4*i) for i, x in enumerate(seq))
    P2S = list(map(int, opt.p2.split(",")))
    tabs = [pack(p1_table(opt.p1, p2, opt.p3)) for p2 in P2S]
    a("s_waitcnt lgkmcnt(0)")
    a(f"s_mov_b32 s42, {hex(tabs[0] & 0xffffffff)}"); a(f"s_mov_b32 s43, {hex(tabs[0] >> 32)}")
    for u in range(1, len(P2S)):
        a(f"s_and_b32 s41, s2, {len(P2S)-1}"); a(f"s_cmp_eq_u32 s41, {u}")
        a(f"s_cselect_b32 s42, {hex(tabs[u] & 0xffffffff)}, s42"); a(f"s_cselect_b32 s43, {hex(tabs[u] >> 32)}, s43")
    prep(1)
    for o in item_ops(1): dma(*o)
    PAT = {20: [1], 21: [2, 3], 23: [4], 25: [5], 27: [6, 7]}
    PNEED = {21: "P1", 23: "P2", 25: "P3", 27: "P4", 29: "P5"}
    KD = list(map(int, opt.kd.split(","))) if opt.kd else []
    if KD: a(f"s_and_b32 s62, s{S_IDX if opt.kdkey == 0 else S_HQ}, {len(KD)-1}")
    kops = [("K", 11, SRD_K, 57, (m//2)*262144 + (m % 2)*4096 + h*128, AUX + h*16384 + m*2048) for m in range(8) for h in range(2)]
    for n in range(2, NI):
        prep(n)
        L = item_ops(n); q = opt.q0 if n < 4 else ((opt.q1 if n <= 18 else opt.q2) if opt.late else 0)
        for o in L[:q]: dma(*o)
        k = n - 3
        mask = sum(1 << t for t, c in enumerate(KD) if c in (n - 1, n - 2))
        if mask:
            last = max(i for i, t in enumerate(issued) if t == n - 2); N = len(issued) - 1 - last
            a(f"s_mov_b32 s63, {mask}"); a("s_bitcmp1_b32 s63, s62"); a(f"s_cbranch_scc1 L_kw{n}")
            a(f"s_waitcnt vmcnt({N})"); a.lab(f"L_kw{n}"); a(f"s_waitcnt vmcnt({N + 16})"); lst(); a("s_barrier")
        else:
            bar({n - 2, PNEED.get(k)})
        if not opt.plate or k == 20:
            for i in PAT.get(k, []): pdma(i)
        for o in L[q:]: dma(*o)
        if opt.plate and k != 20:
            for i in PAT.get(k, []): pdma(i)
        mask = sum(1 << t for t, c in enumerate(KD) if c == n)
        if mask:
            a(f"s_mov_b32 s63, {mask}"); a("s_bitcmp1_b32 s63, s62"); a(f"s_cbranch_scc0 L_kn{n}")
            for o in kops: dma(*o)
            del issued[-16:]
            a.lab(f"L_kn{n}")
    bar({NI - 2, "P5"}); bar({NI - 1, "P6", "P7"})
    if opt.lstamps:
        a(f"s_cmp_lg_u32 s{S_WAVE}, 4"); a("s_cbranch_scc1 L_end")
        a("s_mul_i32 s40, s2, 512"); a("s_add_u32 s40, s40, 0x8000000")
        a(f"s_add_u32 s42, s{SRD_WS}, s40"); a(f"s_addc_u32 s43, s{SRD_WS+1}, 0")
        a("v_lshlrev_b32 v1, 3, v0"); a("v_mov_b32 v31, 0")
        a("global_store_dwordx2 v1, v[30:31], s[42:43]")
    a("s_endpgm")

    a.lab("L_other")
    mk(SRD_WS, WS_REC); ids()
    a(f"s_cmp_lt_u32 s{S_WAVE}, 4"); a("s_cbranch_scc1 L_compute")
    if not opt.w7: a(f"s_cmp_eq_u32 s{S_WAVE}, 6"); a("s_cbranch_scc1 L_end")
    a("s_waitcnt lgkmcnt(0)")
    tag_load()
    a("v_bfe_u32 v1, v0, 2, 3"); a("v_and_b32 v2, 3, v0"); a("v_lshlrev_b32 v2, 3, v2"); a("v_lshl_add_u32 v4, v1, 7, v2")
    a(f"s_lshl_b32 s43, s{S_GRP}, 10"); a(f"s_add_u32 s43, s43, {hex(PFLAG)}")
    a("s_waitcnt lgkmcnt(0)")
    tag_hash()
    a(f"v_mov_b32 v2, s{S_TAG}"); a(f"v_mov_b32 v3, s{S_TAG+1}")
    a(f"s_mov_b32 s44, 21")
    a.lab("L_pb"); a("s_barrier"); a("s_sub_u32 s44, s44, 1"); a("s_cmp_lg_u32 s44, 0"); a("s_cbranch_scc1 L_pb")
    a(f"s_mov_b32 s44, {opt.spin}")
    a.lab("L_ppoll")
    a(f"buffer_load_dwordx2 v[8:9], v4, {srd(SRD_WS)}, s43 offen sc1")
    a("s_sub_u32 s44, s44, 1"); a("s_cmp_eq_u32 s44, 0")
    a("s_waitcnt vmcnt(0)")
    a("s_cbranch_scc1 L_end")
    a("v_cmp_ne_u64 vcc, v[8:9], v[2:3]")
    a("s_cbranch_vccz L_end")
    a("s_sleep 2"); a("s_branch L_ppoll")
    a.lab("L_end")
    a("s_endpgm")

    a.lab("L_compute")
    mark = [len(a.L)]; rep = []
    def flush_passes():
        body = hazard_fix(auto_wait(a.L[mark[0]:]), report=rep)
        a.L = a.L[:mark[0]] + body
        mark[0] = len(a.L)
    a(f"s_load_dwordx2 s[{SRD_OUT}:{SRD_OUT+1}], s[0:1], 80"); mk(SRD_OUT, 0x200000)
    if opt.prio: a(f"s_setprio {opt.prio}")
    a(f"s_lshr_b32 s{S_WM}, s{S_WAVE}, 1"); a(f"s_and_b32 s{S_WN}, s{S_WAVE}, 1")
    a("v_and_b32 v1, 15, v0"); a("v_lshrrev_b32 v2, 4, v0")
    a("v_lshrrev_b32 v3, 1, v1"); a("v_xor_b32 v4, v3, v2"); a("v_lshlrev_b32 v4, 4, v4"); a("v_lshl_add_u32 v4, v1, 7, v4")
    a(f"s_lshl_b32 s43, s{S_WAVE}, 12"); a("s_xor_b32 s42, s43, 4096")
    a(f"v_add_u32 v{V_AR}, s42, v4"); a(f"v_add_u32 v{V_AR+1}, s43, v4")
    a(f"v_xor_b32 v{V_AR+2}, 64, v{V_AR}"); a(f"v_xor_b32 v{V_AR+3}, 64, v{V_AR+1}")
    a("v_lshrrev_b32 v5, 1, v2"); a("v_xor_b32 v5, v5, v3"); a("v_lshlrev_b32 v5, 4, v5"); a("v_lshl_add_u32 v5, v1, 7, v5")
    a("v_and_b32 v6, 1, v2"); a("v_lshl_add_u32 v5, v6, 3, v5")
    a(f"s_lshl_b32 s44, s{S_WN}, 14"); a(f"s_add_u32 s44, s44, {AUX}")
    a("s_add_u32 s42, s42, s44"); a("s_add_u32 s43, s43, s44")
    a(f"v_add_u32 v{V_T}, s42, v5"); a(f"v_add_u32 v{V_T+1}, s43, v5")
    for bb in range(2):
        for uz in range(1, 4): a(f"v_xor_b32 v{V_T+4+3*bb+uz-1}, {32*uz}, v{V_T+bb}")
    a("v_bfe_u32 v5, v0, 2, 2"); a("v_lshl_add_u32 v4, v2, 3, v5"); a("v_lshlrev_b32 v4, 8, v4")
    a("v_and_b32 v3, 3, v0"); a("v_lshl_add_u32 v4, v3, 3, v4"); a("v_add_u32 v4, 16384, v4")
    a("v_lshlrev_b32 v5, 1, v5"); a("v_or_b32 v5, v5, v6")
    a(f"s_lshl_b32 s40, s{S_WN}, 2")
    for b in range(4):
        a(f"s_add_u32 s41, s40, {b}"); a("v_xor_b32 v3, s41, v5"); a(f"v_lshl_add_u32 v{V_AW+b}, v3, 5, v4")
    a(f"s_lshr_b32 s52, s{S_KQ}, 1"); a("s_lshl_b32 s52, s52, 12")
    a(f"s_lshl_b32 s53, s{S_KQ}, 10"); a(f"s_add_u32 s53, s53, {AUX}")
    a("v_lshlrev_b32 v7, 4, v0"); a(f"v_mov_b32 v{V_Z}, 0")
    a(f"s_mov_b32 s{S_C}, 0x3e0293ee")
    a(f"s_lshl_b32 s40, s{S_WM}, 13"); a("s_add_u32 s40, s40, s44")
    a(f"v_add_u32 v{V_T+10}, s40, v7"); a(f"v_xor_b32 v{V_T+11}, 0x4000, v{V_T+10}")
    a(f"s_lshl_b32 s41, s{S_WAVE}, 11"); a("s_xor_b32 s42, s41, 2048")
    a(f"v_add_u32 v{V_T+2}, s42, v7"); a(f"v_add_u32 v{V_T+3}, s41, v7")
    a(f"v_add_u32 v{V_T+12}, {AUX}, v{V_T+3}")
    a("s_waitcnt lgkmcnt(0)")
    tag_load()
    a(f"s_lshl_b32 s40, s{S_GRP}, 3"); a(f"s_add_u32 s40, s40, s{S_HQ}")
    a(f"s_lshl_b32 s{S_PB}, s40, 13"); a(f"s_add_u32 s{S_PB}, s{S_PB}, {hex(PBUF)}")
    a("s_lshl_b32 s40, s40, 7"); a(f"s_lshl_b32 s41, s{S_WAVE}, 3"); a("s_add_u32 s40, s40, s41"); a(f"s_add_u32 s{S_FL}, s40, {hex(PFLAG)}")
    a("s_waitcnt lgkmcnt(0)")
    tag_hash()
    a(f"v_mov_b32 v{V_TAG}, s{S_TAG}"); a(f"v_mov_b32 v{V_TAG+1}, s{S_TAG+1}")
    a("s_barrier")
    stamp()

    def rel(n): return (slot(n) & 1) * SLOT
    def upd(n): return {0: None, 1: "0x10000", -1: "0xffff0000"}[(slot(n + 1) >> 1) - (slot(n) >> 1)]
    def rdR(n, s, aa): return f"ds_read_b128 {vr(V_R+4*aa,4)}, v{V_AR + 2*s + (aa >> 1)} offset:{rel(n) + (aa & 1)*2048}"
    def rdW(n, s, b, z): return f"ds_read_b64_tr_b16 {vr(V_W + 16*s + 4*b + 2*z, 2)}, v{V_AW+b} offset:{rel(n) + s*8192 + z*1024}"
    WPOS = {(0,0): (0,0), (0,1): (0,1), (0,2): (1,0), (1,0): (1,1), (1,1): (2,0), (1,2): (2,1), (2,0): (3,0), (2,1): (3,1)}
    WAITPOS = {(0,0), (0,1), (0,2), (0,3), (2,0), (3,0)}
    def acc(aa, b): return vr(V_ACC + 16*aa + 4*b, 4)
    def first_reads(n):
        for aa in range(4):
            for b in range(4):
                if (aa, b) in WPOS: a(rdW(n, 0, *WPOS[(aa, b)]))
                if b == 3: a(rdR(n, 0, aa))
    def item_gaps(n, zero, nxt, bar=True):
        G = []
        for s in range(2):
            tk, ts = (n, 1) if s == 0 else (nxt, 0)
            for aa in range(4):
                for b in range(4):
                    post = []
                    W = vr(V_W + 16*s + 4*b, 4); R = vr(V_R + 4*aa, 4)
                    C = "0" if (zero and s == 0) else acc(aa, b)
                    m = f"{MF} {acc(aa,b)}, {W}, {R}, {C}" if n < 16 else f"{MF} {acc(aa,b)}, {R}, {W}, {C}"
                    if opt.late and s == 1:
                        if aa == 0 and b == 3 and bar: post += ["s_waitcnt lgkmcnt(0)", "s_barrier"]
                        if tk is not None:
                            if (aa - 1, b) in WPOS: post.append(rdW(tk, ts, *WPOS[(aa - 1, b)]))
                            if b == 3: post.append(rdR(tk, ts, aa))
                    elif tk is not None:
                        if (aa, b) in WPOS: post.append(rdW(tk, ts, *WPOS[(aa, b)]))
                        if b == 3: post.append(rdR(tk, ts, aa))
                    u = upd(n) if nxt is not None else None
                    if u is not None:
                        if s == 0 and aa == 3 and b < 3: post.append(f"v_add_u32 v{V_AW+b}, {u}, v{V_AW+b}")
                        if s == 0 and aa == 2 and b == 2: post += [f"v_add_u32 v{V_AR}, {u}, v{V_AR}", f"v_add_u32 v{V_AR+1}, {u}, v{V_AR+1}"]
                        if s == 0 and aa == 3 and b == 2: post.append(f"v_add_u32 v{V_AW+3}, {u}, v{V_AW+3}")
                        if s == 1 and aa == (0 if opt.late else 3) and b < 2: post.append(f"v_add_u32 v{V_AR+2+b}, {u}, v{V_AR+2+b}")
                    if bar and s == 0 and aa == 3 and b == 3 and not opt.late: post.append("s_barrier")
                    G.append([1 if (aa, b) in WAITPOS else 0, m, post])
        return G
    def load_of(G, i): return len(G[i][2]) + (G[i+1][0] if i + 1 < len(G) else 0)
    def inject(G, start, opsl, cap=2, onelds=True):
        i = start
        for op in opsl:
            while i < len(G) and (load_of(G, i) >= cap or (onelds and op.startswith("ds_") and any(x.startswith("ds_") for x in G[i][2]))): i += 1
            if i >= len(G): G[-1][2].append(op); i = len(G) - 1; continue
            G[i][2].append(op)
        return i
    def emitG(G):
        for w, m, post in G:
            a(m)
            for x in post: a(x)
    kf = lambda bb, kt, u: V_KF + 16*bb + 8*kt + 4*u
    sp = lambda bb, kt, qt: V_SP + 16*bb + 8*kt + 4*qt
    kaddr = lambda bb, u, z: (V_T + bb) if (u == 0 and z == 0) else (V_T + 4 + 3*bb + 2*u + z - 1)
    kreads = [f"ds_read_b64 {vr(kf(bb,kt,u) + 2*z, 2)}, v{kaddr(bb,u,z)} offset:{kt*2048}" for bb in range(2) for kt in range(2) for u in range(2) for z in range(2)]
    qcvt = lambda aa: [f"v_cvt_pk_bf16_f32 v{V_BF+i}, v{V_ACC+2*i}, v{V_ACC+2*i+1}" for i in range(8*aa, 8*aa+8)]
    def smf(bb, Cin=None):
        r = []
        for u in range(2):
            for kt in range(2):
                for qt in range(2):
                    C = (("0" if Cin is None else vr(Cin + 8*kt + 4*qt, 4)) if u == 0 else vr(sp(bb,kt,qt), 4))
                    r.append(f"{MF} {vr(sp(bb,kt,qt),4)}, {vr(kf(bb,kt,u),4)}, {vr(V_BF + 8*(2*bb+qt) + 4*u, 4)}, {C}")
        return r
    first_reads(0)
    kpos = max(KAT) + 1 if not KD else max(max(KD) + 1, 12)
    for n in range(16):
        G = item_gaps(n, n == 0, n + 1 if n < 15 else None, bar=(n < 15))
        if n == kpos: inject(G, 0, kreads[:8])
        if n == kpos + 1: inject(G, 0, kreads[8:])
        if n == 15:
            u = upd(15)
            inject(G, 16, [f"v_add_u32 v{r}, {u}, v{r}" for r in list(range(V_AR, V_AR+4)) + list(range(V_AW, V_AW+4))] +
                   [f"v_xor_b32 v{r}, s52, v{r}" for r in range(V_AR, V_AR+4)] +
                   [f"v_xor_b32 v{V_T+4}, s53, v{V_T+2}", f"v_xor_b32 v{V_T+6}, s53, v{V_T+3}", f"v_xor_b32 v{V_T+5}, 0x400, v{V_T+4}", f"v_xor_b32 v{V_T+7}, 0x400, v{V_T+6}"])
            inject(G, 24, qcvt(0), cap=3); inject(G, 28, qcvt(1), cap=3)
        emitG(G)
    stamp()
    a.c("---- partial scores of the partner's batch")
    G = [[0, m, []] for m in smf(0)]
    inject(G, 0, qcvt(2) + qcvt(3))
    emitG(G)
    RXS = V_KF
    for j in range(4): a(f"ds_write_b128 v{V_T+10}, {vr(V_SP + 4*j, 4)} offset:{j*1024}")
    a(f"ds_write_b64 v{V_T+10}, {vr(V_TAG,2)} offset:4096")
    flush_passes()
    a(f"s_mov_b32 s44, {opt.spin}")
    a.lab("L_spoll")
    a(f"ds_read_b64 v[2:3], v{V_T+11} offset:4096")
    a("s_sub_u32 s44, s44, 1"); a("s_cmp_eq_u32 s44, 0")
    a("s_waitcnt lgkmcnt(0)")
    a("s_cbranch_scc1 L_sgo")
    a(f"v_cmp_ne_u64 vcc, v[2:3], {vr(V_TAG,2)}")
    a("s_cbranch_vccnz L_spoll")
    a.lab("L_sgo")
    mark[0] = len(a.L)
    for j in range(4): a(f"ds_read_b128 {vr(RXS + 4*j, 4)}, v{V_T+11} offset:{j*1024}")
    for m in smf(1, RXS): a(m)
    S = lambda kt, qt, i: f"v{sp(1,kt,qt) + i}"
    sm = []
    M = [1, 3]; T = [2, 4]
    for qt in range(2):
        m = f"v{M[qt]}"
        sm += [f"v_max3_f32 {m}, {S(0,qt,0)}, {S(0,qt,1)}, {S(0,qt,2)}", f"v_max3_f32 {m}, {m}, {S(0,qt,3)}, {S(1,qt,0)}",
               f"v_max3_f32 {m}, {m}, {S(1,qt,1)}, {S(1,qt,2)}", f"v_max_f32 {m}, {m}, {S(1,qt,3)}"]
    def xl(op):
        o = []
        for sw in ("v_permlane16_swap_b32", "v_permlane32_swap_b32"):
            o += ["v_mov_b32 v2, v1", "v_mov_b32 v4, v3", f"{sw} v1, v2", f"{sw} v3, v4", f"{op} v1, v1, v2", f"{op} v3, v3, v4"]
        return o
    sm += xl("v_max_f32")
    sm += [f"v_mul_f32 v1, s{S_C}, v1", f"v_mul_f32 v3, s{S_C}, v3"]
    idx8 = [(kt, i) for kt in range(2) for i in range(4)]
    for qt in range(2):
        for kt, i in idx8: sm.append(f"v_fma_f32 {S(kt,qt,i)}, {S(kt,qt,i)}, s{S_C}, -v{M[qt]}")
    for qt in range(2):
        for kt, i in idx8: sm.append(f"v_exp_f32 {S(kt,qt,i)}, {S(kt,qt,i)}")
    for qt in range(2):
        m = f"v{M[qt]}"; t = f"v{T[qt]}"
        sm += [f"v_add_f32 {m}, {S(0,qt,0)}, {S(0,qt,1)}", f"v_add_f32 {t}, {S(0,qt,2)}, {S(0,qt,3)}",
               f"v_add_f32 {m}, {m}, {S(1,qt,0)}", f"v_add_f32 {t}, {t}, {S(1,qt,1)}",
               f"v_add_f32 {m}, {m}, {S(1,qt,2)}", f"v_add_f32 {t}, {t}, {S(1,qt,3)}", f"v_add_f32 {m}, {m}, {t}"]
    sm += xl("v_add_f32")
    sm += ["v_rcp_f32 v1, v1", "v_rcp_f32 v3, v3"]
    for qt in range(2):
        for kt, i in idx8: sm.append(f"v_mul_f32 {S(kt,qt,i)}, {S(kt,qt,i)}, v{M[qt]}")
        for kt in range(2):
            for h in range(2): sm.append(f"v_cvt_pk_bf16_f32 v{V_P + 4*qt + 2*kt + h}, {S(kt,qt,2*h)}, {S(kt,qt,2*h+1)}")
        sm.append(f"buffer_store_dwordx4 {vr(V_P+4*qt,4)}, v{V_T+3}, {srd(SRD_WS)}, s{S_PB} offen offset:{qt*1024} sc1")
    pw = [f"ds_write_b128 v{V_T+12}, {vr(V_P+4*qt,4)} offset:{qt*1024}" for qt in range(2)]
    flag_ops = ["s_waitcnt vmcnt(0)", f"buffer_store_dwordx2 {vr(V_TAG,2)}, v{V_Z}, {srd(SRD_WS)}, s{S_FL} offen sc1"]
    if opt.smbar >= len(sm):
        for x in sm: a(x)
        if opt.flagpos < 0:
            for x in flag_ops: a(x)
        a("s_barrier")
        first_reads(16)
    else:
        for x in sm[:opt.smbar]: a(x)
        a("s_barrier")
        first_reads(16)
        for x in sm[opt.smbar:]: a(x)
    for x in pw: a(x)
    stamp()
    order = [(bb, nt) for bb in range(2) for nt in range(4)]
    bf = lambda bb, nt: V_BF + 16*bb + 4*nt
    out = lambda bb, qt, nt: V_OUT + 16*(2*bb + qt) + 4*nt
    def cvt_ops(bb, nt):
        t0 = V_ACC + 16*(2*bb) + 4*nt; t1 = V_ACC + 16*(2*bb+1) + 4*nt; d = bf(bb, nt)
        return [f"v_cvt_pk_bf16_f32 v{d}, v{t0}, v{t0+1}", f"v_cvt_pk_bf16_f32 v{d+1}, v{t0+2}, v{t0+3}",
                f"v_cvt_pk_bf16_f32 v{d+2}, v{t1}, v{t1+1}", f"v_cvt_pk_bf16_f32 v{d+3}, v{t1+2}, v{t1+3}"]
    def pv_m(bb, qt, nt, P, zero):
        o = vr(out(bb,qt,nt), 4)
        return f"{MF} {o}, {vr(bf(bb,nt),4)}, {vr(P + 8*bb + 4*qt, 4)}, {'0' if zero else o}"
    def readP(i, P): return [f"ds_read_b128 {vr(P + 8*bb + 4*qt, 4)}, v{V_T+4+2*bb+qt} offset:{(i % 4)*8192}" for bb in range(2) for qt in range(2)]
    PN = V_W
    def boundary(i):
        G = []; prev = []
        for bb, nt in order:
            G.append([0, pv_m(bb, 0, nt, V_P, i == 1), prev[2:]])
            prev = cvt_ops(bb, nt)
            G.append([0, pv_m(bb, 1, nt, V_P, i == 1), prev[:2]])
        G[-1][2] += prev[2:]
        return G
    pre = [f"s_lshl_b32 s40, s{S_CL}, 5", f"s_add_u32 s40, s40, s{S_IDX}", f"s_lshl_b32 s41, s{S_KQ}, 2", f"s_add_u32 s41, s41, s{S_WAVE}",
           "s_lshl_b32 s43, s41, 11", f"s_add_u32 s43, s43, {hex(XBUF)}"]
    for t in (1, 2, 3):
        pre += [f"s_xor_b32 s42, s{S_KQ}, {t}", "s_lshl_b32 s42, s42, 3", "s_add_u32 s42, s42, s40", f"s_lshl_b32 s{52+t}, s42, 7",
                "s_lshl_b32 s42, s42, 15", f"s_add_u32 s{44+t}, s42, s43"]
    pre += ["s_lshl_b32 s43, s41, 3", f"s_add_u32 s43, s43, {hex(XFLAG)}"] + [f"s_add_u32 s{52+t}, s{52+t}, s43" for t in (1, 2, 3)]
    for i in range(8):
        nA, nB = 16 + 2*i, 17 + 2*i
        G = item_gaps(nA, True, nB) + item_gaps(nB, False, nB + 1 if i < 7 else None, bar=(i < 7))
        if i == 0:
            if opt.flagpos >= 0:
                fp = opt.flagpos
                if G[fp][2] and G[fp][2][-1] == "s_barrier": G[fp][2][-1:-1] = flag_ops
                else: G[fp][2].extend(flag_ops)
            cv = [x for bb, nt in order for x in cvt_ops(bb, nt)]
            inject(G, 58, cv[:16], cap=3); G[-1][2] += cv[16:]
        else:
            inject(G, 52 if opt.late else 48, readP(i - 1, V_P), cap=3, onelds=not opt.late or i == 7)
        if i == 7: inject(G, 56, readP(7, PN)); inject(G, 0, pre)
        emitG(G)
        if i: emitG(boundary(i))
        if opt.hstamps: stamp()
    def send(t):
        d = V_ACC + 8*t
        o = [f"v_cvt_pk_bf16_f32 v{d+j}, v{V_OUT+16*t+2*j}, v{V_OUT+16*t+2*j+1}" for j in range(8)]
        st = [f"buffer_store_dwordx4 {vr(d + 4*g, 4)}, v7, {srd(SRD_WS)}, s{44+t} offen offset:{g*1024} sc1" for g in range(2)]
        return o[:4] + st[:1] + o[4:] + st[1:]
    G = [[0, pv_m(t >> 1, t & 1, nt, PN, False), []] for t in (1, 2, 3, 0) for nt in range(4)]
    inject(G, 6, send(1) + send(2) + send(3), cap=3)
    emitG(G)
    stamp()
    a(f"s_lshl_b32 s42, s{S_KQ}, 3"); a("s_add_u32 s42, s42, s40")
    a(f"s_lshl_b32 s56, s42, 7"); a(f"s_lshl_b32 s43, s{S_WAVE}, 3"); a("s_add_u32 s56, s56, s43"); a(f"s_add_u32 s56, s56, {hex(XFLAG)}")
    a("v_and_b32 v3, 3, v0"); a("v_min_u32 v3, 2, v3"); a(f"v_add_u32 v3, s{S_KQ}, v3"); a("v_add_u32 v3, 1, v3"); a("v_and_b32 v3, 3, v3"); a("v_lshlrev_b32 v3, 5, v3")
    a("s_lshl_b32 s42, s42, 15"); a(f"s_lshl_b32 s43, s{S_WAVE}, 11"); a("s_add_u32 s42, s42, s43"); a(f"s_add_u32 s42, s42, {hex(XBUF)}")
    for j in range(3):
        a(f"s_add_u32 s43, s{S_KQ}, {j+1}"); a("s_and_b32 s43, s43, 3"); a("s_lshl_b32 s43, s43, 13"); a(f"s_add_u32 s{58+j}, s43, s42")
    a("v_lshrrev_b32 v4, 3, v0"); a("v_lshlrev_b32 v4, 12, v4"); a("v_and_b32 v5, 7, v0"); a("v_lshl_add_u32 v4, v5, 4, v4")
    a(f"s_lshr_b32 s41, s{S_KQ}, 1"); a(f"s_xor_b32 s41, s41, s{S_WAVE}"); a("s_xor_b32 s41, s41, 1"); a("s_lshl_b32 s41, s41, 17")
    a(f"s_lshl_b32 s40, s{S_RB}, 19"); a("s_add_u32 s40, s40, s41")
    a(f"s_and_b32 s41, s{S_KQ}, 1"); a("s_lshl_b32 s41, s41, 16"); a("s_add_u32 s40, s40, s41")
    a(f"s_lshl_b32 s41, s{S_BR}, 11"); a("s_add_u32 s40, s40, s41")
    a(f"s_mul_i32 s41, s{S_WN}, {opt.wox}"); a(f"s_xor_b32 s41, s41, s{S_IDX}"); a("s_lshl_b32 s41, s41, 8"); a("s_add_u32 s40, s40, s41")
    a(f"s_lshl_b32 s41, s{S_WN}, 7"); a("s_add_u32 s40, s40, s41")
    a("s_add_u32 s41, s40, 0x8000")
    a(f"s_lshl_b32 s42, s{S_WAVE}, 11"); a(f"s_add_u32 s42, s42, {SLOT}")
    a("v_and_b32 v1, 15, v0"); a("v_lshrrev_b32 v2, 5, v0"); a("v_xor_b32 v2, v2, v5"); a("v_lshlrev_b32 v2, 4, v2")
    a("v_lshl_add_u32 v1, v1, 7, v2"); a("v_bfe_u32 v2, v0, 4, 1"); a("v_lshl_add_u32 v1, v2, 3, v1"); a("v_add_u32 v1, s42, v1")
    for nt in range(1, 4): a(f"v_xor_b32 v{12+nt}, {32*nt}, v1")
    a("v_lshrrev_b32 v2, 3, v0"); a("v_xor_b32 v5, v5, v2"); a("v_lshlrev_b32 v5, 4, v5"); a("v_lshl_add_u32 v2, v2, 7, v5"); a("v_add_u32 v2, s42, v2")
    a(f"s_mov_b32 s44, {opt.spin}")
    for t in (1, 2, 3):
        a(f"s_waitcnt vmcnt({2*(3-t) + (t-1)})")
        a(f"buffer_store_dwordx2 {vr(V_TAG,2)}, v{V_Z}, {srd(SRD_WS)}, s{52+t} offen sc1")
    flush_passes()
    if opt.verbose:
        for r in rep: print("pad", r)
    RX = V_BF
    if opt.xprog:
        a("s_mov_b32 s57, 7")
        a.lab("L_xpoll")
        a(f"buffer_load_dwordx2 v[8:9], v3, {srd(SRD_WS)}, s56 offen sc1")
        a("s_sub_u32 s44, s44, 1"); a("s_cmp_eq_u32 s44, 0"); a("s_cselect_b32 s43, 0, 7")
        a("s_waitcnt vmcnt(0)")
        a(f"v_cmp_ne_u64 vcc, v[8:9], {vr(V_TAG,2)}")
        a("s_and_b32 s43, s43, vcc_lo")
        a("s_andn2_b32 s42, s57, s43"); a("s_mov_b32 s57, s43")
        for j in range(3):
            a(f"s_bitcmp1_b32 s42, {j}"); a(f"s_cbranch_scc0 L_xs{j}")
            for g in range(2): a(f"buffer_load_dwordx4 {vr(RX + 8*j + 4*g, 4)}, v7, {srd(SRD_WS)}, s{58+j} offen offset:{g*1024} sc1")
            a.lab(f"L_xs{j}")
        a("s_cmp_lg_u32 s57, 0"); a("s_cbranch_scc1 L_xpoll")
        stamp()
        a("s_waitcnt vmcnt(0)")
    else:
        a.lab("L_xpoll")
        a(f"buffer_load_dwordx2 v[8:9], v3, {srd(SRD_WS)}, s56 offen sc1")
        a("s_sub_u32 s44, s44, 1"); a("s_cmp_eq_u32 s44, 0")
        a("s_waitcnt vmcnt(0)")
        a("s_cbranch_scc1 L_xrd")
        a(f"v_cmp_ne_u64 vcc, v[8:9], {vr(V_TAG,2)}")
        a("s_cbranch_vccnz L_xpoll")
        a.lab("L_xrd")
        stamp()
        for j in range(3):
            for g in range(2): a(f"buffer_load_dwordx4 {vr(RX + 8*j + 4*g, 4)}, v7, {srd(SRD_WS)}, s{58+j} offen offset:{g*1024} sc1")
    for j in range(3):
        a(f"s_waitcnt vmcnt({4 - 2*j})")
        for i in range(8):
            r = RX + 8*j + i
            a(f"v_lshlrev_b32 v5, 16, v{r}"); a(f"v_and_b32 v6, 0xffff0000, v{r}")
            a(f"v_add_f32 v{V_OUT+2*i}, v{V_OUT+2*i}, v5"); a(f"v_add_f32 v{V_OUT+2*i+1}, v{V_OUT+2*i+1}, v6")
    for i in range(8): a(f"v_cvt_pk_bf16_f32 v{V_R+i}, v{V_OUT+2*i}, v{V_OUT+2*i+1}")
    for nt in range(4): a(f"ds_write_b64 v{12+nt if nt else 1}, {vr(V_R+2*nt,2)}")
    a(f"ds_read_b128 {vr(V_R+8,4)}, v2"); a(f"ds_read_b128 {vr(V_R+12,4)}, v2 offset:1024")
    a("s_waitcnt lgkmcnt(1)")
    a(f"buffer_store_dwordx4 {vr(V_R+8,4)}, v4, {srd(SRD_OUT)}, s40 offen {opt.outflags}")
    a("s_waitcnt lgkmcnt(0)")
    a(f"buffer_store_dwordx4 {vr(V_R+12,4)}, v4, {srd(SRD_OUT)}, s41 offen {opt.outflags}")
    a(f"s_or_b32 s40, s{S_KQ}, s{S_IDX}"); a(f"s_or_b32 s40, s40, s{S_WAVE}"); a("s_cmp_lg_u32 s40, 0"); a("s_cbranch_scc1 L_noep")
    a(f"s_lshl_b32 s40, s{S_CL}, 7")
    a(f"buffer_store_dwordx2 {vr(V_TAG,2)}, v{V_Z}, {srd(SRD_WS)}, s40 offen {opt.outflags}")
    a.lab("L_noep")
    if opt.fixdur:
        a.lab("L_fix")
        a("s_memrealtime s[92:93]"); a("s_waitcnt lgkmcnt(0)"); a("s_sub_u32 s92, s92, s98")
        a(f"s_cmp_lt_u32 s92, {opt.fixdur}"); a("s_cbranch_scc1 L_fix")
    if opt.stamps:
        a("s_waitcnt vmcnt(0)")
        stamp()
        a(f"s_cmp_lg_u32 s{S_WAVE}, 0"); a("s_cbranch_scc1 L_end2")
        a("s_waitcnt lgkmcnt(0)")
        n = nst[0]
        a(f"s_mul_i32 s40, s2, {n*8}"); a("s_add_u32 s40, s40, 0x8000000")
        a(f"s_add_u32 s42, s{SRD_WS}, s40"); a(f"s_addc_u32 s43, s{SRD_WS+1}, 0")
        for i in range(n):
            a(f"v_mov_b32 v8, s{S_ST+2*i}"); a(f"v_mov_b32 v9, s{S_ST+2*i+1}")
            a(f"global_store_dwordx2 v{V_Z}, v[8:9], s[42:43] offset:{i*8}"); a("s_nop 1")
        a.lab("L_end2")
    a("s_endpgm")
    tail = ['.section .rodata,"a"', ".p2align 6", f".amdhsa_kernel {NAME}_kernel"]
    tail += ["  .amdhsa_" + l for l in ("next_free_vgpr 256", "next_free_sgpr 102", "accum_offset 256", "group_segment_fixed_size 0", "kernarg_size 104",
              "user_sgpr_count 2", "user_sgpr_kernarg_segment_ptr 1", "system_sgpr_workgroup_id_x 1")]
    tail += [".end_amdhsa_kernel"]
    txt = "\n".join(head + [(x if x.endswith(":") else "    " + x) for x in a.L] + tail) + "\n"
    return txt, nst[0], rep

def parse(argv):
    ap = argparse.ArgumentParser()
    ap.add_argument("-o", default="cdna_kernels/" + NAME + ".s")
    for f in ("stamps", "cyc", "lstamps", "nodma", "nomfma", "samek", "hstamps", "verbose", "pairs"): ap.add_argument("--" + f, action="store_true")
    ap.add_argument("--prio", type=int, default=0)
    ap.add_argument("--spin", type=int, default=100000)
    ap.add_argument("--fixdur", type=int, default=0)
    ap.add_argument("--q0", type=int, default=2)
    ap.add_argument("--p1", type=int, default=4)
    ap.add_argument("--p2", default="6,8")
    ap.add_argument("--p3", type=int, default=12)
    ap.add_argument("--pm", default="2,3,4,3")
    ap.add_argument("--kat", default="")
    ap.add_argument("--wox", type=int, default=3)
    ap.add_argument("--smbar", type=int, default=200)
    ap.add_argument("--flagpos", type=int, default=8)
    ap.add_argument("--outflags", default="sc1")
    ap.add_argument("--pflags", default="sc1")
    ap.add_argument("--plate", type=int, default=1)
    ap.add_argument("--pix", type=int, default=1)
    ap.add_argument("--kd", default="")
    ap.add_argument("--lprio", type=int, default=0)
    ap.add_argument("--late", type=int, default=0)
    ap.add_argument("--q1", type=int, default=4)
    ap.add_argument("--q2", type=int, default=4)
    ap.add_argument("--w7", type=int, default=0)
    ap.add_argument("--xprog", type=int, default=0)
    ap.add_argument("--kdkey", type=int, default=0)
    return ap.parse_args(argv)

if __name__ == "__main__":
    opt = parse(sys.argv[1:])
    t, n, rep = gen(opt)
    open(opt.o, "w").write(t)
    print("wrote", opt.o, "stamps", n, "lines", t.count("\n"), "pads", len(rep))
```

```python
import sys, argparse
from passes import auto_wait, hazard_fix
NAME = "concat_heads__mha_block_cached__mha_block_cached__near_ridge"

class Asm:
    def __init__(self): self.L = []; self.drop = []
    def __call__(self, s):
        for pat in self.drop:
            if pat in s: return
        self.L.append(s)
    def lab(self, s): self.L.append(s + ":")
    def c(self, s): self.L.append("; " + s)

PFLAG = 0x4000; XFLAG = 0x10000; PBUF = 0x100000; XBUF = 0x400000; WS_REC = 0xC00000
SLOT = 32768; AUX = 4 * SLOT
S_BR, S_KQ, S_RB, S_IDX, S_WAVE = 3, 4, 5, 6, 7
SRD_X, SRD_K, SRD_V, SRD_WQ, SRD_WO, SRD_WS, SRD_OUT = 8, 12, 16, 20, 24, 28, 32
S_TAG = 36; S_CL = 38; S_HQ = 39
S_C = 50; S_PB = 49; S_OFFR = 47; S_OFFW = 48; S_W = 45; S_HT = 46
S_WM, S_WN = 56, 57; S_FL = 60; S_GRP = 61
S_ST = 62
def srd(b): return f"s[{b}:{b+3}]"
def vr(b, n): return f"v[{b}:{b+n-1}]"
V_AR = 8; V_AW = 12; V_R = 16; V_W = 32; V_BF = 64; V_P = 96; V_TAG = 112; V_Z = 114; V_T = 115
V_ACC = 128; V_OUT = 192; V_KF = 192; V_SP = 224
MF = "v_mfma_f32_16x16x32_bf16"
NI = 32
def slot(n): return n % 4

def gen(opt):
    a = Asm()
    if opt.nodma: a.drop.append(" lds")
    if opt.nomfma: a.drop += ["v_mfma"]
    head = ["; Fused double MHA block: Q-proj + scores + softmax | V*Wo + P*(V*Wo) | split-K reduce-scatter (gfx950)",
            f"; @launch grid=(256,1,1) block=({448 if opt.w7 else 512},1,1) lds={SLOT*5}",
            '.amdgcn_target "amdgcn-amd-amdhsa--gfx950"', ".text", f".globl {NAME}_kernel", ".p2align 8", f".type {NAME}_kernel,@function"]
    a.lab(f"{NAME}_kernel")
    nst = [0]
    def stamp_s():
        if not opt.stamps or nst[0] >= 18: return None
        r = S_ST + 2 * nst[0]; nst[0] += 1
        return f"{'s_memtime' if opt.cyc else 's_memrealtime'} s[{r}:{r+1}]"
    def stamp():
        if opt.pairs and opt.stamps:
            opt.cyc = False; a(stamp_s()); opt.cyc = True; a(stamp_s()); return
        s = stamp_s()
        if s: a(s)
    stamp()
    if opt.fixdur or opt.lstamps: a("s_memrealtime s[98:99]")
    a(f"s_bfe_u32 s{S_BR}, s2, 0x10002")
    a(f"s_mul_i32 s41, s{S_BR}, 40")
    a("s_add_u32 s42, s0, s41"); a("s_addc_u32 s43, s1, 0")
    a("s_cmp_ge_u32 s2, 256"); a("s_cbranch_scc1 L_end")
    a(f"s_load_dwordx2 s[{SRD_WQ}:{SRD_WQ+1}], s[42:43], 24")
    a(f"s_load_dwordx2 s[{SRD_X}:{SRD_X+1}], s[42:43], 0")
    a("v_lshrrev_b32 v1, 6, v0"); a("v_and_b32 v0, 63, v0")
    a(f"s_load_dwordx2 s[{SRD_WS}:{SRD_WS+1}], s[0:1], 96")
    a(f"v_readfirstlane_b32 s{S_WAVE}, v1")
    a(f"s_and_b32 s{S_KQ}, s2, 3"); a(f"s_lshr_b32 s{S_RB}, s2, 6"); a(f"s_bfe_u32 s{S_IDX}, s2, 0x30003")
    a(f"s_lshl_b32 s{S_HQ}, s{S_RB}, 1"); a(f"s_add_u32 s{S_HQ}, s{S_HQ}, s{S_IDX}"); a(f"s_and_b32 s{S_HQ}, s{S_HQ}, 7")
    a(f"s_sub_u32 s40, s{S_WAVE}, 4"); a("s_cmp_ge_u32 s40, 2"); a("s_cbranch_scc1 L_other")
    def mk(b, n): a(f"s_mov_b32 s{b+2}, {hex(n)}"); a(f"s_mov_b32 s{b+3}, 0x20000")
    def ids():
        a(f"s_lshl_b32 s{S_CL}, s{S_BR}, 2"); a(f"s_add_u32 s{S_CL}, s{S_CL}, s{S_RB}")
        a(f"s_lshl_b32 s{S_GRP}, s{S_CL}, 2"); a(f"s_add_u32 s{S_GRP}, s{S_GRP}, s{S_KQ}")
    def tag_hash():
        a(f"s_mul_i32 s{S_TAG}, s{S_TAG}, 0x9e3779b1"); a(f"s_add_u32 s{S_TAG}, s{S_TAG}, 0x7f4a7c15")
        a(f"s_mul_i32 s{S_TAG+1}, s{S_TAG+1}, 0x85ebca6b"); a(f"s_add_u32 s{S_TAG+1}, s{S_TAG+1}, 0xc2b2ae35")
    def tag_load():
        a(f"s_lshl_b32 s40, s{S_CL}, 7"); a(f"s_load_dwordx2 s[{S_TAG}:{S_TAG+1}], s[{SRD_WS}:{SRD_WS+1}], s40")

    a.c("---- loader waves")
    if opt.lprio: a(f"s_setprio {opt.lprio}")
    mk(SRD_WQ, 0x800000); mk(SRD_X, 0x100000)
    a("v_lshrrev_b32 v3, 4, v0"); a("v_and_b32 v2, 15, v0")
    a("v_lshlrev_b32 v4, 2, v3"); a("v_xor_b32 v2, v2, v4"); a("v_lshlrev_b32 v2, 4, v2"); a("v_xor_b32 v5, 32, v2")
    a("s_lshl_b32 s41, s40, 2"); a("v_add_u32 v6, s41, v3")
    a("v_lshl_add_u32 v12, v6, 13, v2"); a("v_lshl_add_u32 v13, v6, 13, v5")
    a(f"s_lshl_b32 s{S_W}, s40, 10")
    a(f"s_lshl_b32 s50, s{S_RB}, 2"); a(f"s_xor_b32 s51, s{S_HQ}, {opt.pix}"); a("s_lshl_b32 s51, s51, 1"); a("s_add_u32 s50, s50, s51")
    a(f"s_lshl_b32 s51, s{S_KQ}, 3"); a(f"s_add_u32 s51, s51, s{S_HQ}"); a("s_lshl_b32 s53, s51, 8")
    a("s_and_b32 s54, s50, 15"); a("s_lshl_b32 s55, s54, 19"); a(f"s_add_u32 s{S_OFFW}, s53, s55")
    a(f"s_lshl_b32 s52, s{S_RB}, 18"); a("s_lshl_b32 s55, s54, 7"); a(f"s_add_u32 s{S_OFFR}, s52, s55")
    a("v_lshrrev_b32 v1, 3, v0"); a("v_and_b32 v7, 7, v0"); a("v_xor_b32 v7, v7, v6"); a("v_lshlrev_b32 v7, 4, v7")
    a("s_lshl_b32 s41, s40, 3"); a("v_add_u32 v1, s41, v1"); a("v_lshl_add_u32 v10, v1, 11, v7")
    if opt.lstamps: a("s_memrealtime s[92:93]")
    def lst():
        if opt.lstamps:
            a("s_memrealtime s[92:93]"); a("s_waitcnt lgkmcnt(0)"); a("s_mov_b32 m0, s94"); a("v_writelane_b32 v30, s92, m0"); a("s_add_u32 s94, s94, 1")
    issued = []
    def dma(tg, vo, sr, sbase, lit, ldsoff, fl=""):
        a(f"s_add_u32 m0, s{S_W}, {ldsoff}")
        a(f"s_add_u32 s41, s{sbase}, {hex(lit)}")
        a(f"buffer_load_dwordx4 v{vo}, {srd(sr)}, s41 offen {fl} lds")
        issued.append(tg)
    def prep(n):
        if n < 16:
            a(f"s_bfe_u32 s54, s{42 + (n >> 3)}, {hex(4*(n & 7) | (4 << 16))}")
            a("s_add_u32 s54, s54, s50"); a("s_and_b32 s54, s54, 15")
            if opt.samek: a("s_and_b32 s54, s54, 1")
            a(f"s_lshl_b32 s55, s54, 7"); a(f"s_add_u32 s{S_OFFR}, s52, s55")
            a(f"s_lshl_b32 s55, s54, 19"); a(f"s_add_u32 s{S_OFFW}, s53, s55")
        elif n % 2 == 0:
            a(f"s_bfe_u32 s54, s{S_HT}, {hex(4*((n - 16) >> 1) | (4 << 16))}")
            if opt.samek: a("s_mov_b32 s54, 0")
            a("s_lshl_b32 s55, s54, 13"); a(f"s_add_u32 s{S_OFFR}, s58, s55")
            a("s_lshl_b32 s55, s54, 18"); a(f"s_add_u32 s{S_OFFW}, s59, s55")
    KAT = tuple(map(int, opt.kat.split(","))) if opt.kat else (opt.p1, opt.p3)
    if opt.kd: KAT = (-1, -1)
    NTW = set(map(int, opt.ntw.split(","))) if opt.ntw else set()
    NTR = set(map(int, opt.ntr.split(","))) if opt.ntr else set()
    def item_ops(n):
        so = slot(n) * SLOT; c2 = n & 1
        if n < 16:
            W = [(n, 12 + (m & 1), SRD_WQ, S_OFFW, m*8*8192, so + 16384 + m*2048) for m in range(8)]
            R = [(n, 10, SRD_X, S_OFFR, m*16*2048, so + m*2048) for m in range(8)]
        else:
            W = [(n, 14 + (m & 1), SRD_WO, S_OFFW, m*8*2048 + c2*64*2048, so + 16384 + m*2048) for m in range(8)]
            R = [(n, 11, SRD_V, S_OFFR, (m//2)*262144 + (m % 2)*4096 + c2*128, so + m*2048) for m in range(8)]
        if n in NTW: W = [w + ("nt",) for w in W]
        if n in NTR: R = [r + ("nt",) for r in R]
        X = []
        for c, kk in enumerate(KAT):
            if kk == n: X += [(n, 11, SRD_K, 57, (m//2)*262144 + (m % 2)*4096 + h*128, AUX + h*16384 + m*2048, opt.kflags) for m in range(4*c, 4*c+4) for h in range(2)]
        return W + X + R
    def pdma(i):
        a(f"s_bfe_u32 s60, s{S_HT}, {hex(4*i | (4 << 16))}"); a("s_lshl_b32 s60, s60, 13"); a(f"s_add_u32 s60, s60, s{S_PB}")
        for m in range(4): dma(f"P{i}", 16, SRD_WS, 60, m*2048, AUX + (i % 4)*8192 + m*2048, opt.pflags)
    def bar(need):
        last = max(i for i, t in enumerate(issued) if t in need)
        a(f"s_waitcnt vmcnt({len(issued) - 1 - last})")
        lst(); a("s_barrier")
    a("s_waitcnt lgkmcnt(0)")
    if opt.lstamps:
        a("v_mov_b32 v30, 0"); a("s_mov_b32 s94, 3")
        a("v_writelane_b32 v30, s98, 0"); a("v_writelane_b32 v30, s92, 1")
        a("s_memrealtime s[92:93]"); a("s_waitcnt lgkmcnt(0)"); a("v_writelane_b32 v30, s92, 2")
    for o in item_ops(0): dma(*o)
    for b, o in ((SRD_K, 8), (SRD_V, 16), (SRD_WO, 32)): a(f"s_load_dwordx2 s[{b}:{b+1}], s[42:43], {o}")
    mk(SRD_K, 0x400000); mk(SRD_V, 0x400000); mk(SRD_WO, 0x800000); mk(SRD_WS, WS_REC)
    ids()
    a("v_lshl_add_u32 v11, v1, 8, v7")
    a("v_lshl_add_u32 v14, v6, 11, v2"); a("v_lshl_add_u32 v15, v6, 11, v5")
    a(f"s_xor_b32 s44, s{S_IDX}, {opt.wox}"); a(f"s_sub_u32 s44, s44, s{S_IDX}"); a("s_lshl_b32 s44, s44, 8")
    a("v_bfe_u32 v6, v2, 7, 1"); a("v_mul_lo_u32 v6, v6, s44"); a(f"s_lshl_b32 s44, s{S_IDX}, 8"); a("v_add_u32 v6, s44, v6")
    a("v_add_u32 v14, v14, v6"); a("v_add_u32 v15, v15, v6")
    a("v_lshlrev_b32 v16, 4, v0"); a(f"v_add_u32 v16, s{S_W}, v16")
    a(f"s_lshl_b32 s56, s{S_RB}, 20"); a("s_lshl_b32 s41, s51, 13"); a("s_add_u32 s57, s56, s41")
    a(f"s_lshl_b32 s41, s{S_KQ}, 16"); a("s_add_u32 s58, s56, s41")
    a(f"s_lshl_b32 s59, s{S_KQ}, 21")
    a(f"s_lshl_b32 s{S_PB}, s{S_GRP}, 16"); a(f"s_add_u32 s{S_PB}, s{S_PB}, {hex(PBUF)}")
    PMS = list(map(int, opt.pm.split(",")))
    def h_table(pm):
        seq = []; r = [2, 4, 6, 3, 5, 7]
        for i in range(8): seq.append(0 if i == 0 else 1 if i == pm else r.pop(0))
        return seq
    ht = [sum(x << (4*i) for i, x in enumerate(h_table(pm))) for pm in PMS]
    a(f"s_mov_b32 s{S_HT}, {hex(ht[0])}")
    for w in range(1, len(PMS)):
        a(f"s_and_b32 s41, s{S_IDX}, {len(PMS)-1}"); a(f"s_cmp_eq_u32 s41, {w}"); a(f"s_cselect_b32 s{S_HT}, {hex(ht[w])}, s{S_HT}")
    a(f"s_mul_i32 s41, s{S_HQ}, 0x11111111"); a(f"s_add_u32 s{S_HT}, s{S_HT}, s41"); a(f"s_and_b32 s{S_HT}, s{S_HT}, 0x77777777")
    def p1_table(p1, p2, p3):
        seq = [None] * 16; Ms = {0: 0, p1: 2, p2: 1, p3: 3}; avail = []
        for n in range(16):
            if n in Ms: seq[n] = Ms[n]; avail += [(n + 1, Ms[n] + 4*j) for j in (1, 2, 3)]
            else:
                t, c = avail.pop(0); assert t <= n; seq[n] = c
        return seq
    pack = lambda seq: sum((x & 15) << (4*i) for i, x in enumerate(seq))
    P2S = list(map(int, opt.p2.split(",")))
    tabs = [pack(p1_table(opt.p1, p2, opt.p3)) for p2 in P2S]
    a("s_waitcnt lgkmcnt(0)")
    a(f"s_mov_b32 s42, {hex(tabs[0] & 0xffffffff)}"); a(f"s_mov_b32 s43, {hex(tabs[0] >> 32)}")
    for u in range(1, len(P2S)):
        a(f"s_and_b32 s41, s2, {len(P2S)-1}"); a(f"s_cmp_eq_u32 s41, {u}")
        a(f"s_cselect_b32 s42, {hex(tabs[u] & 0xffffffff)}, s42"); a(f"s_cselect_b32 s43, {hex(tabs[u] >> 32)}, s43")
    prep(1)
    for o in item_ops(1): dma(*o)
    PAT = {20: [1], 21: [2, 3], 23: [4], 25: [5], 27: [6, 7]}
    PNEED = {21: "P1", 23: "P2", 25: "P3", 27: "P4", 29: "P5"}
    KD = list(map(int, opt.kd.split(","))) if opt.kd else []
    if KD: a(f"s_and_b32 s62, s{S_IDX if opt.kdkey == 0 else S_HQ}, {len(KD)-1}")
    kops = [("K", 11, SRD_K, 57, (m//2)*262144 + (m % 2)*4096 + h*128, AUX + h*16384 + m*2048) for m in range(8) for h in range(2)]
    for n in range(2, NI):
        prep(n)
        L = item_ops(n); q = opt.q0 if n < 4 else ((opt.q1 if n <= 18 else opt.q2) if opt.late else 0)
        for o in L[:q]: dma(*o)
        k = n - 3
        mask = sum(1 << t for t, c in enumerate(KD) if c in (n - 1, n - 2))
        if mask:
            last = max(i for i, t in enumerate(issued) if t == n - 2); N = len(issued) - 1 - last
            a(f"s_mov_b32 s63, {mask}"); a("s_bitcmp1_b32 s63, s62"); a(f"s_cbranch_scc1 L_kw{n}")
            a(f"s_waitcnt vmcnt({N})"); a.lab(f"L_kw{n}"); a(f"s_waitcnt vmcnt({N + 16})"); lst(); a("s_barrier")
        else:
            bar({n - 2, PNEED.get(k)})
        if not opt.plate or k == 20:
            for i in PAT.get(k, []): pdma(i)
        for o in L[q:]: dma(*o)
        if opt.plate and k != 20:
            for i in PAT.get(k, []): pdma(i)
        mask = sum(1 << t for t, c in enumerate(KD) if c == n)
        if mask:
            a(f"s_mov_b32 s63, {mask}"); a("s_bitcmp1_b32 s63, s62"); a(f"s_cbranch_scc0 L_kn{n}")
            for o in kops: dma(*o)
            del issued[-16:]
            a.lab(f"L_kn{n}")
    bar({NI - 2, "P5"}); bar({NI - 1, "P6", "P7"})
    if opt.lstamps:
        a(f"s_cmp_lg_u32 s{S_WAVE}, 4"); a("s_cbranch_scc1 L_end")
        a("s_mul_i32 s40, s2, 512"); a("s_add_u32 s40, s40, 0x8000000")
        a(f"s_add_u32 s42, s{SRD_WS}, s40"); a(f"s_addc_u32 s43, s{SRD_WS+1}, 0")
        a("v_lshlrev_b32 v1, 3, v0"); a("v_mov_b32 v31, 0")
        a("global_store_dwordx2 v1, v[30:31], s[42:43]")
    a("s_endpgm")

    a.lab("L_other")
    mk(SRD_WS, WS_REC); ids()
    a(f"s_cmp_lt_u32 s{S_WAVE}, 4"); a("s_cbranch_scc1 L_compute")
    if opt.tlb:
        a(f"s_cmp_lg_u32 s{S_WAVE}, 6"); a("s_cbranch_scc1 L_poller")
        a.c("---- wave 6: touch one word of every 2 MB region used later (address translation warm-up)")
        a("s_load_dwordx4 s[12:15], s[42:43], 8"); a("s_load_dwordx2 s[16:17], s[42:43], 32"); a("s_load_dwordx2 s[18:19], s[0:1], 80")
        a(f"s_lshl_b32 s44, s{S_RB}, 20"); a("s_add_u32 s45, s44, 0xffffc")
        a(f"s_lshl_b32 s46, s{S_KQ}, 21"); a("s_add_u32 s47, s46, 0x1ffffc")
        a(f"s_lshl_b32 s48, s{S_GRP}, 16"); a(f"s_add_u32 s48, s48, {hex(PBUF)}")
        a(f"s_lshl_b32 s49, s{S_CL}, 20"); a(f"s_add_u32 s49, s49, {hex(XBUF)}")
        a(f"s_lshl_b32 s50, s{S_RB}, 19")
        a("s_waitcnt lgkmcnt(0)")
        for i, (b, o) in enumerate(((12, 44), (12, 45), (14, 44), (14, 45), (16, 46), (16, 47), (28, 48), (28, 49), (18, 50))):
            a(f"s_load_dword s{52+i}, s[{b}:{b+1}], s{o}")
        a("s_endpgm")
        a.lab("L_poller")
    elif not opt.w7: a(f"s_cmp_eq_u32 s{S_WAVE}, 6"); a("s_cbranch_scc1 L_end")
    a("s_waitcnt lgkmcnt(0)")
    tag_load()
    a("v_bfe_u32 v1, v0, 2, 3"); a("v_and_b32 v2, 3, v0"); a("v_lshlrev_b32 v2, 3, v2"); a("v_lshl_add_u32 v4, v1, 7, v2")
    a(f"s_lshl_b32 s43, s{S_GRP}, 10"); a(f"s_add_u32 s43, s43, {hex(PFLAG)}")
    a("s_waitcnt lgkmcnt(0)")
    tag_hash()
    a(f"v_mov_b32 v2, s{S_TAG}"); a(f"v_mov_b32 v3, s{S_TAG+1}")
    a(f"s_mov_b32 s44, 21")
    a.lab("L_pb"); a("s_barrier"); a("s_sub_u32 s44, s44, 1"); a("s_cmp_lg_u32 s44, 0"); a("s_cbranch_scc1 L_pb")
    a(f"s_mov_b32 s44, {opt.spin}")
    a.lab("L_ppoll")
    a(f"buffer_load_dwordx2 v[8:9], v4, {srd(SRD_WS)}, s43 offen sc1")
    a("s_sub_u32 s44, s44, 1"); a("s_cmp_eq_u32 s44, 0")
    a("s_waitcnt vmcnt(0)")
    a("s_cbranch_scc1 L_end")
    a("v_cmp_ne_u64 vcc, v[8:9], v[2:3]")
    a("s_cbranch_vccz L_end")
    a("s_sleep 2"); a("s_branch L_ppoll")
    a.lab("L_end")
    a("s_endpgm")

    a.lab("L_compute")
    mark = [len(a.L)]; rep = []
    def flush_passes():
        body = hazard_fix(auto_wait(a.L[mark[0]:]), report=rep)
        a.L = a.L[:mark[0]] + body
        mark[0] = len(a.L)
    a(f"s_load_dwordx2 s[{SRD_OUT}:{SRD_OUT+1}], s[0:1], 80"); mk(SRD_OUT, 0x200000)
    if opt.prio: a(f"s_setprio {opt.prio}")
    a(f"s_lshr_b32 s{S_WM}, s{S_WAVE}, 1"); a(f"s_and_b32 s{S_WN}, s{S_WAVE}, 1")
    a("v_and_b32 v1, 15, v0"); a("v_lshrrev_b32 v2, 4, v0")
    a("v_lshrrev_b32 v3, 1, v1"); a("v_xor_b32 v4, v3, v2"); a("v_lshlrev_b32 v4, 4, v4"); a("v_lshl_add_u32 v4, v1, 7, v4")
    a(f"s_lshl_b32 s43, s{S_WAVE}, 12"); a("s_xor_b32 s42, s43, 4096")
    a(f"v_add_u32 v{V_AR}, s42, v4"); a(f"v_add_u32 v{V_AR+1}, s43, v4")
    a(f"v_xor_b32 v{V_AR+2}, 64, v{V_AR}"); a(f"v_xor_b32 v{V_AR+3}, 64, v{V_AR+1}")
    a("v_lshrrev_b32 v5, 1, v2"); a("v_xor_b32 v5, v5, v3"); a("v_lshlrev_b32 v5, 4, v5"); a("v_lshl_add_u32 v5, v1, 7, v5")
    a("v_and_b32 v6, 1, v2"); a("v_lshl_add_u32 v5, v6, 3, v5")
    a(f"s_lshl_b32 s44, s{S_WN}, 14"); a(f"s_add_u32 s44, s44, {AUX}")
    a("s_add_u32 s42, s42, s44"); a("s_add_u32 s43, s43, s44")
    a(f"v_add_u32 v{V_T}, s42, v5"); a(f"v_add_u32 v{V_T+1}, s43, v5")
    for bb in range(2):
        for uz in range(1, 4): a(f"v_xor_b32 v{V_T+4+3*bb+uz-1}, {32*uz}, v{V_T+bb}")
    a("v_bfe_u32 v5, v0, 2, 2"); a("v_lshl_add_u32 v4, v2, 3, v5"); a("v_lshlrev_b32 v4, 8, v4")
    a("v_and_b32 v3, 3, v0"); a("v_lshl_add_u32 v4, v3, 3, v4"); a("v_add_u32 v4, 16384, v4")
    a("v_lshlrev_b32 v5, 1, v5"); a("v_or_b32 v5, v5, v6")
    a(f"s_lshl_b32 s40, s{S_WN}, 2")
    for b in range(4):
        a(f"s_add_u32 s41, s40, {b}"); a("v_xor_b32 v3, s41, v5"); a(f"v_lshl_add_u32 v{V_AW+b}, v3, 5, v4")
    a(f"s_lshr_b32 s52, s{S_KQ}, 1"); a("s_lshl_b32 s52, s52, 12")
    a(f"s_lshl_b32 s53, s{S_KQ}, 10"); a(f"s_add_u32 s53, s53, {AUX}")
    a("v_lshlrev_b32 v7, 4, v0"); a(f"v_mov_b32 v{V_Z}, 0")
    a(f"s_mov_b32 s{S_C}, 0x3e0293ee")
    a(f"s_lshl_b32 s40, s{S_WM}, 13"); a("s_add_u32 s40, s40, s44")
    a(f"v_add_u32 v{V_T+10}, s40, v7"); a(f"v_xor_b32 v{V_T+11}, 0x4000, v{V_T+10}")
    a(f"s_lshl_b32 s41, s{S_WAVE}, 11"); a("s_xor_b32 s42, s41, 2048")
    a(f"v_add_u32 v{V_T+2}, s42, v7"); a(f"v_add_u32 v{V_T+3}, s41, v7")
    a(f"v_add_u32 v{V_T+12}, {AUX}, v{V_T+3}")
    a("s_waitcnt lgkmcnt(0)")
    tag_load()
    a(f"s_lshl_b32 s40, s{S_GRP}, 3"); a(f"s_add_u32 s40, s40, s{S_HQ}")
    a(f"s_lshl_b32 s{S_PB}, s40, 13"); a(f"s_add_u32 s{S_PB}, s{S_PB}, {hex(PBUF)}")
    a("s_lshl_b32 s40, s40, 7"); a(f"s_lshl_b32 s41, s{S_WAVE}, 3"); a("s_add_u32 s40, s40, s41"); a(f"s_add_u32 s{S_FL}, s40, {hex(PFLAG)}")
    a("s_waitcnt lgkmcnt(0)")
    tag_hash()
    a(f"v_mov_b32 v{V_TAG}, s{S_TAG}"); a(f"v_mov_b32 v{V_TAG+1}, s{S_TAG+1}")
    a("s_barrier")
    stamp()

    def rel(n): return (slot(n) & 1) * SLOT
    def upd(n): return {0: None, 1: "0x10000", -1: "0xffff0000"}[(slot(n + 1) >> 1) - (slot(n) >> 1)]
    def rdR(n, s, aa): return f"ds_read_b128 {vr(V_R+4*aa,4)}, v{V_AR + 2*s + (aa >> 1)} offset:{rel(n) + (aa & 1)*2048}"
    def rdW(n, s, b, z): return f"ds_read_b64_tr_b16 {vr(V_W + 16*s + 4*b + 2*z, 2)}, v{V_AW+b} offset:{rel(n) + s*8192 + z*1024}"
    WPOS = {(0,0): (0,0), (0,1): (0,1), (0,2): (1,0), (1,0): (1,1), (1,1): (2,0), (1,2): (2,1), (2,0): (3,0), (2,1): (3,1)}
    WAITPOS = {(0,0), (0,1), (0,2), (0,3), (2,0), (3,0)}
    def acc(aa, b): return vr(V_ACC + 16*aa + 4*b, 4)
    def first_reads(n):
        for aa in range(4):
            for b in range(4):
                if (aa, b) in WPOS: a(rdW(n, 0, *WPOS[(aa, b)]))
                if b == 3: a(rdR(n, 0, aa))
    def item_gaps(n, zero, nxt, bar=True):
        G = []
        for s in range(2):
            tk, ts = (n, 1) if s == 0 else (nxt, 0)
            for aa in range(4):
                for b in range(4):
                    post = []
                    W = vr(V_W + 16*s + 4*b, 4); R = vr(V_R + 4*aa, 4)
                    C = "0" if (zero and s == 0) else acc(aa, b)
                    m = f"{MF} {acc(aa,b)}, {W}, {R}, {C}" if n < 16 else f"{MF} {acc(aa,b)}, {R}, {W}, {C}"
                    if opt.late and s == 1:
                        if aa == 0 and b == 3 and bar: post += ["s_waitcnt lgkmcnt(0)", "s_barrier"]
                        if tk is not None:
                            if (aa - 1, b) in WPOS: post.append(rdW(tk, ts, *WPOS[(aa - 1, b)]))
                            if b == 3: post.append(rdR(tk, ts, aa))
                    elif tk is not None:
                        if (aa, b) in WPOS: post.append(rdW(tk, ts, *WPOS[(aa, b)]))
                        if b == 3: post.append(rdR(tk, ts, aa))
                    u = upd(n) if nxt is not None else None
                    if u is not None:
                        if s == 0 and aa == 3 and b < 3: post.append(f"v_add_u32 v{V_AW+b}, {u}, v{V_AW+b}")
                        if s == 0 and aa == 2 and b == 2: post += [f"v_add_u32 v{V_AR}, {u}, v{V_AR}", f"v_add_u32 v{V_AR+1}, {u}, v{V_AR+1}"]
                        if s == 0 and aa == 3 and b == 2: post.append(f"v_add_u32 v{V_AW+3}, {u}, v{V_AW+3}")
                        if s == 1 and aa == (0 if opt.late else 3) and b < 2: post.append(f"v_add_u32 v{V_AR+2+b}, {u}, v{V_AR+2+b}")
                    if bar and s == 0 and aa == 3 and b == 3 and not opt.late: post.append("s_barrier")
                    G.append([1 if (aa, b) in WAITPOS else 0, m, post])
        return G
    def load_of(G, i): return len(G[i][2]) + (G[i+1][0] if i + 1 < len(G) else 0)
    def inject(G, start, opsl, cap=2, onelds=True):
        i = start
        for op in opsl:
            while i < len(G) and (load_of(G, i) >= cap or (onelds and op.startswith("ds_") and any(x.startswith("ds_") for x in G[i][2]))): i += 1
            if i >= len(G): G[-1][2].append(op); i = len(G) - 1; continue
            G[i][2].append(op)
        return i
    def emitG(G):
        for w, m, post in G:
            a(m)
            for x in post: a(x)
    kf = lambda bb, kt, u: V_KF + 16*bb + 8*kt + 4*u
    sp = lambda bb, kt, qt: V_SP + 16*bb + 8*kt + 4*qt
    kaddr = lambda bb, u, z: (V_T + bb) if (u == 0 and z == 0) else (V_T + 4 + 3*bb + 2*u + z - 1)
    kreads = [f"ds_read_b64 {vr(kf(bb,kt,u) + 2*z, 2)}, v{kaddr(bb,u,z)} offset:{kt*2048}" for bb in range(2) for kt in range(2) for u in range(2) for z in range(2)]
    qcvt = lambda aa: [f"v_cvt_pk_bf16_f32 v{V_BF+i}, v{V_ACC+2*i}, v{V_ACC+2*i+1}" for i in range(8*aa, 8*aa+8)]
    def smf(bb, Cin=None):
        r = []
        for u in range(2):
            for kt in range(2):
                for qt in range(2):
                    C = (("0" if Cin is None else vr(Cin + 8*kt + 4*qt, 4)) if u == 0 else vr(sp(bb,kt,qt), 4))
                    r.append(f"{MF} {vr(sp(bb,kt,qt),4)}, {vr(kf(bb,kt,u),4)}, {vr(V_BF + 8*(2*bb+qt) + 4*u, 4)}, {C}")
        return r
    first_reads(0)
    kpos = max(KAT) + 1 if not KD else max(max(KD) + 1, 12)
    for n in range(16):
        G = item_gaps(n, n == 0, n + 1 if n < 15 else None, bar=(n < 15))
        if n == kpos: inject(G, 0, kreads[:8])
        if n == kpos + 1: inject(G, 0, kreads[8:])
        if n == 15:
            u = upd(15)
            inject(G, 16, [f"v_add_u32 v{r}, {u}, v{r}" for r in list(range(V_AR, V_AR+4)) + list(range(V_AW, V_AW+4))] +
                   [f"v_xor_b32 v{r}, s52, v{r}" for r in range(V_AR, V_AR+4)] +
                   [f"v_xor_b32 v{V_T+4}, s53, v{V_T+2}", f"v_xor_b32 v{V_T+6}, s53, v{V_T+3}", f"v_xor_b32 v{V_T+5}, 0x400, v{V_T+4}", f"v_xor_b32 v{V_T+7}, 0x400, v{V_T+6}"])
            inject(G, 24, qcvt(0), cap=3); inject(G, 28, qcvt(1), cap=3)
        emitG(G)
    stamp()
    a.c("---- partial scores of the partner's batch")
    G = [[0, m, []] for m in smf(0)]
    inject(G, 0, qcvt(2) + qcvt(3))
    emitG(G)
    RXS = V_KF
    for j in range(4): a(f"ds_write_b128 v{V_T+10}, {vr(V_SP + 4*j, 4)} offset:{j*1024}")
    a(f"ds_write_b64 v{V_T+10}, {vr(V_TAG,2)} offset:4096")
    flush_passes()
    a(f"s_mov_b32 s44, {opt.spin}")
    a.lab("L_spoll")
    a(f"ds_read_b64 v[2:3], v{V_T+11} offset:4096")
    a("s_sub_u32 s44, s44, 1"); a("s_cmp_eq_u32 s44, 0")
    a("s_waitcnt lgkmcnt(0)")
    a("s_cbranch_scc1 L_sgo")
    a(f"v_cmp_ne_u64 vcc, v[2:3], {vr(V_TAG,2)}")
    a("s_cbranch_vccnz L_spoll")
    a.lab("L_sgo")
    mark[0] = len(a.L)
    for j in range(4): a(f"ds_read_b128 {vr(RXS + 4*j, 4)}, v{V_T+11} offset:{j*1024}")
    for m in smf(1, RXS): a(m)
    S = lambda kt, qt, i: f"v{sp(1,kt,qt) + i}"
    sm = []
    M = [1, 3]; T = [2, 4]
    for qt in range(2):
        m = f"v{M[qt]}"
        sm += [f"v_max3_f32 {m}, {S(0,qt,0)}, {S(0,qt,1)}, {S(0,qt,2)}", f"v_max3_f32 {m}, {m}, {S(0,qt,3)}, {S(1,qt,0)}",
               f"v_max3_f32 {m}, {m}, {S(1,qt,1)}, {S(1,qt,2)}", f"v_max_f32 {m}, {m}, {S(1,qt,3)}"]
    def xl(op):
        o = []
        for sw in ("v_permlane16_swap_b32", "v_permlane32_swap_b32"):
            o += ["v_mov_b32 v2, v1", "v_mov_b32 v4, v3", f"{sw} v1, v2", f"{sw} v3, v4", f"{op} v1, v1, v2", f"{op} v3, v3, v4"]
        return o
    sm += xl("v_max_f32")
    sm += [f"v_mul_f32 v1, s{S_C}, v1", f"v_mul_f32 v3, s{S_C}, v3"]
    idx8 = [(kt, i) for kt in range(2) for i in range(4)]
    for qt in range(2):
        for kt, i in idx8: sm.append(f"v_fma_f32 {S(kt,qt,i)}, {S(kt,qt,i)}, s{S_C}, -v{M[qt]}")
    for qt in range(2):
        for kt, i in idx8: sm.append(f"v_exp_f32 {S(kt,qt,i)}, {S(kt,qt,i)}")
    for qt in range(2):
        m = f"v{M[qt]}"; t = f"v{T[qt]}"
        sm += [f"v_add_f32 {m}, {S(0,qt,0)}, {S(0,qt,1)}", f"v_add_f32 {t}, {S(0,qt,2)}, {S(0,qt,3)}",
               f"v_add_f32 {m}, {m}, {S(1,qt,0)}", f"v_add_f32 {t}, {t}, {S(1,qt,1)}",
               f"v_add_f32 {m}, {m}, {S(1,qt,2)}", f"v_add_f32 {t}, {t}, {S(1,qt,3)}", f"v_add_f32 {m}, {m}, {t}"]
    sm += xl("v_add_f32")
    sm += ["v_rcp_f32 v1, v1", "v_rcp_f32 v3, v3"]
    for qt in range(2):
        for kt, i in idx8: sm.append(f"v_mul_f32 {S(kt,qt,i)}, {S(kt,qt,i)}, v{M[qt]}")
        for kt in range(2):
            for h in range(2): sm.append(f"v_cvt_pk_bf16_f32 v{V_P + 4*qt + 2*kt + h}, {S(kt,qt,2*h)}, {S(kt,qt,2*h+1)}")
        sm.append(f"buffer_store_dwordx4 {vr(V_P+4*qt,4)}, v{V_T+3}, {srd(SRD_WS)}, s{S_PB} offen offset:{qt*1024} sc1")
    pw = [f"ds_write_b128 v{V_T+12}, {vr(V_P+4*qt,4)} offset:{qt*1024}" for qt in range(2)]
    flag_ops = ["s_waitcnt vmcnt(0)", f"buffer_store_dwordx2 {vr(V_TAG,2)}, v{V_Z}, {srd(SRD_WS)}, s{S_FL} offen sc1"]
    if opt.smbar >= len(sm):
        for x in sm: a(x)
        if opt.flagpos < 0:
            for x in flag_ops: a(x)
        a("s_barrier")
        first_reads(16)
    else:
        for x in sm[:opt.smbar]: a(x)
        a("s_barrier")
        first_reads(16)
        for x in sm[opt.smbar:]: a(x)
    for x in pw: a(x)
    stamp()
    order = [(bb, nt) for bb in range(2) for nt in range(4)]
    bf = lambda bb, nt: V_BF + 16*bb + 4*nt
    out = lambda bb, qt, nt: V_OUT + 16*(2*bb + qt) + 4*nt
    def cvt_ops(bb, nt):
        t0 = V_ACC + 16*(2*bb) + 4*nt; t1 = V_ACC + 16*(2*bb+1) + 4*nt; d = bf(bb, nt)
        return [f"v_cvt_pk_bf16_f32 v{d}, v{t0}, v{t0+1}", f"v_cvt_pk_bf16_f32 v{d+1}, v{t0+2}, v{t0+3}",
                f"v_cvt_pk_bf16_f32 v{d+2}, v{t1}, v{t1+1}", f"v_cvt_pk_bf16_f32 v{d+3}, v{t1+2}, v{t1+3}"]
    def pv_m(bb, qt, nt, P, zero):
        o = vr(out(bb,qt,nt), 4)
        return f"{MF} {o}, {vr(bf(bb,nt),4)}, {vr(P + 8*bb + 4*qt, 4)}, {'0' if zero else o}"
    def readP(i, P): return [f"ds_read_b128 {vr(P + 8*bb + 4*qt, 4)}, v{V_T+4+2*bb+qt} offset:{(i % 4)*8192}" for bb in range(2) for qt in range(2)]
    PN = V_W
    def boundary(i):
        G = []; prev = []
        for bb, nt in order:
            G.append([0, pv_m(bb, 0, nt, V_P, i == 1), prev[2:]])
            prev = cvt_ops(bb, nt)
            G.append([0, pv_m(bb, 1, nt, V_P, i == 1), prev[:2]])
        G[-1][2] += prev[2:]
        return G
    pre = [f"s_lshl_b32 s40, s{S_CL}, 5", f"s_add_u32 s40, s40, s{S_IDX}", f"s_lshl_b32 s41, s{S_KQ}, 2", f"s_add_u32 s41, s41, s{S_WAVE}",
           "s_lshl_b32 s43, s41, 11", f"s_add_u32 s43, s43, {hex(XBUF)}"]
    for t in (1, 2, 3):
        pre += [f"s_xor_b32 s42, s{S_KQ}, {t}", "s_lshl_b32 s42, s42, 3", "s_add_u32 s42, s42, s40", f"s_lshl_b32 s{52+t}, s42, 7",
                "s_lshl_b32 s42, s42, 15", f"s_add_u32 s{44+t}, s42, s43"]
    pre += ["s_lshl_b32 s43, s41, 3", f"s_add_u32 s43, s43, {hex(XFLAG)}"] + [f"s_add_u32 s{52+t}, s{52+t}, s43" for t in (1, 2, 3)]
    for i in range(8):
        nA, nB = 16 + 2*i, 17 + 2*i
        G = item_gaps(nA, True, nB) + item_gaps(nB, False, nB + 1 if i < 7 else None, bar=(i < 7))
        if i == 0:
            if opt.flagpos >= 0:
                fp = opt.flagpos
                if G[fp][2] and G[fp][2][-1] == "s_barrier": G[fp][2][-1:-1] = flag_ops
                else: G[fp][2].extend(flag_ops)
            cv = [x for bb, nt in order for x in cvt_ops(bb, nt)]
            inject(G, 58, cv[:16], cap=3); G[-1][2] += cv[16:]
        else:
            inject(G, 52 if opt.late else 48, readP(i - 1, V_P), cap=3, onelds=not opt.late or i == 7)
        if i == 7: inject(G, 56, readP(7, PN)); inject(G, 0, pre)
        emitG(G)
        if i: emitG(boundary(i))
        if opt.hstamps: stamp()
    def send(t):
        d = V_ACC + 8*t
        o = [f"v_cvt_pk_bf16_f32 v{d+j}, v{V_OUT+16*t+2*j}, v{V_OUT+16*t+2*j+1}" for j in range(8)]
        st = [f"buffer_store_dwordx4 {vr(d + 4*g, 4)}, v7, {srd(SRD_WS)}, s{44+t} offen offset:{g*1024} {opt.xflags}" for g in range(2)]
        return o[:4] + st[:1] + o[4:] + st[1:]
    G = [[0, pv_m(t >> 1, t & 1, nt, PN, False), []] for t in (1, 2, 3, 0) for nt in range(4)]
    inject(G, 6, send(1) + send(2) + send(3), cap=3)
    emitG(G)
    stamp()
    a(f"s_lshl_b32 s42, s{S_KQ}, 3"); a("s_add_u32 s42, s42, s40")
    a(f"s_lshl_b32 s56, s42, 7"); a(f"s_lshl_b32 s43, s{S_WAVE}, 3"); a("s_add_u32 s56, s56, s43"); a(f"s_add_u32 s56, s56, {hex(XFLAG)}")
    a("v_and_b32 v3, 3, v0"); a("v_min_u32 v3, 2, v3"); a(f"v_add_u32 v3, s{S_KQ}, v3"); a("v_add_u32 v3, 1, v3"); a("v_and_b32 v3, 3, v3"); a("v_lshlrev_b32 v3, 5, v3")
    a("s_lshl_b32 s42, s42, 15"); a(f"s_lshl_b32 s43, s{S_WAVE}, 11"); a("s_add_u32 s42, s42, s43"); a(f"s_add_u32 s42, s42, {hex(XBUF)}")
    for j in range(3):
        a(f"s_add_u32 s43, s{S_KQ}, {j+1}"); a("s_and_b32 s43, s43, 3"); a("s_lshl_b32 s43, s43, 13"); a(f"s_add_u32 s{58+j}, s43, s42")
    a("v_lshrrev_b32 v4, 3, v0"); a("v_lshlrev_b32 v4, 12, v4"); a("v_and_b32 v5, 7, v0"); a("v_lshl_add_u32 v4, v5, 4, v4")
    a(f"s_lshr_b32 s41, s{S_KQ}, 1"); a(f"s_xor_b32 s41, s41, s{S_WAVE}"); a("s_xor_b32 s41, s41, 1"); a("s_lshl_b32 s41, s41, 17")
    a(f"s_lshl_b32 s40, s{S_RB}, 19"); a("s_add_u32 s40, s40, s41")
    a(f"s_and_b32 s41, s{S_KQ}, 1"); a("s_lshl_b32 s41, s41, 16"); a("s_add_u32 s40, s40, s41")
    a(f"s_lshl_b32 s41, s{S_BR}, 11"); a("s_add_u32 s40, s40, s41")
    a(f"s_mul_i32 s41, s{S_WN}, {opt.wox}"); a(f"s_xor_b32 s41, s41, s{S_IDX}"); a("s_lshl_b32 s41, s41, 8"); a("s_add_u32 s40, s40, s41")
    a(f"s_lshl_b32 s41, s{S_WN}, 7"); a("s_add_u32 s40, s40, s41")
    a("s_add_u32 s41, s40, 0x8000")
    a(f"s_lshl_b32 s42, s{S_WAVE}, 11"); a(f"s_add_u32 s42, s42, {SLOT}")
    a("v_and_b32 v1, 15, v0"); a("v_lshrrev_b32 v2, 5, v0"); a("v_xor_b32 v2, v2, v5"); a("v_lshlrev_b32 v2, 4, v2")
    a("v_lshl_add_u32 v1, v1, 7, v2"); a("v_bfe_u32 v2, v0, 4, 1"); a("v_lshl_add_u32 v1, v2, 3, v1"); a("v_add_u32 v1, s42, v1")
    for nt in range(1, 4): a(f"v_xor_b32 v{12+nt}, {32*nt}, v1")
    a("v_lshrrev_b32 v2, 3, v0"); a("v_xor_b32 v5, v5, v2"); a("v_lshlrev_b32 v5, 4, v5"); a("v_lshl_add_u32 v2, v2, 7, v5"); a("v_add_u32 v2, s42, v2")
    a(f"s_mov_b32 s44, {opt.spin}")
    for t in (1, 2, 3):
        a(f"s_waitcnt vmcnt({2*(3-t) + (t-1)})")
        a(f"buffer_store_dwordx2 {vr(V_TAG,2)}, v{V_Z}, {srd(SRD_WS)}, s{52+t} offen sc1")
    flush_passes()
    if opt.verbose:
        for r in rep: print("pad", r)
    RX = V_BF
    if opt.xprog:
        a("s_mov_b32 s57, 7")
        a.lab("L_xpoll")
        a(f"buffer_load_dwordx2 v[8:9], v3, {srd(SRD_WS)}, s56 offen sc1")
        a("s_sub_u32 s44, s44, 1"); a("s_cmp_eq_u32 s44, 0"); a("s_cselect_b32 s43, 0, 7")
        a("s_waitcnt vmcnt(0)")
        a(f"v_cmp_ne_u64 vcc, v[8:9], {vr(V_TAG,2)}")
        a("s_and_b32 s43, s43, vcc_lo")
        a("s_andn2_b32 s42, s57, s43"); a("s_mov_b32 s57, s43")
        for j in range(3):
            a(f"s_bitcmp1_b32 s42, {j}"); a(f"s_cbranch_scc0 L_xs{j}")
            for g in range(2): a(f"buffer_load_dwordx4 {vr(RX + 8*j + 4*g, 4)}, v7, {srd(SRD_WS)}, s{58+j} offen offset:{g*1024} sc1")
            a.lab(f"L_xs{j}")
        a("s_cmp_lg_u32 s57, 0"); a("s_cbranch_scc1 L_xpoll")
        stamp()
        a("s_waitcnt vmcnt(0)")
    else:
        a.lab("L_xpoll")
        a(f"buffer_load_dwordx2 v[8:9], v3, {srd(SRD_WS)}, s56 offen sc1")
        a("s_sub_u32 s44, s44, 1"); a("s_cmp_eq_u32 s44, 0")
        a("s_waitcnt vmcnt(0)")
        a("s_cbranch_scc1 L_xrd")
        a(f"v_cmp_ne_u64 vcc, v[8:9], {vr(V_TAG,2)}")
        a("s_cbranch_vccnz L_xpoll")
        a.lab("L_xrd")
        stamp()
        for j in range(3):
            for g in range(2): a(f"buffer_load_dwordx4 {vr(RX + 8*j + 4*g, 4)}, v7, {srd(SRD_WS)}, s{58+j} offen offset:{g*1024} sc1")
    for j in range(3):
        a(f"s_waitcnt vmcnt({4 - 2*j})")
        for i in range(8):
            r = RX + 8*j + i
            a(f"v_lshlrev_b32 v5, 16, v{r}"); a(f"v_and_b32 v6, 0xffff0000, v{r}")
            a(f"v_add_f32 v{V_OUT+2*i}, v{V_OUT+2*i}, v5"); a(f"v_add_f32 v{V_OUT+2*i+1}, v{V_OUT+2*i+1}, v6")
    for i in range(8): a(f"v_cvt_pk_bf16_f32 v{V_R+i}, v{V_OUT+2*i}, v{V_OUT+2*i+1}")
    for nt in range(4): a(f"ds_write_b64 v{12+nt if nt else 1}, {vr(V_R+2*nt,2)}")
    a(f"ds_read_b128 {vr(V_R+8,4)}, v2"); a(f"ds_read_b128 {vr(V_R+12,4)}, v2 offset:1024")
    a("s_waitcnt lgkmcnt(1)")
    a(f"buffer_store_dwordx4 {vr(V_R+8,4)}, v4, {srd(SRD_OUT)}, s40 offen {opt.outflags}")
    a("s_waitcnt lgkmcnt(0)")
    a(f"buffer_store_dwordx4 {vr(V_R+12,4)}, v4, {srd(SRD_OUT)}, s41 offen {opt.outflags}")
    a(f"s_or_b32 s40, s{S_KQ}, s{S_IDX}"); a(f"s_or_b32 s40, s40, s{S_WAVE}"); a("s_cmp_lg_u32 s40, 0"); a("s_cbranch_scc1 L_noep")
    a(f"s_lshl_b32 s40, s{S_CL}, 7")
    a(f"buffer_store_dwordx2 {vr(V_TAG,2)}, v{V_Z}, {srd(SRD_WS)}, s40 offen {opt.outflags}")
    a.lab("L_noep")
    if opt.fixdur:
        a.lab("L_fix")
        a("s_memrealtime s[92:93]"); a("s_waitcnt lgkmcnt(0)"); a("s_sub_u32 s92, s92, s98")
        a(f"s_cmp_lt_u32 s92, {opt.fixdur}"); a("s_cbranch_scc1 L_fix")
    if opt.stamps:
        a("s_waitcnt vmcnt(0)")
        stamp()
        a(f"s_cmp_lg_u32 s{S_WAVE}, 0"); a("s_cbranch_scc1 L_end2")
        a("s_waitcnt lgkmcnt(0)")
        n = nst[0]
        a(f"s_mul_i32 s40, s2, {n*8}"); a("s_add_u32 s40, s40, 0x8000000")
        a(f"s_add_u32 s42, s{SRD_WS}, s40"); a(f"s_addc_u32 s43, s{SRD_WS+1}, 0")
        for i in range(n):
            a(f"v_mov_b32 v8, s{S_ST+2*i}"); a(f"v_mov_b32 v9, s{S_ST+2*i+1}")
            a(f"global_store_dwordx2 v{V_Z}, v[8:9], s[42:43] offset:{i*8}"); a("s_nop 1")
        a.lab("L_end2")
    a("s_endpgm")
    tail = ['.section .rodata,"a"', ".p2align 6", f".amdhsa_kernel {NAME}_kernel"]
    tail += ["  .amdhsa_" + l for l in ("next_free_vgpr 256", "next_free_sgpr 102", "accum_offset 256", "group_segment_fixed_size 0", "kernarg_size 104",
              "user_sgpr_count 2", "user_sgpr_kernarg_segment_ptr 1", "system_sgpr_workgroup_id_x 1")]
    tail += [".end_amdhsa_kernel"]
    txt = "\n".join(head + [(x if x.endswith(":") else "    " + x) for x in a.L] + tail) + "\n"
    return txt, nst[0], rep

def parse(argv):
    ap = argparse.ArgumentParser()
    ap.add_argument("-o", default="cdna_kernels/" + NAME + ".s")
    for f in ("stamps", "cyc", "lstamps", "nodma", "nomfma", "samek", "hstamps", "verbose", "pairs"): ap.add_argument("--" + f, action="store_true")
    ap.add_argument("--prio", type=int, default=0)
    ap.add_argument("--spin", type=int, default=100000)
    ap.add_argument("--fixdur", type=int, default=0)
    ap.add_argument("--q0", type=int, default=2)
    ap.add_argument("--p1", type=int, default=4)
    ap.add_argument("--p2", default="6,8")
    ap.add_argument("--p3", type=int, default=12)
    ap.add_argument("--pm", default="2,3,4,3")
    ap.add_argument("--kat", default="")
    ap.add_argument("--wox", type=int, default=3)
    ap.add_argument("--smbar", type=int, default=200)
    ap.add_argument("--flagpos", type=int, default=8)
    ap.add_argument("--outflags", default="sc1")
    ap.add_argument("--pflags", default="sc1")
    ap.add_argument("--plate", type=int, default=1)
    ap.add_argument("--pix", type=int, default=1)
    ap.add_argument("--kd", default="")
    ap.add_argument("--lprio", type=int, default=0)
    ap.add_argument("--tlb", type=int, default=0)
    ap.add_argument("--kflags", default="")
    ap.add_argument("--ntw", default="")
    ap.add_argument("--ntr", default="")
    ap.add_argument("--xflags", default="sc1")
    ap.add_argument("--late", type=int, default=1)
    ap.add_argument("--q1", type=int, default=4)
    ap.add_argument("--q2", type=int, default=4)
    ap.add_argument("--w7", type=int, default=0)
    ap.add_argument("--xprog", type=int, default=0)
    ap.add_argument("--kdkey", type=int, default=0)
    return ap.parse_args(argv)

if __name__ == "__main__":
    opt = parse(sys.argv[1:])
    t, n, rep = gen(opt)
    open(opt.o, "w").write(t)
    print("wrote", opt.o, "stamps", n, "lines", t.count("\n"), "pads", len(rep))
```

```python
import sys, argparse
from passes import auto_wait, hazard_fix
NAME = "concat_heads__mha_block_cached__mha_block_cached__near_ridge"

class Asm:
    def __init__(self): self.L = []; self.drop = []
    def __call__(self, s):
        for pat in self.drop:
            if pat in s: return
        self.L.append(s)
    def lab(self, s): self.L.append(s + ":")
    def c(self, s): self.L.append("; " + s)

PFLAG = 0x4000; XFLAG = 0x10000; PBUF = 0x100000; XBUF = 0x400000; WS_REC = 0xC00000
SLOT = 32768; AUX = 4 * SLOT
S_BR, S_KQ, S_RB, S_IDX, S_WAVE = 3, 4, 5, 6, 7
SRD_X, SRD_K, SRD_V, SRD_WQ, SRD_WO, SRD_WS, SRD_OUT = 8, 12, 16, 20, 24, 28, 32
S_TAG = 36; S_CL = 38; S_HQ = 39
S_C = 50; S_PB = 49; S_OFFR = 47; S_OFFW = 48; S_W = 45; S_HT = 46
S_WM, S_WN = 56, 57; S_FL = 60; S_GRP = 61
S_ST = 62
def srd(b): return f"s[{b}:{b+3}]"
def vr(b, n): return f"v[{b}:{b+n-1}]"
V_AR = 8; V_AW = 12; V_R = 16; V_W = 32; V_BF = 64; V_P = 96; V_TAG = 112; V_Z = 114; V_T = 115
V_ACC = 128; V_OUT = 192; V_KF = 192; V_SP = 224
MF = "v_mfma_f32_16x16x32_bf16"
NI = 32
def slot(n): return n % 4

def gen(opt):
    a = Asm()
    if opt.nodma: a.drop.append(" lds")
    if opt.nomfma: a.drop += ["v_mfma"]
    head = ["; Fused double MHA block: Q-proj + scores + softmax | V*Wo + P*(V*Wo) | split-K reduce-scatter (gfx950)",
            f"; @launch grid=(256,1,1) block=({448 if opt.w7 else 512},1,1) lds={SLOT*5}",
            '.amdgcn_target "amdgcn-amd-amdhsa--gfx950"', ".text", f".globl {NAME}_kernel", ".p2align 8", f".type {NAME}_kernel,@function"]
    a.lab(f"{NAME}_kernel")
    nst = [0]
    def stamp_s():
        if not opt.stamps or nst[0] >= 18: return None
        r = S_ST + 2 * nst[0]; nst[0] += 1
        return f"{'s_memtime' if opt.cyc else 's_memrealtime'} s[{r}:{r+1}]"
    def stamp():
        if opt.pairs and opt.stamps:
            opt.cyc = False; a(stamp_s()); opt.cyc = True; a(stamp_s()); return
        s = stamp_s()
        if s: a(s)
    stamp()
    if opt.fixdur or opt.lstamps: a("s_memrealtime s[98:99]")
    a(f"s_bfe_u32 s{S_BR}, s2, 0x10002")
    a(f"s_mul_i32 s41, s{S_BR}, 40")
    a("s_add_u32 s42, s0, s41"); a("s_addc_u32 s43, s1, 0")
    a("s_cmp_ge_u32 s2, 256"); a("s_cbranch_scc1 L_end")
    a(f"s_load_dwordx2 s[{SRD_WQ}:{SRD_WQ+1}], s[42:43], 24")
    a(f"s_load_dwordx2 s[{SRD_X}:{SRD_X+1}], s[42:43], 0")
    a("v_lshrrev_b32 v1, 6, v0"); a("v_and_b32 v0, 63, v0")
    a(f"s_load_dwordx2 s[{SRD_WS}:{SRD_WS+1}], s[0:1], 96")
    a(f"v_readfirstlane_b32 s{S_WAVE}, v1")
    a(f"s_and_b32 s{S_KQ}, s2, 3"); a(f"s_lshr_b32 s{S_RB}, s2, 6"); a(f"s_bfe_u32 s{S_IDX}, s2, 0x30003")
    a(f"s_lshl_b32 s{S_HQ}, s{S_RB}, 1"); a(f"s_add_u32 s{S_HQ}, s{S_HQ}, s{S_IDX}"); a(f"s_and_b32 s{S_HQ}, s{S_HQ}, 7")
    a(f"s_sub_u32 s40, s{S_WAVE}, 4"); a("s_cmp_ge_u32 s40, 2"); a("s_cbranch_scc1 L_other")
    def mk(b, n): a(f"s_mov_b32 s{b+2}, {hex(n)}"); a(f"s_mov_b32 s{b+3}, 0x20000")
    def ids():
        a(f"s_lshl_b32 s{S_CL}, s{S_BR}, 2"); a(f"s_add_u32 s{S_CL}, s{S_CL}, s{S_RB}")
        a(f"s_lshl_b32 s{S_GRP}, s{S_CL}, 2"); a(f"s_add_u32 s{S_GRP}, s{S_GRP}, s{S_KQ}")
    def tag_hash():
        a(f"s_mul_i32 s{S_TAG}, s{S_TAG}, 0x9e3779b1"); a(f"s_add_u32 s{S_TAG}, s{S_TAG}, 0x7f4a7c15")
        a(f"s_mul_i32 s{S_TAG+1}, s{S_TAG+1}, 0x85ebca6b"); a(f"s_add_u32 s{S_TAG+1}, s{S_TAG+1}, 0xc2b2ae35")
    def tag_load():
        a(f"s_lshl_b32 s40, s{S_CL}, 7"); a(f"s_load_dwordx2 s[{S_TAG}:{S_TAG+1}], s[{SRD_WS}:{SRD_WS+1}], s40")

    a.c("---- loader waves")
    if opt.lprio: a(f"s_setprio {opt.lprio}")
    mk(SRD_WQ, 0x800000); mk(SRD_X, 0x100000)
    a("v_lshrrev_b32 v3, 4, v0"); a("v_and_b32 v2, 15, v0")
    a("v_lshlrev_b32 v4, 2, v3"); a("v_xor_b32 v2, v2, v4"); a("v_lshlrev_b32 v2, 4, v2"); a("v_xor_b32 v5, 32, v2")
    a("s_lshl_b32 s41, s40, 2"); a("v_add_u32 v6, s41, v3")
    a("v_lshl_add_u32 v12, v6, 13, v2"); a("v_lshl_add_u32 v13, v6, 13, v5")
    a(f"s_lshl_b32 s{S_W}, s40, 10")
    a(f"s_lshl_b32 s50, s{S_RB}, 2"); a(f"s_xor_b32 s51, s{S_HQ}, {opt.pix}"); a("s_lshl_b32 s51, s51, 1"); a("s_add_u32 s50, s50, s51")
    a(f"s_lshl_b32 s51, s{S_KQ}, 3"); a(f"s_add_u32 s51, s51, s{S_HQ}"); a("s_lshl_b32 s53, s51, 8")
    a("s_and_b32 s54, s50, 15"); a("s_lshl_b32 s55, s54, 19"); a(f"s_add_u32 s{S_OFFW}, s53, s55")
    a(f"s_lshl_b32 s52, s{S_RB}, 18"); a("s_lshl_b32 s55, s54, 7"); a(f"s_add_u32 s{S_OFFR}, s52, s55")
    a("v_lshrrev_b32 v1, 3, v0"); a("v_and_b32 v7, 7, v0"); a("v_xor_b32 v7, v7, v6"); a("v_lshlrev_b32 v7, 4, v7")
    a("s_lshl_b32 s41, s40, 3"); a("v_add_u32 v1, s41, v1"); a("v_lshl_add_u32 v10, v1, 11, v7")
    if opt.lstamps: a("s_memrealtime s[92:93]")
    def lst():
        if opt.lstamps:
            a("s_memrealtime s[92:93]"); a("s_waitcnt lgkmcnt(0)"); a("s_mov_b32 m0, s94"); a("v_writelane_b32 v30, s92, m0"); a("s_add_u32 s94, s94, 1")
    issued = []
    def dma(tg, vo, sr, sbase, lit, ldsoff, fl=""):
        a(f"s_add_u32 m0, s{S_W}, {ldsoff}")
        a(f"s_add_u32 s41, s{sbase}, {hex(lit)}")
        a(f"buffer_load_dwordx4 v{vo}, {srd(sr)}, s41 offen {fl} lds")
        issued.append(tg)
    def prep(n):
        if n < 16:
            a(f"s_bfe_u32 s54, s{42 + (n >> 3)}, {hex(4*(n & 7) | (4 << 16))}")
            a("s_add_u32 s54, s54, s50"); a("s_and_b32 s54, s54, 15")
            if opt.samek: a("s_and_b32 s54, s54, 1")
            a(f"s_lshl_b32 s55, s54, 7"); a(f"s_add_u32 s{S_OFFR}, s52, s55")
            a(f"s_lshl_b32 s55, s54, 19"); a(f"s_add_u32 s{S_OFFW}, s53, s55")
        elif n % 2 == 0:
            a(f"s_bfe_u32 s54, s{S_HT}, {hex(4*((n - 16) >> 1) | (4 << 16))}")
            if opt.samek: a("s_mov_b32 s54, 0")
            a("s_lshl_b32 s55, s54, 13"); a(f"s_add_u32 s{S_OFFR}, s58, s55")
            a("s_lshl_b32 s55, s54, 18"); a(f"s_add_u32 s{S_OFFW}, s59, s55")
    KAT = tuple(map(int, opt.kat.split(","))) if opt.kat else (opt.p1, opt.p3)
    if opt.kd: KAT = (-1, -1)
    NTW = set(map(int, opt.ntw.split(","))) if opt.ntw else set()
    NTR = set(map(int, opt.ntr.split(","))) if opt.ntr else set()
    def item_ops(n):
        so = slot(n) * SLOT; c2 = n & 1
        if n < 16:
            W = [(n, 12 + (m & 1), SRD_WQ, S_OFFW, m*8*8192, so + 16384 + m*2048) for m in range(8)]
            R = [(n, 10, SRD_X, S_OFFR, m*16*2048, so + m*2048) for m in range(8)]
        else:
            W = [(n, 14 + (m & 1), SRD_WO, S_OFFW, m*8*2048 + c2*64*2048, so + 16384 + m*2048) for m in range(8)]
            R = [(n, 11, SRD_V, S_OFFR, (m//2)*262144 + (m % 2)*4096 + c2*128, so + m*2048) for m in range(8)]
        if n in NTW: W = [w + ("nt",) for w in W]
        if n in NTR: R = [r + ("nt",) for r in R]
        X = []
        for c, kk in enumerate(KAT):
            if kk == n: X += [(n, 11, SRD_K, 57, (m//2)*262144 + (m % 2)*4096 + h*128, AUX + h*16384 + m*2048, opt.kflags) for m in range(4*c, 4*c+4) for h in range(2)]
        return W + X + R
    def pdma(i):
        a(f"s_bfe_u32 s60, s{S_HT}, {hex(4*i | (4 << 16))}"); a("s_lshl_b32 s60, s60, 13"); a(f"s_add_u32 s60, s60, s{S_PB}")
        for m in range(4): dma(f"P{i}", 16, SRD_WS, 60, m*2048, AUX + (i % 4)*8192 + m*2048, opt.pflags)
    def bar(need):
        last = max(i for i, t in enumerate(issued) if t in need)
        a(f"s_waitcnt vmcnt({len(issued) - 1 - last})")
        lst(); a("s_barrier")
    a("s_waitcnt lgkmcnt(0)")
    if opt.lstamps:
        a("v_mov_b32 v30, 0"); a("s_mov_b32 s94, 3")
        a("v_writelane_b32 v30, s98, 0"); a("v_writelane_b32 v30, s92, 1")
        a("s_memrealtime s[92:93]"); a("s_waitcnt lgkmcnt(0)"); a("v_writelane_b32 v30, s92, 2")
    for o in item_ops(0): dma(*o)
    for b, o in ((SRD_K, 8), (SRD_V, 16), (SRD_WO, 32)): a(f"s_load_dwordx2 s[{b}:{b+1}], s[42:43], {o}")
    mk(SRD_K, 0x400000); mk(SRD_V, 0x400000); mk(SRD_WO, 0x800000); mk(SRD_WS, WS_REC)
    ids()
    a("v_lshl_add_u32 v11, v1, 8, v7")
    a("v_lshl_add_u32 v14, v6, 11, v2"); a("v_lshl_add_u32 v15, v6, 11, v5")
    a(f"s_xor_b32 s44, s{S_IDX}, {opt.wox}"); a(f"s_sub_u32 s44, s44, s{S_IDX}"); a("s_lshl_b32 s44, s44, 8")
    a("v_bfe_u32 v6, v2, 7, 1"); a("v_mul_lo_u32 v6, v6, s44"); a(f"s_lshl_b32 s44, s{S_IDX}, 8"); a("v_add_u32 v6, s44, v6")
    a("v_add_u32 v14, v14, v6"); a("v_add_u32 v15, v15, v6")
    a("v_lshlrev_b32 v16, 4, v0"); a(f"v_add_u32 v16, s{S_W}, v16")
    a(f"s_lshl_b32 s56, s{S_RB}, 20"); a("s_lshl_b32 s41, s51, 13"); a("s_add_u32 s57, s56, s41")
    a(f"s_lshl_b32 s41, s{S_KQ}, 16"); a("s_add_u32 s58, s56, s41")
    a(f"s_lshl_b32 s59, s{S_KQ}, 21")
    a(f"s_lshl_b32 s{S_PB}, s{S_GRP}, 16"); a(f"s_add_u32 s{S_PB}, s{S_PB}, {hex(PBUF)}")
    PMS = list(map(int, opt.pm.split(",")))
    def h_table(pm):
        seq = []; r = [2, 4, 6, 3, 5, 7]
        for i in range(8): seq.append(0 if i == 0 else 1 if i == pm else r.pop(0))
        return seq
    ht = [sum(x << (4*i) for i, x in enumerate(h_table(pm))) for pm in PMS]
    a(f"s_mov_b32 s{S_HT}, {hex(ht[0])}")
    for w in range(1, len(PMS)):
        a(f"s_and_b32 s41, s{S_IDX}, {len(PMS)-1}"); a(f"s_cmp_eq_u32 s41, {w}"); a(f"s_cselect_b32 s{S_HT}, {hex(ht[w])}, s{S_HT}")
    a(f"s_mul_i32 s41, s{S_HQ}, 0x11111111"); a(f"s_add_u32 s{S_HT}, s{S_HT}, s41"); a(f"s_and_b32 s{S_HT}, s{S_HT}, 0x77777777")
    def p1_table(p1, p2, p3):
        seq = [None] * 16; Ms = {0: 0, p1: 2, p2: 1, p3: 3}; avail = []
        for n in range(16):
            if n in Ms: seq[n] = Ms[n]; avail += [(n + 1, Ms[n] + 4*j) for j in (1, 2, 3)]
            else:
                t, c = avail.pop(0); assert t <= n; seq[n] = c
        return seq
    pack = lambda seq: sum((x & 15) << (4*i) for i, x in enumerate(seq))
    P2S = list(map(int, opt.p2.split(",")))
    tabs = [pack(p1_table(opt.p1, p2, opt.p3)) for p2 in P2S]
    a("s_waitcnt lgkmcnt(0)")
    a(f"s_mov_b32 s42, {hex(tabs[0] & 0xffffffff)}"); a(f"s_mov_b32 s43, {hex(tabs[0] >> 32)}")
    for u in range(1, len(P2S)):
        a(f"s_and_b32 s41, s2, {len(P2S)-1}"); a(f"s_cmp_eq_u32 s41, {u}")
        a(f"s_cselect_b32 s42, {hex(tabs[u] & 0xffffffff)}, s42"); a(f"s_cselect_b32 s43, {hex(tabs[u] >> 32)}, s43")
    prep(1)
    for o in item_ops(1): dma(*o)
    PAT = {20: [1], 21: [2, 3], 23: [4], 25: [5], 27: [6, 7]}
    PNEED = {21: "P1", 23: "P2", 25: "P3", 27: "P4", 29: "P5"}
    KD = list(map(int, opt.kd.split(","))) if opt.kd else []
    if KD: a(f"s_and_b32 s62, s{S_IDX if opt.kdkey == 0 else S_HQ}, {len(KD)-1}")
    kops = [("K", 11, SRD_K, 57, (m//2)*262144 + (m % 2)*4096 + h*128, AUX + h*16384 + m*2048, opt.kflags) for m in range(8) for h in range(2)]
    for n in range(2, NI):
        prep(n)
        L = item_ops(n); q = opt.q0 if n < 4 else ((opt.q1 if n <= 18 else opt.q2) if opt.late else 0)
        if opt.wpair and n >= 18:
            if n % 2 == 0: L = L[:8] + item_ops(n + 1)[:8] + L[8:]
            else: L = L[8:]; q = 0
        for o in L[:q]: dma(*o)
        k = n - 3
        mask = sum(1 << t for t, c in enumerate(KD) if c in (n - 1, n - 2))
        if mask:
            last = max(i for i, t in enumerate(issued) if t == n - 2); N = len(issued) - 1 - last
            a(f"s_mov_b32 s63, {mask}"); a("s_bitcmp1_b32 s63, s62"); a(f"s_cbranch_scc1 L_kw{n}")
            a(f"s_waitcnt vmcnt({N})"); a.lab(f"L_kw{n}"); a(f"s_waitcnt vmcnt({N + 16})"); lst(); a("s_barrier")
        else:
            bar({n - 2, PNEED.get(k)})
        if not opt.plate or k == 20:
            for i in PAT.get(k, []): pdma(i)
        for o in L[q:]: dma(*o)
        if opt.plate and k != 20:
            for i in PAT.get(k, []): pdma(i)
        mask = sum(1 << t for t, c in enumerate(KD) if c == n)
        if mask:
            a(f"s_mov_b32 s63, {mask}"); a("s_bitcmp1_b32 s63, s62"); a(f"s_cbranch_scc0 L_kn{n}")
            for o in kops: dma(*o)
            del issued[-16:]
            a.lab(f"L_kn{n}")
    bar({NI - 2, "P5"}); bar({NI - 1, "P6", "P7"})
    if opt.lstamps:
        a(f"s_cmp_lg_u32 s{S_WAVE}, 4"); a("s_cbranch_scc1 L_end")
        a("s_mul_i32 s40, s2, 512"); a("s_add_u32 s40, s40, 0x8000000")
        a(f"s_add_u32 s42, s{SRD_WS}, s40"); a(f"s_addc_u32 s43, s{SRD_WS+1}, 0")
        a("v_lshlrev_b32 v1, 3, v0"); a("v_mov_b32 v31, 0")
        a("global_store_dwordx2 v1, v[30:31], s[42:43]")
    a("s_endpgm")

    a.lab("L_other")
    mk(SRD_WS, WS_REC); ids()
    a(f"s_cmp_lt_u32 s{S_WAVE}, 4"); a("s_cbranch_scc1 L_compute")
    if opt.tlb:
        a(f"s_cmp_lg_u32 s{S_WAVE}, 6"); a("s_cbranch_scc1 L_poller")
        a.c("---- wave 6: touch one word of every 2 MB region used later (address translation warm-up)")
        a("s_load_dwordx4 s[12:15], s[42:43], 8"); a("s_load_dwordx2 s[16:17], s[42:43], 32"); a("s_load_dwordx2 s[18:19], s[0:1], 80")
        a(f"s_lshl_b32 s44, s{S_RB}, 20"); a("s_add_u32 s45, s44, 0xffffc")
        a(f"s_lshl_b32 s46, s{S_KQ}, 21"); a("s_add_u32 s47, s46, 0x1ffffc")
        a(f"s_lshl_b32 s48, s{S_GRP}, 16"); a(f"s_add_u32 s48, s48, {hex(PBUF)}")
        a(f"s_lshl_b32 s49, s{S_CL}, 20"); a(f"s_add_u32 s49, s49, {hex(XBUF)}")
        a(f"s_lshl_b32 s50, s{S_RB}, 19")
        a("s_waitcnt lgkmcnt(0)")
        for i, (b, o) in enumerate(((12, 44), (12, 45), (14, 44), (14, 45), (16, 46), (16, 47), (28, 48), (28, 49), (18, 50))):
            a(f"s_load_dword s{52+i}, s[{b}:{b+1}], s{o}")
        a("s_endpgm")
        a.lab("L_poller")
    elif opt.ctouch:
        a(f"s_cmp_lg_u32 s{S_WAVE}, 6"); a("s_cbranch_scc1 L_poller")
        a.c("---- wave 6: pull this CU's share of the code into L2")
        a("s_getpc_b64 s[40:41]")
        a.lab("L_pc")
        a(f"s_sub_u32 s40, s40, L_pc-{NAME}_kernel"); a("s_subb_u32 s41, s41, 0")
        a("s_lshr_b32 s42, s2, 3"); a(f"s_lshl_b32 s42, s42, {7 + opt.ctouch}")
        a(f"v_and_b32 v1, {(1 << opt.ctouch) - 1}, v0"); a("v_lshlrev_b32 v1, 7, v1"); a("v_add_u32 v1, s42, v1")
        a(f"v_min_u32 v1, L_code_end-{NAME}_kernel-4, v1")
        a("global_load_dword v2, v1, s[40:41]")
        a("s_endpgm")
        a.lab("L_poller")
    elif not opt.w7: a(f"s_cmp_eq_u32 s{S_WAVE}, 6"); a("s_cbranch_scc1 L_end")
    a("s_waitcnt lgkmcnt(0)")
    tag_load()
    a("v_bfe_u32 v1, v0, 2, 3"); a("v_and_b32 v2, 3, v0"); a("v_lshlrev_b32 v2, 3, v2"); a("v_lshl_add_u32 v4, v1, 7, v2")
    a(f"s_lshl_b32 s43, s{S_GRP}, 10"); a(f"s_add_u32 s43, s43, {hex(PFLAG)}")
    a("s_waitcnt lgkmcnt(0)")
    tag_hash()
    a(f"v_mov_b32 v2, s{S_TAG}"); a(f"v_mov_b32 v3, s{S_TAG+1}")
    a(f"s_mov_b32 s44, 21")
    a.lab("L_pb"); a("s_barrier"); a("s_sub_u32 s44, s44, 1"); a("s_cmp_lg_u32 s44, 0"); a("s_cbranch_scc1 L_pb")
    a(f"s_mov_b32 s44, {opt.spin}")
    a.lab("L_ppoll")
    a(f"buffer_load_dwordx2 v[8:9], v4, {srd(SRD_WS)}, s43 offen sc1")
    a("s_sub_u32 s44, s44, 1"); a("s_cmp_eq_u32 s44, 0")
    a("s_waitcnt vmcnt(0)")
    a("s_cbranch_scc1 L_end")
    a("v_cmp_ne_u64 vcc, v[8:9], v[2:3]")
    a("s_cbranch_vccz L_end")
    a("s_sleep 2"); a("s_branch L_ppoll")
    a.lab("L_end")
    a("s_endpgm")

    a.lab("L_compute")
    mark = [len(a.L)]; rep = []
    def flush_passes():
        body = hazard_fix(auto_wait(a.L[mark[0]:]), report=rep)
        a.L = a.L[:mark[0]] + body
        mark[0] = len(a.L)
    a(f"s_load_dwordx2 s[{SRD_OUT}:{SRD_OUT+1}], s[0:1], 80"); mk(SRD_OUT, 0x200000)
    if opt.prio: a(f"s_setprio {opt.prio}")
    a(f"s_lshr_b32 s{S_WM}, s{S_WAVE}, 1"); a(f"s_and_b32 s{S_WN}, s{S_WAVE}, 1")
    a("v_and_b32 v1, 15, v0"); a("v_lshrrev_b32 v2, 4, v0")
    a("v_lshrrev_b32 v3, 1, v1"); a("v_xor_b32 v4, v3, v2"); a("v_lshlrev_b32 v4, 4, v4"); a("v_lshl_add_u32 v4, v1, 7, v4")
    a(f"s_lshl_b32 s43, s{S_WAVE}, 12"); a("s_xor_b32 s42, s43, 4096")
    a(f"v_add_u32 v{V_AR}, s42, v4"); a(f"v_add_u32 v{V_AR+1}, s43, v4")
    a(f"v_xor_b32 v{V_AR+2}, 64, v{V_AR}"); a(f"v_xor_b32 v{V_AR+3}, 64, v{V_AR+1}")
    a("v_lshrrev_b32 v5, 1, v2"); a("v_xor_b32 v5, v5, v3"); a("v_lshlrev_b32 v5, 4, v5"); a("v_lshl_add_u32 v5, v1, 7, v5")
    a("v_and_b32 v6, 1, v2"); a("v_lshl_add_u32 v5, v6, 3, v5")
    a(f"s_lshl_b32 s44, s{S_WN}, 14"); a(f"s_add_u32 s44, s44, {AUX}")
    a("s_add_u32 s42, s42, s44"); a("s_add_u32 s43, s43, s44")
    a(f"v_add_u32 v{V_T}, s42, v5"); a(f"v_add_u32 v{V_T+1}, s43, v5")
    for bb in range(2):
        for uz in range(1, 4): a(f"v_xor_b32 v{V_T+4+3*bb+uz-1}, {32*uz}, v{V_T+bb}")
    a("v_bfe_u32 v5, v0, 2, 2"); a("v_lshl_add_u32 v4, v2, 3, v5"); a("v_lshlrev_b32 v4, 8, v4")
    a("v_and_b32 v3, 3, v0"); a("v_lshl_add_u32 v4, v3, 3, v4"); a("v_add_u32 v4, 16384, v4")
    a("v_lshlrev_b32 v5, 1, v5"); a("v_or_b32 v5, v5, v6")
    a(f"s_lshl_b32 s40, s{S_WN}, 2")
    for b in range(4):
        a(f"s_add_u32 s41, s40, {b}"); a("v_xor_b32 v3, s41, v5"); a(f"v_lshl_add_u32 v{V_AW+b}, v3, 5, v4")
    a(f"s_lshr_b32 s52, s{S_KQ}, 1"); a("s_lshl_b32 s52, s52, 12")
    a(f"s_lshl_b32 s53, s{S_KQ}, 10"); a(f"s_add_u32 s53, s53, {AUX}")
    a("v_lshlrev_b32 v7, 4, v0"); a(f"v_mov_b32 v{V_Z}, 0")
    a(f"s_mov_b32 s{S_C}, 0x3e0293ee")
    a(f"s_lshl_b32 s40, s{S_WM}, 13"); a("s_add_u32 s40, s40, s44")
    a(f"v_add_u32 v{V_T+10}, s40, v7"); a(f"v_xor_b32 v{V_T+11}, 0x4000, v{V_T+10}")
    a(f"s_lshl_b32 s41, s{S_WAVE}, 11"); a("s_xor_b32 s42, s41, 2048")
    a(f"v_add_u32 v{V_T+2}, s42, v7"); a(f"v_add_u32 v{V_T+3}, s41, v7")
    a(f"v_add_u32 v{V_T+12}, {AUX}, v{V_T+3}")
    a("s_waitcnt lgkmcnt(0)")
    tag_load()
    a(f"s_lshl_b32 s40, s{S_GRP}, 3"); a(f"s_add_u32 s40, s40, s{S_HQ}")
    a(f"s_lshl_b32 s{S_PB}, s40, 13"); a(f"s_add_u32 s{S_PB}, s{S_PB}, {hex(PBUF)}")
    a("s_lshl_b32 s40, s40, 7"); a(f"s_lshl_b32 s41, s{S_WAVE}, 3"); a("s_add_u32 s40, s40, s41"); a(f"s_add_u32 s{S_FL}, s40, {hex(PFLAG)}")
    a("s_waitcnt lgkmcnt(0)")
    tag_hash()
    a(f"v_mov_b32 v{V_TAG}, s{S_TAG}"); a(f"v_mov_b32 v{V_TAG+1}, s{S_TAG+1}")
    a("s_barrier")
    stamp()

    def rel(n): return (slot(n) & 1) * SLOT
    def upd(n): return {0: None, 1: "0x10000", -1: "0xffff0000"}[(slot(n + 1) >> 1) - (slot(n) >> 1)]
    def rdR(n, s, aa): return f"ds_read_b128 {vr(V_R+4*aa,4)}, v{V_AR + 2*s + (aa >> 1)} offset:{rel(n) + (aa & 1)*2048}"
    def rdW(n, s, b, z): return f"ds_read_b64_tr_b16 {vr(V_W + 16*s + 4*b + 2*z, 2)}, v{V_AW+b} offset:{rel(n) + s*8192 + z*1024}"
    WPOS = {(0,0): (0,0), (0,1): (0,1), (0,2): (1,0), (1,0): (1,1), (1,1): (2,0), (1,2): (2,1), (2,0): (3,0), (2,1): (3,1)}
    WAITPOS = {(0,0), (0,1), (0,2), (0,3), (2,0), (3,0)}
    def acc(aa, b): return vr(V_ACC + 16*aa + 4*b, 4)
    def first_reads(n):
        for aa in range(4):
            for b in range(4):
                if (aa, b) in WPOS: a(rdW(n, 0, *WPOS[(aa, b)]))
                if b == 3: a(rdR(n, 0, aa))
    def item_gaps(n, zero, nxt, bar=True):
        G = []
        for s in range(2):
            tk, ts = (n, 1) if s == 0 else (nxt, 0)
            for aa in range(4):
                for b in range(4):
                    post = []
                    W = vr(V_W + 16*s + 4*b, 4); R = vr(V_R + 4*aa, 4)
                    C = "0" if (zero and s == 0) else acc(aa, b)
                    m = f"{MF} {acc(aa,b)}, {W}, {R}, {C}" if n < 16 else f"{MF} {acc(aa,b)}, {R}, {W}, {C}"
                    if opt.late and s == 1:
                        if aa == 0 and b == 3 and bar: post += ["s_waitcnt lgkmcnt(0)", "s_barrier"]
                        if tk is not None:
                            if (aa - 1, b) in WPOS: post.append(rdW(tk, ts, *WPOS[(aa - 1, b)]))
                            if b == 3: post.append(rdR(tk, ts, aa))
                    elif tk is not None:
                        if (aa, b) in WPOS: post.append(rdW(tk, ts, *WPOS[(aa, b)]))
                        if b == 3: post.append(rdR(tk, ts, aa))
                    u = upd(n) if nxt is not None else None
                    if u is not None:
                        if s == 0 and aa == 3 and b < 3: post.append(f"v_add_u32 v{V_AW+b}, {u}, v{V_AW+b}")
                        if s == 0 and aa == 2 and b == 2: post += [f"v_add_u32 v{V_AR}, {u}, v{V_AR}", f"v_add_u32 v{V_AR+1}, {u}, v{V_AR+1}"]
                        if s == 0 and aa == 3 and b == 2: post.append(f"v_add_u32 v{V_AW+3}, {u}, v{V_AW+3}")
                        if s == 1 and aa == (0 if opt.late else 3) and b < 2: post.append(f"v_add_u32 v{V_AR+2+b}, {u}, v{V_AR+2+b}")
                    if bar and s == 0 and aa == 3 and b == 3 and not opt.late: post.append("s_barrier")
                    G.append([1 if (aa, b) in WAITPOS else 0, m, post])
        return G
    def load_of(G, i): return len(G[i][2]) + (G[i+1][0] if i + 1 < len(G) else 0)
    def inject(G, start, opsl, cap=2, onelds=True):
        i = start
        for op in opsl:
            while i < len(G) and (load_of(G, i) >= cap or (onelds and op.startswith("ds_") and any(x.startswith("ds_") for x in G[i][2]))): i += 1
            if i >= len(G): G[-1][2].append(op); i = len(G) - 1; continue
            G[i][2].append(op)
        return i
    def emitG(G):
        for w, m, post in G:
            a(m)
            for x in post: a(x)
    kf = lambda bb, kt, u: V_KF + 16*bb + 8*kt + 4*u
    sp = lambda bb, kt, qt: V_SP + 16*bb + 8*kt + 4*qt
    kaddr = lambda bb, u, z: (V_T + bb) if (u == 0 and z == 0) else (V_T + 4 + 3*bb + 2*u + z - 1)
    kreads = [f"ds_read_b64 {vr(kf(bb,kt,u) + 2*z, 2)}, v{kaddr(bb,u,z)} offset:{kt*2048}" for bb in range(2) for kt in range(2) for u in range(2) for z in range(2)]
    qcvt = lambda aa: [f"v_cvt_pk_bf16_f32 v{V_BF+i}, v{V_ACC+2*i}, v{V_ACC+2*i+1}" for i in range(8*aa, 8*aa+8)]
    def smf(bb, Cin=None):
        r = []
        for u in range(2):
            for kt in range(2):
                for qt in range(2):
                    C = (("0" if Cin is None else vr(Cin + 8*kt + 4*qt, 4)) if u == 0 else vr(sp(bb,kt,qt), 4))
                    r.append(f"{MF} {vr(sp(bb,kt,qt),4)}, {vr(kf(bb,kt,u),4)}, {vr(V_BF + 8*(2*bb+qt) + 4*u, 4)}, {C}")
        return r
    first_reads(0)
    kpos = max(KAT) + 1 if not KD else max(max(KD) + 1, 12)
    for n in range(16):
        G = item_gaps(n, n == 0, n + 1 if n < 15 else None, bar=(n < 15))
        if n == kpos: inject(G, 0, kreads[:8])
        if n == kpos + 1: inject(G, 0, kreads[8:])
        if n == 15:
            u = upd(15)
            inject(G, 16, [f"v_add_u32 v{r}, {u}, v{r}" for r in list(range(V_AR, V_AR+4)) + list(range(V_AW, V_AW+4))] +
                   [f"v_xor_b32 v{r}, s52, v{r}" for r in range(V_AR, V_AR+4)] +
                   [f"v_xor_b32 v{V_T+4}, s53, v{V_T+2}", f"v_xor_b32 v{V_T+6}, s53, v{V_T+3}", f"v_xor_b32 v{V_T+5}, 0x400, v{V_T+4}", f"v_xor_b32 v{V_T+7}, 0x400, v{V_T+6}"])
            inject(G, 24, qcvt(0), cap=3); inject(G, 28, qcvt(1), cap=3)
        emitG(G)
    stamp()
    a.c("---- partial scores of the partner's batch")
    G = [[0, m, []] for m in smf(0)]
    inject(G, 0, qcvt(2) + qcvt(3))
    emitG(G)
    RXS = V_KF
    for j in range(4): a(f"ds_write_b128 v{V_T+10}, {vr(V_SP + 4*j, 4)} offset:{j*1024}")
    a(f"ds_write_b64 v{V_T+10}, {vr(V_TAG,2)} offset:4096")
    flush_passes()
    a(f"s_mov_b32 s44, {opt.spin}")
    a.lab("L_spoll")
    a(f"ds_read_b64 v[2:3], v{V_T+11} offset:4096")
    a("s_sub_u32 s44, s44, 1"); a("s_cmp_eq_u32 s44, 0")
    a("s_waitcnt lgkmcnt(0)")
    a("s_cbranch_scc1 L_sgo")
    a(f"v_cmp_ne_u64 vcc, v[2:3], {vr(V_TAG,2)}")
    a("s_cbranch_vccnz L_spoll")
    a.lab("L_sgo")
    mark[0] = len(a.L)
    for j in range(4): a(f"ds_read_b128 {vr(RXS + 4*j, 4)}, v{V_T+11} offset:{j*1024}")
    for m in smf(1, RXS): a(m)
    S = lambda kt, qt, i: f"v{sp(1,kt,qt) + i}"
    sm = []
    M = [1, 3]; T = [2, 4]
    for qt in range(2):
        m = f"v{M[qt]}"
        sm += [f"v_max3_f32 {m}, {S(0,qt,0)}, {S(0,qt,1)}, {S(0,qt,2)}", f"v_max3_f32 {m}, {m}, {S(0,qt,3)}, {S(1,qt,0)}",
               f"v_max3_f32 {m}, {m}, {S(1,qt,1)}, {S(1,qt,2)}", f"v_max_f32 {m}, {m}, {S(1,qt,3)}"]
    def xl(op):
        o = []
        for sw in ("v_permlane16_swap_b32", "v_permlane32_swap_b32"):
            o += ["v_mov_b32 v2, v1", "v_mov_b32 v4, v3", f"{sw} v1, v2", f"{sw} v3, v4", f"{op} v1, v1, v2", f"{op} v3, v3, v4"]
        return o
    sm += xl("v_max_f32")
    sm += [f"v_mul_f32 v1, s{S_C}, v1", f"v_mul_f32 v3, s{S_C}, v3"]
    idx8 = [(kt, i) for kt in range(2) for i in range(4)]
    for qt in range(2):
        for kt, i in idx8: sm.append(f"v_fma_f32 {S(kt,qt,i)}, {S(kt,qt,i)}, s{S_C}, -v{M[qt]}")
    for qt in range(2):
        for kt, i in idx8: sm.append(f"v_exp_f32 {S(kt,qt,i)}, {S(kt,qt,i)}")
    for qt in range(2):
        m = f"v{M[qt]}"; t = f"v{T[qt]}"
        sm += [f"v_add_f32 {m}, {S(0,qt,0)}, {S(0,qt,1)}", f"v_add_f32 {t}, {S(0,qt,2)}, {S(0,qt,3)}",
               f"v_add_f32 {m}, {m}, {S(1,qt,0)}", f"v_add_f32 {t}, {t}, {S(1,qt,1)}",
               f"v_add_f32 {m}, {m}, {S(1,qt,2)}", f"v_add_f32 {t}, {t}, {S(1,qt,3)}", f"v_add_f32 {m}, {m}, {t}"]
    sm += xl("v_add_f32")
    sm += ["v_rcp_f32 v1, v1", "v_rcp_f32 v3, v3"]
    for qt in range(2):
        for kt, i in idx8: sm.append(f"v_mul_f32 {S(kt,qt,i)}, {S(kt,qt,i)}, v{M[qt]}")
        for kt in range(2):
            for h in range(2): sm.append(f"v_cvt_pk_bf16_f32 v{V_P + 4*qt + 2*kt + h}, {S(kt,qt,2*h)}, {S(kt,qt,2*h+1)}")
        sm.append(f"buffer_store_dwordx4 {vr(V_P+4*qt,4)}, v{V_T+3}, {srd(SRD_WS)}, s{S_PB} offen offset:{qt*1024} sc1")
    pw = [f"ds_write_b128 v{V_T+12}, {vr(V_P+4*qt,4)} offset:{qt*1024}" for qt in range(2)]
    flag_ops = ["s_waitcnt vmcnt(0)", f"buffer_store_dwordx2 {vr(V_TAG,2)}, v{V_Z}, {srd(SRD_WS)}, s{S_FL} offen sc1"]
    if opt.smbar >= len(sm):
        for x in sm: a(x)
        if opt.flagpos < 0:
            for x in flag_ops: a(x)
        a("s_barrier")
        first_reads(16)
    else:
        for x in sm[:opt.smbar]: a(x)
        a("s_barrier")
        first_reads(16)
        for x in sm[opt.smbar:]: a(x)
    for x in pw: a(x)
    stamp()
    order = [(bb, nt) for bb in range(2) for nt in range(4)]
    bf = lambda bb, nt: V_BF + 16*bb + 4*nt
    out = lambda bb, qt, nt: V_OUT + 16*(2*bb + qt) + 4*nt
    def cvt_ops(bb, nt):
        t0 = V_ACC + 16*(2*bb) + 4*nt; t1 = V_ACC + 16*(2*bb+1) + 4*nt; d = bf(bb, nt)
        return [f"v_cvt_pk_bf16_f32 v{d}, v{t0}, v{t0+1}", f"v_cvt_pk_bf16_f32 v{d+1}, v{t0+2}, v{t0+3}",
                f"v_cvt_pk_bf16_f32 v{d+2}, v{t1}, v{t1+1}", f"v_cvt_pk_bf16_f32 v{d+3}, v{t1+2}, v{t1+3}"]
    def pv_m(bb, qt, nt, P, zero):
        o = vr(out(bb,qt,nt), 4)
        return f"{MF} {o}, {vr(bf(bb,nt),4)}, {vr(P + 8*bb + 4*qt, 4)}, {'0' if zero else o}"
    def readP(i, P): return [f"ds_read_b128 {vr(P + 8*bb + 4*qt, 4)}, v{V_T+4+2*bb+qt} offset:{(i % 4)*8192}" for bb in range(2) for qt in range(2)]
    PN = V_W
    def boundary(i):
        G = []; prev = []
        for bb, nt in order:
            G.append([0, pv_m(bb, 0, nt, V_P, i == 1), prev[2:]])
            prev = cvt_ops(bb, nt)
            G.append([0, pv_m(bb, 1, nt, V_P, i == 1), prev[:2]])
        G[-1][2] += prev[2:]
        return G
    pre = [f"s_lshl_b32 s40, s{S_CL}, 5", f"s_add_u32 s40, s40, s{S_IDX}", f"s_lshl_b32 s41, s{S_KQ}, 2", f"s_add_u32 s41, s41, s{S_WAVE}",
           "s_lshl_b32 s43, s41, 11", f"s_add_u32 s43, s43, {hex(XBUF)}"]
    for t in (1, 2, 3):
        pre += [f"s_xor_b32 s42, s{S_KQ}, {t}", "s_lshl_b32 s42, s42, 3", "s_add_u32 s42, s42, s40", f"s_lshl_b32 s{52+t}, s42, {11 if opt.ffl else 7}",
                "s_lshl_b32 s42, s42, 15", f"s_add_u32 s{44+t}, s42, s43"]
    pre += [f"s_lshl_b32 s43, s41, {7 if opt.ffl else 3}", f"s_add_u32 s43, s43, {hex(XFLAG)}"] + [f"s_add_u32 s{52+t}, s{52+t}, s43" for t in (1, 2, 3)]
    for i in range(8):
        nA, nB = 16 + 2*i, 17 + 2*i
        G = item_gaps(nA, True, nB) + item_gaps(nB, False, nB + 1 if i < 7 else None, bar=(i < 7))
        if i == 0:
            if opt.flagpos >= 0:
                fp = opt.flagpos
                if G[fp][2] and G[fp][2][-1] == "s_barrier": G[fp][2][-1:-1] = flag_ops
                else: G[fp][2].extend(flag_ops)
            cv = [x for bb, nt in order for x in cvt_ops(bb, nt)]
            inject(G, 58, cv[:16], cap=3); G[-1][2] += cv[16:]
        else:
            inject(G, 52 if opt.late else 48, readP(i - 1, V_P), cap=3, onelds=not opt.late or i == 7)
        if i == 7: inject(G, 56, readP(7, PN)); inject(G, 0, pre)
        emitG(G)
        if i: emitG(boundary(i))
        if opt.hstamps: stamp()
    def send(t):
        d = V_ACC + 8*t
        o = [f"v_cvt_pk_bf16_f32 v{d+j}, v{V_OUT+16*t+2*j}, v{V_OUT+16*t+2*j+1}" for j in range(8)]
        st = [f"buffer_store_dwordx4 {vr(d + 4*g, 4)}, v7, {srd(SRD_WS)}, s{44+t} offen offset:{g*1024} {opt.xflags}" for g in range(2)]
        return o[:4] + st[:1] + o[4:] + st[1:]
    G = [[0, pv_m(t >> 1, t & 1, nt, PN, False), []] for t in (1, 2, 3, 0) for nt in range(4)]
    inject(G, 6, send(1) + send(2) + send(3), cap=3)
    emitG(G)
    stamp()
    a(f"s_lshl_b32 s42, s{S_KQ}, 3"); a("s_add_u32 s42, s42, s40")
    a(f"s_lshl_b32 s56, s42, {11 if opt.ffl else 7}"); a(f"s_lshl_b32 s43, s{S_WAVE}, {7 if opt.ffl else 3}"); a("s_add_u32 s56, s56, s43"); a(f"s_add_u32 s56, s56, {hex(XFLAG)}")
    a("v_and_b32 v3, 3, v0"); a("v_min_u32 v3, 2, v3"); a(f"v_add_u32 v3, s{S_KQ}, v3"); a("v_add_u32 v3, 1, v3"); a("v_and_b32 v3, 3, v3"); a(f"v_lshlrev_b32 v3, {9 if opt.ffl else 5}, v3")
    if opt.ffl:
        for r in range(4): a(f"v_mov_b32 v{V_T+4+1+r}, v{V_TAG + (r & 1)}")
    a("s_lshl_b32 s42, s42, 15"); a(f"s_lshl_b32 s43, s{S_WAVE}, 11"); a("s_add_u32 s42, s42, s43"); a(f"s_add_u32 s42, s42, {hex(XBUF)}")
    for j in range(3):
        a(f"s_add_u32 s43, s{S_KQ}, {j+1}"); a("s_and_b32 s43, s43, 3"); a("s_lshl_b32 s43, s43, 13"); a(f"s_add_u32 s{58+j}, s43, s42")
    a("v_lshrrev_b32 v4, 3, v0"); a("v_lshlrev_b32 v4, 12, v4"); a("v_and_b32 v5, 7, v0"); a("v_lshl_add_u32 v4, v5, 4, v4")
    a(f"s_lshr_b32 s41, s{S_KQ}, 1"); a(f"s_xor_b32 s41, s41, s{S_WAVE}"); a("s_xor_b32 s41, s41, 1"); a("s_lshl_b32 s41, s41, 17")
    a(f"s_lshl_b32 s40, s{S_RB}, 19"); a("s_add_u32 s40, s40, s41")
    a(f"s_and_b32 s41, s{S_KQ}, 1"); a("s_lshl_b32 s41, s41, 16"); a("s_add_u32 s40, s40, s41")
    a(f"s_lshl_b32 s41, s{S_BR}, 11"); a("s_add_u32 s40, s40, s41")
    a(f"s_mul_i32 s41, s{S_WN}, {opt.wox}"); a(f"s_xor_b32 s41, s41, s{S_IDX}"); a("s_lshl_b32 s41, s41, 8"); a("s_add_u32 s40, s40, s41")
    a(f"s_lshl_b32 s41, s{S_WN}, 7"); a("s_add_u32 s40, s40, s41")
    a("s_add_u32 s41, s40, 0x8000")
    a(f"s_lshl_b32 s42, s{S_WAVE}, 11"); a(f"s_add_u32 s42, s42, {SLOT}")
    a("v_and_b32 v1, 15, v0"); a("v_lshrrev_b32 v2, 5, v0"); a("v_xor_b32 v2, v2, v5"); a("v_lshlrev_b32 v2, 4, v2")
    a("v_lshl_add_u32 v1, v1, 7, v2"); a("v_bfe_u32 v2, v0, 4, 1"); a("v_lshl_add_u32 v1, v2, 3, v1"); a("v_add_u32 v1, s42, v1")
    for nt in range(1, 4): a(f"v_xor_b32 v{12+nt}, {32*nt}, v1")
    a("v_lshrrev_b32 v2, 3, v0"); a("v_xor_b32 v5, v5, v2"); a("v_lshlrev_b32 v5, 4, v5"); a("v_lshl_add_u32 v2, v2, 7, v5"); a("v_add_u32 v2, s42, v2")
    a(f"s_mov_b32 s44, {opt.spin}")
    for t in (1, 2, 3):
        if opt.ffl and t == 1: a("s_mov_b64 exec, 0xff")
        a(f"s_waitcnt vmcnt({2*(3-t) + (t-1)})")
        if opt.ffl: a(f"buffer_store_dwordx4 {vr(V_T+5,4)}, v7, {srd(SRD_WS)}, s{52+t} offen sc1")
        else: a(f"buffer_store_dwordx2 {vr(V_TAG,2)}, v{V_Z}, {srd(SRD_WS)}, s{52+t} offen sc1")
        if opt.ffl and t == 3: a("s_mov_b64 exec, -1")
    flush_passes()
    if opt.verbose:
        for r in rep: print("pad", r)
    RX = V_BF
    if opt.xprog:
        a("s_mov_b32 s57, 7")
        a.lab("L_xpoll")
        a(f"buffer_load_dwordx2 v[8:9], v3, {srd(SRD_WS)}, s56 offen sc1")
        a("s_sub_u32 s44, s44, 1"); a("s_cmp_eq_u32 s44, 0"); a("s_cselect_b32 s43, 0, 7")
        a("s_waitcnt vmcnt(0)")
        a(f"v_cmp_ne_u64 vcc, v[8:9], {vr(V_TAG,2)}")
        a("s_and_b32 s43, s43, vcc_lo")
        a("s_andn2_b32 s42, s57, s43"); a("s_mov_b32 s57, s43")
        for j in range(3):
            a(f"s_bitcmp1_b32 s42, {j}"); a(f"s_cbranch_scc0 L_xs{j}")
            for g in range(2): a(f"buffer_load_dwordx4 {vr(RX + 8*j + 4*g, 4)}, v7, {srd(SRD_WS)}, s{58+j} offen offset:{g*1024} sc1")
            a.lab(f"L_xs{j}")
        a("s_cmp_lg_u32 s57, 0"); a("s_cbranch_scc1 L_xpoll")
        stamp()
        a("s_waitcnt vmcnt(0)")
    else:
        a.lab("L_xpoll")
        a(f"buffer_load_dwordx2 v[8:9], v3, {srd(SRD_WS)}, s56 offen sc1")
        a("s_sub_u32 s44, s44, 1"); a("s_cmp_eq_u32 s44, 0")
        a("s_waitcnt vmcnt(0)")
        a("s_cbranch_scc1 L_xrd")
        a(f"v_cmp_ne_u64 vcc, v[8:9], {vr(V_TAG,2)}")
        a("s_cbranch_vccnz L_xpoll")
        a.lab("L_xrd")
        stamp()
        for j in range(3):
            for g in range(2): a(f"buffer_load_dwordx4 {vr(RX + 8*j + 4*g, 4)}, v7, {srd(SRD_WS)}, s{58+j} offen offset:{g*1024} sc1")
    for j in range(3):
        a(f"s_waitcnt vmcnt({4 - 2*j})")
        for i in range(8):
            r = RX + 8*j + i
            a(f"v_lshlrev_b32 v5, 16, v{r}"); a(f"v_and_b32 v6, 0xffff0000, v{r}")
            a(f"v_add_f32 v{V_OUT+2*i}, v{V_OUT+2*i}, v5"); a(f"v_add_f32 v{V_OUT+2*i+1}, v{V_OUT+2*i+1}, v6")
    for i in range(8): a(f"v_cvt_pk_bf16_f32 v{V_R+i}, v{V_OUT+2*i}, v{V_OUT+2*i+1}")
    for nt in range(4): a(f"ds_write_b64 v{12+nt if nt else 1}, {vr(V_R+2*nt,2)}")
    a(f"ds_read_b128 {vr(V_R+8,4)}, v2"); a(f"ds_read_b128 {vr(V_R+12,4)}, v2 offset:1024")
    a("s_waitcnt lgkmcnt(1)")
    a(f"buffer_store_dwordx4 {vr(V_R+8,4)}, v4, {srd(SRD_OUT)}, s40 offen {opt.outflags}")
    a("s_waitcnt lgkmcnt(0)")
    a(f"buffer_store_dwordx4 {vr(V_R+12,4)}, v4, {srd(SRD_OUT)}, s41 offen {opt.outflags}")
    a(f"s_or_b32 s40, s{S_KQ}, s{S_IDX}"); a(f"s_or_b32 s40, s40, s{S_WAVE}"); a("s_cmp_lg_u32 s40, 0"); a("s_cbranch_scc1 L_noep")
    a(f"s_lshl_b32 s40, s{S_CL}, 7")
    a(f"buffer_store_dwordx2 {vr(V_TAG,2)}, v{V_Z}, {srd(SRD_WS)}, s40 offen {opt.outflags}")
    a.lab("L_noep")
    if opt.fixdur:
        a.lab("L_fix")
        a("s_memrealtime s[92:93]"); a("s_waitcnt lgkmcnt(0)"); a("s_sub_u32 s92, s92, s98")
        a(f"s_cmp_lt_u32 s92, {opt.fixdur}"); a("s_cbranch_scc1 L_fix")
    if opt.stamps:
        a("s_waitcnt vmcnt(0)")
        stamp()
        a(f"s_cmp_lg_u32 s{S_WAVE}, 0"); a("s_cbranch_scc1 L_end2")
        a("s_waitcnt lgkmcnt(0)")
        n = nst[0]
        a(f"s_mul_i32 s40, s2, {n*8}"); a("s_add_u32 s40, s40, 0x8000000")
        a(f"s_add_u32 s42, s{SRD_WS}, s40"); a(f"s_addc_u32 s43, s{SRD_WS+1}, 0")
        for i in range(n):
            a(f"v_mov_b32 v8, s{S_ST+2*i}"); a(f"v_mov_b32 v9, s{S_ST+2*i+1}")
            a(f"global_store_dwordx2 v{V_Z}, v[8:9], s[42:43] offset:{i*8}"); a("s_nop 1")
        a.lab("L_end2")
    a("s_endpgm")
    a.lab("L_code_end")
    tail = ['.section .rodata,"a"', ".p2align 6", f".amdhsa_kernel {NAME}_kernel"]
    tail += ["  .amdhsa_" + l for l in ("next_free_vgpr 256", "next_free_sgpr 102", "accum_offset 256", "group_segment_fixed_size 0", "kernarg_size 104",
              "user_sgpr_count 2", "user_sgpr_kernarg_segment_ptr 1", "system_sgpr_workgroup_id_x 1")]
    tail += [".end_amdhsa_kernel"]
    txt = "\n".join(head + [(x if x.endswith(":") else "    " + x) for x in a.L] + tail) + "\n"
    return txt, nst[0], rep

def parse(argv):
    ap = argparse.ArgumentParser()
    ap.add_argument("-o", default="cdna_kernels/" + NAME + ".s")
    for f in ("stamps", "cyc", "lstamps", "nodma", "nomfma", "samek", "hstamps", "verbose", "pairs"): ap.add_argument("--" + f, action="store_true")
    ap.add_argument("--prio", type=int, default=0)
    ap.add_argument("--spin", type=int, default=100000)
    ap.add_argument("--fixdur", type=int, default=0)
    ap.add_argument("--q0", type=int, default=2)
    ap.add_argument("--p1", type=int, default=4)
    ap.add_argument("--p2", default="6,8")
    ap.add_argument("--p3", type=int, default=12)
    ap.add_argument("--pm", default="2,3,4,3")
    ap.add_argument("--kat", default="")
    ap.add_argument("--wox", type=int, default=3)
    ap.add_argument("--smbar", type=int, default=200)
    ap.add_argument("--flagpos", type=int, default=8)
    ap.add_argument("--outflags", default="sc1")
    ap.add_argument("--pflags", default="sc1")
    ap.add_argument("--plate", type=int, default=1)
    ap.add_argument("--pix", type=int, default=1)
    ap.add_argument("--kd", default="")
    ap.add_argument("--lprio", type=int, default=0)
    ap.add_argument("--ctouch", type=int, default=0)
    ap.add_argument("--wpair", type=int, default=0)
    ap.add_argument("--ffl", type=int, default=1)
    ap.add_argument("--tlb", type=int, default=0)
    ap.add_argument("--kflags", default="")
    ap.add_argument("--ntw", default="")
    ap.add_argument("--ntr", default="")
    ap.add_argument("--xflags", default="sc1")
    ap.add_argument("--late", type=int, default=1)
    ap.add_argument("--q1", type=int, default=4)
    ap.add_argument("--q2", type=int, default=4)
    ap.add_argument("--w7", type=int, default=0)
    ap.add_argument("--xprog", type=int, default=0)
    ap.add_argument("--kdkey", type=int, default=0)
    return ap.parse_args(argv)

if __name__ == "__main__":
    opt = parse(sys.argv[1:])
    t, n, rep = gen(opt)
    open(opt.o, "w").write(t)
    print("wrote", opt.o, "stamps", n, "lines", t.count("\n"), "pads", len(rep))
```

```python
import sys, argparse
from passes import auto_wait, hazard_fix
NAME = "concat_heads__mha_block_cached__mha_block_cached__near_ridge"

class Asm:
    def __init__(self): self.L = []; self.drop = []
    def __call__(self, s):
        for pat in self.drop:
            if pat in s: return
        self.L.append(s)
    def lab(self, s): self.L.append(s + ":")
    def c(self, s): self.L.append("; " + s)

PFLAG = 0x4000; XFLAG = 0x10000; PBUF = 0x100000; XBUF = 0x400000; WS_REC = 0x1400000
SLOT = 32768; AUX = 4 * SLOT
S_BR, S_KQ, S_RB, S_IDX, S_WAVE = 3, 4, 5, 6, 7
SRD_X, SRD_K, SRD_V, SRD_WQ, SRD_WO, SRD_WS, SRD_OUT = 8, 12, 16, 20, 24, 28, 32
S_TAG = 36; S_CL = 38; S_HQ = 39
S_C = 50; S_PB = 49; S_OFFR = 47; S_OFFW = 48; S_W = 45; S_HT = 46
S_WM, S_WN = 56, 57; S_FL = 60; S_GRP = 61
S_ST = 62
def srd(b): return f"s[{b}:{b+3}]"
def vr(b, n): return f"v[{b}:{b+n-1}]"
V_AR = 8; V_AW = 12; V_R = 16; V_W = 32; V_BF = 64; V_P = 96; V_TAG = 112; V_Z = 114; V_T = 115
V_ACC = 128; V_OUT = 192; V_KF = 192; V_SP = 224
MF = "v_mfma_f32_16x16x32_bf16"
NI = 32
def slot(n): return n % 4

def gen(opt):
    a = Asm()
    if opt.nodma: a.drop.append(" lds")
    if opt.nomfma: a.drop += ["v_mfma"]
    head = ["; Fused double MHA block: Q-proj + scores + softmax | V*Wo + P*(V*Wo) | split-K reduce-scatter (gfx950)",
            f"; @launch grid=(256,1,1) block=({448 if opt.w7 else 512},1,1) lds={SLOT*5}",
            '.amdgcn_target "amdgcn-amd-amdhsa--gfx950"', ".text", f".globl {NAME}_kernel", ".p2align 8", f".type {NAME}_kernel,@function"]
    a.lab(f"{NAME}_kernel")
    nst = [0]
    def stamp_s():
        if not opt.stamps or nst[0] >= 18: return None
        r = S_ST + 2 * nst[0]; nst[0] += 1
        return f"{'s_memtime' if opt.cyc else 's_memrealtime'} s[{r}:{r+1}]"
    def stamp():
        if opt.pairs and opt.stamps:
            opt.cyc = False; a(stamp_s()); opt.cyc = True; a(stamp_s()); return
        s = stamp_s()
        if s: a(s)
    stamp()
    if opt.fixdur or opt.lstamps: a("s_memrealtime s[98:99]")
    a(f"s_bfe_u32 s{S_BR}, s2, 0x10002")
    a(f"s_mul_i32 s41, s{S_BR}, 40")
    a("s_add_u32 s42, s0, s41"); a("s_addc_u32 s43, s1, 0")
    a("s_cmp_ge_u32 s2, 256"); a("s_cbranch_scc1 L_end")
    a(f"s_load_dwordx2 s[{SRD_WQ}:{SRD_WQ+1}], s[42:43], 24")
    a(f"s_load_dwordx2 s[{SRD_X}:{SRD_X+1}], s[42:43], 0")
    a("v_lshrrev_b32 v1, 6, v0"); a("v_and_b32 v0, 63, v0")
    a(f"s_load_dwordx2 s[{SRD_WS}:{SRD_WS+1}], s[0:1], 96")
    a(f"v_readfirstlane_b32 s{S_WAVE}, v1")
    a(f"s_and_b32 s{S_KQ}, s2, 3"); a(f"s_lshr_b32 s{S_RB}, s2, 6"); a(f"s_bfe_u32 s{S_IDX}, s2, 0x30003")
    a(f"s_lshl_b32 s{S_HQ}, s{S_RB}, 1"); a(f"s_add_u32 s{S_HQ}, s{S_HQ}, s{S_IDX}"); a(f"s_and_b32 s{S_HQ}, s{S_HQ}, 7")
    a(f"s_sub_u32 s40, s{S_WAVE}, 4"); a("s_cmp_ge_u32 s40, 2"); a("s_cbranch_scc1 L_other")
    def mk(b, n): a(f"s_mov_b32 s{b+2}, {hex(n)}"); a(f"s_mov_b32 s{b+3}, 0x20000")
    def ids():
        a(f"s_lshl_b32 s{S_CL}, s{S_BR}, 2"); a(f"s_add_u32 s{S_CL}, s{S_CL}, s{S_RB}")
        a(f"s_lshl_b32 s{S_GRP}, s{S_CL}, 2"); a(f"s_add_u32 s{S_GRP}, s{S_GRP}, s{S_KQ}")
    def tag_hash():
        a(f"s_mul_i32 s{S_TAG}, s{S_TAG}, 0x9e3779b1"); a(f"s_add_u32 s{S_TAG}, s{S_TAG}, 0x7f4a7c15")
        a(f"s_mul_i32 s{S_TAG+1}, s{S_TAG+1}, 0x85ebca6b"); a(f"s_add_u32 s{S_TAG+1}, s{S_TAG+1}, 0xc2b2ae35")
    def tag_load():
        a(f"s_lshl_b32 s40, s{S_CL}, 7"); a(f"s_load_dwordx2 s[{S_TAG}:{S_TAG+1}], s[{SRD_WS}:{SRD_WS+1}], s40")

    a.c("---- loader waves")
    if opt.lprio: a(f"s_setprio {opt.lprio}")
    mk(SRD_WQ, 0x800000); mk(SRD_X, 0x100000)
    a("v_lshrrev_b32 v3, 4, v0"); a("v_and_b32 v2, 15, v0")
    a("v_lshlrev_b32 v4, 2, v3"); a("v_xor_b32 v2, v2, v4"); a("v_lshlrev_b32 v2, 4, v2"); a("v_xor_b32 v5, 32, v2")
    a("s_lshl_b32 s41, s40, 2"); a("v_add_u32 v6, s41, v3")
    a("v_lshl_add_u32 v12, v6, 13, v2"); a("v_lshl_add_u32 v13, v6, 13, v5")
    a(f"s_lshl_b32 s{S_W}, s40, 10")
    a(f"s_lshl_b32 s50, s{S_RB}, 2"); a(f"s_xor_b32 s51, s{S_HQ}, {opt.pix}"); a("s_lshl_b32 s51, s51, 1"); a("s_add_u32 s50, s50, s51")
    a(f"s_lshl_b32 s51, s{S_KQ}, 3"); a(f"s_add_u32 s51, s51, s{S_HQ}"); a("s_lshl_b32 s53, s51, 8")
    a("s_and_b32 s54, s50, 15"); a("s_lshl_b32 s55, s54, 19"); a(f"s_add_u32 s{S_OFFW}, s53, s55")
    a(f"s_lshl_b32 s52, s{S_RB}, 18"); a("s_lshl_b32 s55, s54, 7"); a(f"s_add_u32 s{S_OFFR}, s52, s55")
    a("v_lshrrev_b32 v1, 3, v0"); a("v_and_b32 v7, 7, v0"); a("v_xor_b32 v7, v7, v6"); a("v_lshlrev_b32 v7, 4, v7")
    a("s_lshl_b32 s41, s40, 3"); a("v_add_u32 v1, s41, v1"); a("v_lshl_add_u32 v10, v1, 11, v7")
    if opt.lstamps: a("s_memrealtime s[92:93]")
    def lst():
        if opt.lstamps:
            a("s_memrealtime s[92:93]"); a("s_waitcnt lgkmcnt(0)"); a("s_mov_b32 m0, s94"); a("v_writelane_b32 v30, s92, m0"); a("s_add_u32 s94, s94, 1")
    issued = []
    def dma(tg, vo, sr, sbase, lit, ldsoff, fl=""):
        a(f"s_add_u32 m0, s{S_W}, {ldsoff}")
        a(f"s_add_u32 s41, s{sbase}, {hex(lit)}")
        a(f"buffer_load_dwordx4 v{vo}, {srd(sr)}, s41 offen {fl or opt.dmaflags} lds")
        issued.append(tg)
    def prep(n):
        if n < 16:
            a(f"s_bfe_u32 s54, s{42 + (n >> 3)}, {hex(4*(n & 7) | (4 << 16))}")
            a("s_add_u32 s54, s54, s50"); a("s_and_b32 s54, s54, 15")
            if opt.samek: a("s_and_b32 s54, s54, 1")
            a(f"s_lshl_b32 s55, s54, 7"); a(f"s_add_u32 s{S_OFFR}, s52, s55")
            a(f"s_lshl_b32 s55, s54, 19"); a(f"s_add_u32 s{S_OFFW}, s53, s55")
        elif n % 2 == 0:
            a(f"s_bfe_u32 s54, s{S_HT}, {hex(4*((n - 16) >> 1) | (4 << 16))}")
            if opt.samek: a("s_mov_b32 s54, 0")
            a("s_lshl_b32 s55, s54, 13"); a(f"s_add_u32 s{S_OFFR}, s58, s55")
            a("s_lshl_b32 s55, s54, 18"); a(f"s_add_u32 s{S_OFFW}, s59, s55")
    KAT = tuple(map(int, opt.kat.split(","))) if opt.kat else (opt.p1, opt.p3)
    if opt.kd: KAT = (-1, -1)
    NTW = set(map(int, opt.ntw.split(","))) if opt.ntw else set()
    NTR = set(map(int, opt.ntr.split(","))) if opt.ntr else set()
    def item_ops(n):
        so = slot(n) * SLOT; c2 = n & 1
        if n < 16:
            W = [(n, 12 + (m & 1), SRD_WQ, S_OFFW, m*8*8192, so + 16384 + m*2048) for m in range(8)]
            R = [(n, 10, SRD_X, S_OFFR, m*16*2048, so + m*2048) for m in range(8)]
        else:
            W = [(n, 14 + (m & 1), SRD_WO, S_OFFW, m*8*2048 + c2*64*2048, so + 16384 + m*2048) for m in range(8)]
            R = [(n, 11, SRD_V, S_OFFR, (m//2)*262144 + (m % 2)*4096 + c2*128, so + m*2048) for m in range(8)]
        if n in NTW: W = [w + ("nt",) for w in W]
        if n in NTR: R = [r + ("nt",) for r in R]
        X = []
        for c, kk in enumerate(KAT):
            if kk == n: X += [(n, 11, SRD_K, 57, (m//2)*262144 + (m % 2)*4096 + h*128, AUX + h*16384 + m*2048, opt.kflags) for m in range(4*c, 4*c+4) for h in range(2)]
        return W + X + R
    def touchV(n):
        for hf in range(2):
            a(f"s_lshl_b32 s55, s{S_HQ}, 13"); a("s_add_u32 s41, s58, s55"); a(f"s_add_u32 s41, s41, {hf*2*262144}")
            a(f"buffer_load_dword v20, v17, {srd(SRD_V)}, s41 offen"); issued.append(("t", n))
    def touchW(n):
        for hf in range(2):
            a(f"s_lshl_b32 s55, s{S_HQ}, 18"); a("s_add_u32 s41, s59, s55"); a(f"s_add_u32 s41, s41, {hf*64*2048}")
            a(f"buffer_load_dword v20, v18, {srd(SRD_WO)}, s41 offen"); issued.append(("t", n))
    def pdma(i):
        a(f"s_bfe_u32 s60, s{S_HT}, {hex(4*i | (4 << 16))}"); a("s_lshl_b32 s60, s60, 13"); a(f"s_add_u32 s60, s60, s{S_PB}")
        for m in range(4): dma(f"P{i}", 16, SRD_WS, 60, m*2048, AUX + (i % 4)*8192 + m*2048, opt.pflags)
    def bar(need):
        last = max(i for i, t in enumerate(issued) if t in need)
        a(f"s_waitcnt vmcnt({len(issued) - 1 - last})")
        lst(); a("s_barrier")
    a("s_waitcnt lgkmcnt(0)")
    if opt.lstamps:
        a("v_mov_b32 v30, 0"); a("s_mov_b32 s94, 3")
        a("v_writelane_b32 v30, s98, 0"); a("v_writelane_b32 v30, s92, 1")
        a("s_memrealtime s[92:93]"); a("s_waitcnt lgkmcnt(0)"); a("v_writelane_b32 v30, s92, 2")
    for o in item_ops(0): dma(*o)
    for b, o in ((SRD_K, 8), (SRD_V, 16), (SRD_WO, 32)): a(f"s_load_dwordx2 s[{b}:{b+1}], s[42:43], {o}")
    mk(SRD_K, 0x400000); mk(SRD_V, 0x400000); mk(SRD_WO, 0x800000); mk(SRD_WS, WS_REC)
    ids()
    a("v_lshl_add_u32 v11, v1, 8, v7")
    a("v_lshl_add_u32 v14, v6, 11, v2"); a("v_lshl_add_u32 v15, v6, 11, v5")
    a(f"s_xor_b32 s44, s{S_IDX}, {opt.wox}"); a(f"s_sub_u32 s44, s44, s{S_IDX}"); a("s_lshl_b32 s44, s44, 8")
    a("v_bfe_u32 v6, v2, 7, 1"); a("v_mul_lo_u32 v6, v6, s44"); a(f"s_lshl_b32 s44, s{S_IDX}, 8"); a("v_add_u32 v6, s44, v6")
    a("v_add_u32 v14, v14, v6"); a("v_add_u32 v15, v15, v6")
    a("v_lshlrev_b32 v16, 4, v0"); a(f"v_add_u32 v16, s{S_W}, v16")
    if opt.vt >= 0 or opt.wt >= 0:
        a(f"s_lshl_b32 s41, s{S_W}, 8"); a("v_lshlrev_b32 v17, 7, v0"); a("v_add_u32 v17, s41, v17")
        a("v_lshrrev_b32 v18, 1, v0"); a("v_lshlrev_b32 v18, 11, v18"); a(f"s_lshl_b32 s41, s{S_W}, 6"); a("v_add_u32 v18, s41, v18")
        a(f"s_xor_b32 s41, s{S_IDX}, {opt.wox}"); a(f"s_sub_u32 s41, s41, s{S_IDX}"); a("s_lshl_b32 s41, s41, 8"); a("s_add_u32 s41, s41, 128")
        a("v_and_b32 v19, 1, v0"); a("v_mul_lo_u32 v19, v19, s41"); a("v_add_u32 v18, v18, v19"); a("v_add_u32 v18, s44, v18")
    a(f"s_lshl_b32 s56, s{S_RB}, 20"); a("s_lshl_b32 s41, s51, 13"); a("s_add_u32 s57, s56, s41")
    a(f"s_lshl_b32 s41, s{S_KQ}, 16"); a("s_add_u32 s58, s56, s41")
    a(f"s_lshl_b32 s59, s{S_KQ}, 21")
    a(f"s_lshl_b32 s{S_PB}, s{S_GRP}, 16"); a(f"s_add_u32 s{S_PB}, s{S_PB}, {hex(PBUF)}")
    PMS = list(map(int, opt.pm.split(",")))
    def h_table(pm):
        seq = []; r = [2, 4, 6, 3, 5, 7]
        for i in range(8): seq.append(0 if i == 0 else 1 if i == pm else r.pop(0))
        return seq
    ht = [sum(x << (4*i) for i, x in enumerate(h_table(pm))) for pm in PMS]
    a(f"s_mov_b32 s{S_HT}, {hex(ht[0])}")
    for w in range(1, len(PMS)):
        a(f"s_and_b32 s41, s{S_IDX}, {len(PMS)-1}"); a(f"s_cmp_eq_u32 s41, {w}"); a(f"s_cselect_b32 s{S_HT}, {hex(ht[w])}, s{S_HT}")
    a(f"s_mul_i32 s41, s{S_HQ}, 0x11111111"); a(f"s_add_u32 s{S_HT}, s{S_HT}, s41"); a(f"s_and_b32 s{S_HT}, s{S_HT}, 0x77777777")
    def p1_table(p1, p2, p3):
        seq = [None] * 16; Ms = {0: 0, p1: 2, p2: 1, p3: 3}; avail = []
        for n in range(16):
            if n in Ms: seq[n] = Ms[n]; avail += [(n + 1, Ms[n] + 4*j) for j in (1, 2, 3)]
            else:
                t, c = avail.pop(0); assert t <= n; seq[n] = c
        return seq
    pack = lambda seq: sum((x & 15) << (4*i) for i, x in enumerate(seq))
    P2S = list(map(int, opt.p2.split(",")))
    tabs = [pack(p1_table(opt.p1, p2, opt.p3)) for p2 in P2S]
    a("s_waitcnt lgkmcnt(0)")
    a(f"s_mov_b32 s42, {hex(tabs[0] & 0xffffffff)}"); a(f"s_mov_b32 s43, {hex(tabs[0] >> 32)}")
    for u in range(1, len(P2S)):
        a(f"s_and_b32 s41, s2, {len(P2S)-1}"); a(f"s_cmp_eq_u32 s41, {u}")
        a(f"s_cselect_b32 s42, {hex(tabs[u] & 0xffffffff)}, s42"); a(f"s_cselect_b32 s43, {hex(tabs[u] >> 32)}, s43")
    prep(1)
    for o in item_ops(1): dma(*o)
    PAT = {20: [1], 21: [2, 3], 23: [4], 25: [5], 27: [6, 7]}
    PNEED = {21: "P1", 23: "P2", 25: "P3", 27: "P4", 29: "P5"}
    KD = list(map(int, opt.kd.split(","))) if opt.kd else []
    if KD: a(f"s_and_b32 s62, s{S_IDX if opt.kdkey == 0 else S_HQ}, {len(KD)-1}")
    kops = [("K", 11, SRD_K, 57, (m//2)*262144 + (m % 2)*4096 + h*128, AUX + h*16384 + m*2048, opt.kflags) for m in range(8) for h in range(2)]
    for n in range(2, NI):
        prep(n)
        L = item_ops(n); q = opt.q0 if n < 4 else ((opt.q1 if n <= 18 else opt.q2) if opt.late else 0)
        if opt.wpair and n >= 18:
            if n % 2 == 0: L = L[:8] + item_ops(n + 1)[:8] + L[8:]
            else: L = L[8:]; q = 0
        for o in L[:q]: dma(*o)
        k = n - 3
        mask = sum(1 << t for t, c in enumerate(KD) if c in (n - 1, n - 2))
        if mask:
            last = max(i for i, t in enumerate(issued) if t == n - 2); N = len(issued) - 1 - last
            a(f"s_mov_b32 s63, {mask}"); a("s_bitcmp1_b32 s63, s62"); a(f"s_cbranch_scc1 L_kw{n}")
            a(f"s_waitcnt vmcnt({N})"); a.lab(f"L_kw{n}"); a(f"s_waitcnt vmcnt({N + 16})"); lst(); a("s_barrier")
        else:
            bar({n - 2, PNEED.get(k)})
        if not opt.plate or k == 20:
            for i in PAT.get(k, []): pdma(i)
        for o in L[q:]: dma(*o)
        if opt.plate and k != 20:
            for i in PAT.get(k, []): pdma(i)
        if n == opt.vt: touchV(n)
        if n == opt.wt: touchW(n)
        mask = sum(1 << t for t, c in enumerate(KD) if c == n)
        if mask:
            a(f"s_mov_b32 s63, {mask}"); a("s_bitcmp1_b32 s63, s62"); a(f"s_cbranch_scc0 L_kn{n}")
            for o in kops: dma(*o)
            del issued[-16:]
            a.lab(f"L_kn{n}")
    bar({NI - 2, "P5"}); bar({NI - 1, "P6", "P7"})
    if opt.lstamps:
        a(f"s_cmp_lg_u32 s{S_WAVE}, 4"); a("s_cbranch_scc1 L_end")
        a("s_mul_i32 s40, s2, 512"); a("s_add_u32 s40, s40, 0x8000000")
        a(f"s_add_u32 s42, s{SRD_WS}, s40"); a(f"s_addc_u32 s43, s{SRD_WS+1}, 0")
        a("v_lshlrev_b32 v1, 3, v0"); a("v_mov_b32 v31, 0")
        a("global_store_dwordx2 v1, v[30:31], s[42:43]")
    a("s_endpgm")

    a.lab("L_other")
    mk(SRD_WS, WS_REC); ids()
    a(f"s_cmp_lt_u32 s{S_WAVE}, 4"); a("s_cbranch_scc1 L_compute")
    if opt.tlb:
        a(f"s_cmp_lg_u32 s{S_WAVE}, 6"); a("s_cbranch_scc1 L_poller")
        a.c("---- wave 6: touch one word of every 2 MB region used later (address translation warm-up)")
        a("s_load_dwordx4 s[12:15], s[42:43], 8"); a("s_load_dwordx2 s[16:17], s[42:43], 32"); a("s_load_dwordx2 s[18:19], s[0:1], 80")
        a(f"s_lshl_b32 s44, s{S_RB}, 20"); a("s_add_u32 s45, s44, 0xffffc")
        a(f"s_lshl_b32 s46, s{S_KQ}, 21"); a("s_add_u32 s47, s46, 0x1ffffc")
        a(f"s_lshl_b32 s48, s{S_GRP}, 16"); a(f"s_add_u32 s48, s48, {hex(PBUF)}")
        a(f"s_lshl_b32 s49, s{S_CL}, 20"); a(f"s_add_u32 s49, s49, {hex(XBUF)}")
        a(f"s_lshl_b32 s50, s{S_RB}, 19")
        a("s_waitcnt lgkmcnt(0)")
        for i, (b, o) in enumerate(((12, 44), (12, 45), (14, 44), (14, 45), (16, 46), (16, 47), (28, 48), (28, 49), (18, 50))):
            a(f"s_load_dword s{52+i}, s[{b}:{b+1}], s{o}")
        a("s_endpgm")
        a.lab("L_poller")
    elif opt.ctouch:
        a(f"s_cmp_lg_u32 s{S_WAVE}, 6"); a("s_cbranch_scc1 L_poller")
        a.c("---- wave 6: pull this CU's share of the code into L2")
        a("s_getpc_b64 s[40:41]")
        a.lab("L_pc")
        a(f"s_sub_u32 s40, s40, L_pc-{NAME}_kernel"); a("s_subb_u32 s41, s41, 0")
        a("s_lshr_b32 s42, s2, 3"); a(f"s_lshl_b32 s42, s42, {7 + opt.ctouch}")
        a(f"v_and_b32 v1, {(1 << opt.ctouch) - 1}, v0"); a("v_lshlrev_b32 v1, 7, v1"); a("v_add_u32 v1, s42, v1")
        a(f"v_min_u32 v1, L_code_end-{NAME}_kernel-4, v1")
        a("global_load_dword v2, v1, s[40:41]")
        a("s_endpgm")
        a.lab("L_poller")
    elif not opt.w7: a(f"s_cmp_eq_u32 s{S_WAVE}, 6"); a("s_cbranch_scc1 L_end")
    a("s_waitcnt lgkmcnt(0)")
    tag_load()
    a("v_bfe_u32 v1, v0, 2, 3"); a("v_and_b32 v2, 3, v0"); a("v_lshlrev_b32 v2, 3, v2"); a("v_lshl_add_u32 v4, v1, 7, v2")
    a(f"s_lshl_b32 s43, s{S_GRP}, 10"); a(f"s_add_u32 s43, s43, {hex(PFLAG)}")
    a("s_waitcnt lgkmcnt(0)")
    tag_hash()
    a(f"v_mov_b32 v2, s{S_TAG}"); a(f"v_mov_b32 v3, s{S_TAG+1}")
    a(f"s_mov_b32 s44, 21")
    a.lab("L_pb"); a("s_barrier"); a("s_sub_u32 s44, s44, 1"); a("s_cmp_lg_u32 s44, 0"); a("s_cbranch_scc1 L_pb")
    a(f"s_mov_b32 s44, {opt.spin}")
    a.lab("L_ppoll")
    a(f"buffer_load_dwordx2 v[8:9], v4, {srd(SRD_WS)}, s43 offen sc1")
    a("s_sub_u32 s44, s44, 1"); a("s_cmp_eq_u32 s44, 0")
    a("s_waitcnt vmcnt(0)")
    a("s_cbranch_scc1 L_end")
    a("v_cmp_ne_u64 vcc, v[8:9], v[2:3]")
    a("s_cbranch_vccz L_end")
    a("s_sleep 2"); a("s_branch L_ppoll")
    a.lab("L_end")
    a("s_endpgm")

    a.lab("L_compute")
    mark = [len(a.L)]; rep = []
    def flush_passes():
        body = hazard_fix(auto_wait(a.L[mark[0]:]), report=rep)
        a.L = a.L[:mark[0]] + body
        mark[0] = len(a.L)
    a(f"s_load_dwordx2 s[{SRD_OUT}:{SRD_OUT+1}], s[0:1], 80"); mk(SRD_OUT, 0x200000)
    if opt.prio: a(f"s_setprio {opt.prio}")
    a(f"s_lshr_b32 s{S_WM}, s{S_WAVE}, 1"); a(f"s_and_b32 s{S_WN}, s{S_WAVE}, 1")
    a("v_and_b32 v1, 15, v0"); a("v_lshrrev_b32 v2, 4, v0")
    a("v_lshrrev_b32 v3, 1, v1"); a("v_xor_b32 v4, v3, v2"); a("v_lshlrev_b32 v4, 4, v4"); a("v_lshl_add_u32 v4, v1, 7, v4")
    a(f"s_lshl_b32 s43, s{S_WAVE}, 12"); a("s_xor_b32 s42, s43, 4096")
    a(f"v_add_u32 v{V_AR}, s42, v4"); a(f"v_add_u32 v{V_AR+1}, s43, v4")
    a(f"v_xor_b32 v{V_AR+2}, 64, v{V_AR}"); a(f"v_xor_b32 v{V_AR+3}, 64, v{V_AR+1}")
    a("v_lshrrev_b32 v5, 1, v2"); a("v_xor_b32 v5, v5, v3"); a("v_lshlrev_b32 v5, 4, v5"); a("v_lshl_add_u32 v5, v1, 7, v5")
    a("v_and_b32 v6, 1, v2"); a("v_lshl_add_u32 v5, v6, 3, v5")
    a(f"s_lshl_b32 s44, s{S_WN}, 14"); a(f"s_add_u32 s44, s44, {AUX}")
    a("s_add_u32 s42, s42, s44"); a("s_add_u32 s43, s43, s44")
    a(f"v_add_u32 v{V_T}, s42, v5"); a(f"v_add_u32 v{V_T+1}, s43, v5")
    for bb in range(2):
        for uz in range(1, 4): a(f"v_xor_b32 v{V_T+4+3*bb+uz-1}, {32*uz}, v{V_T+bb}")
    a("v_bfe_u32 v5, v0, 2, 2"); a("v_lshl_add_u32 v4, v2, 3, v5"); a("v_lshlrev_b32 v4, 8, v4")
    a("v_and_b32 v3, 3, v0"); a("v_lshl_add_u32 v4, v3, 3, v4"); a("v_add_u32 v4, 16384, v4")
    a("v_lshlrev_b32 v5, 1, v5"); a("v_or_b32 v5, v5, v6")
    a(f"s_lshl_b32 s40, s{S_WN}, 2")
    for b in range(4):
        a(f"s_add_u32 s41, s40, {b}"); a("v_xor_b32 v3, s41, v5"); a(f"v_lshl_add_u32 v{V_AW+b}, v3, 5, v4")
    a(f"s_lshr_b32 s52, s{S_KQ}, 1"); a("s_lshl_b32 s52, s52, 12")
    a(f"s_lshl_b32 s53, s{S_KQ}, 10"); a(f"s_add_u32 s53, s53, {AUX}")
    a("v_lshlrev_b32 v7, 4, v0"); a(f"v_mov_b32 v{V_Z}, 0")
    a(f"s_mov_b32 s{S_C}, 0x3e0293ee")
    a(f"s_lshl_b32 s40, s{S_WM}, 13"); a("s_add_u32 s40, s40, s44")
    a(f"v_add_u32 v{V_T+10}, s40, v7"); a(f"v_xor_b32 v{V_T+11}, 0x4000, v{V_T+10}")
    a(f"s_lshl_b32 s41, s{S_WAVE}, 11"); a("s_xor_b32 s42, s41, 2048")
    a(f"v_add_u32 v{V_T+2}, s42, v7"); a(f"v_add_u32 v{V_T+3}, s41, v7")
    a(f"v_add_u32 v{V_T+12}, {AUX}, v{V_T+3}")
    a("s_waitcnt lgkmcnt(0)")
    tag_load()
    a(f"s_lshl_b32 s40, s{S_GRP}, 3"); a(f"s_add_u32 s40, s40, s{S_HQ}")
    a(f"s_lshl_b32 s{S_PB}, s40, 13"); a(f"s_add_u32 s{S_PB}, s{S_PB}, {hex(PBUF)}")
    a("s_lshl_b32 s40, s40, 7"); a(f"s_lshl_b32 s41, s{S_WAVE}, 3"); a("s_add_u32 s40, s40, s41"); a(f"s_add_u32 s{S_FL}, s40, {hex(PFLAG)}")
    a("s_waitcnt lgkmcnt(0)")
    tag_hash()
    a(f"v_mov_b32 v{V_TAG}, s{S_TAG}"); a(f"v_mov_b32 v{V_TAG+1}, s{S_TAG+1}")
    a("s_barrier")
    stamp()

    def rel(n): return (slot(n) & 1) * SLOT
    def upd(n): return {0: None, 1: "0x10000", -1: "0xffff0000"}[(slot(n + 1) >> 1) - (slot(n) >> 1)]
    def rdR(n, s, aa): return f"ds_read_b128 {vr(V_R+4*aa,4)}, v{V_AR + 2*s + (aa >> 1)} offset:{rel(n) + (aa & 1)*2048}"
    def rdW(n, s, b, z): return f"ds_read_b64_tr_b16 {vr(V_W + 16*s + 4*b + 2*z, 2)}, v{V_AW+b} offset:{rel(n) + s*8192 + z*1024}"
    WPOS = {(0,0): (0,0), (0,1): (0,1), (0,2): (1,0), (1,0): (1,1), (1,1): (2,0), (1,2): (2,1), (2,0): (3,0), (2,1): (3,1)}
    WAITPOS = {(0,0), (0,1), (0,2), (0,3), (2,0), (3,0)}
    def acc(aa, b): return vr(V_ACC + 16*aa + 4*b, 4)
    def first_reads(n):
        for aa in range(4):
            for b in range(4):
                if (aa, b) in WPOS: a(rdW(n, 0, *WPOS[(aa, b)]))
                if b == 3: a(rdR(n, 0, aa))
    def item_gaps(n, zero, nxt, bar=True):
        G = []
        for s in range(2):
            tk, ts = (n, 1) if s == 0 else (nxt, 0)
            for aa in range(4):
                for b in range(4):
                    post = []
                    W = vr(V_W + 16*s + 4*b, 4); R = vr(V_R + 4*aa, 4)
                    C = "0" if (zero and s == 0) else acc(aa, b)
                    m = f"{MF} {acc(aa,b)}, {W}, {R}, {C}" if n < 16 else f"{MF} {acc(aa,b)}, {R}, {W}, {C}"
                    if opt.late and s == 1:
                        if aa == 0 and b == 3 and bar: post += ["s_waitcnt lgkmcnt(0)", "s_barrier"]
                        if tk is not None:
                            if (aa - 1, b) in WPOS: post.append(rdW(tk, ts, *WPOS[(aa - 1, b)]))
                            if b == 3: post.append(rdR(tk, ts, aa))
                    elif tk is not None:
                        if (aa, b) in WPOS: post.append(rdW(tk, ts, *WPOS[(aa, b)]))
                        if b == 3: post.append(rdR(tk, ts, aa))
                    u = upd(n) if nxt is not None else None
                    if u is not None:
                        if s == 0 and aa == 3 and b < 3: post.append(f"v_add_u32 v{V_AW+b}, {u}, v{V_AW+b}")
                        if s == 0 and aa == 2 and b == 2: post += [f"v_add_u32 v{V_AR}, {u}, v{V_AR}", f"v_add_u32 v{V_AR+1}, {u}, v{V_AR+1}"]
                        if s == 0 and aa == 3 and b == 2: post.append(f"v_add_u32 v{V_AW+3}, {u}, v{V_AW+3}")
                        if s == 1 and aa == (0 if opt.late else 3) and b < 2: post.append(f"v_add_u32 v{V_AR+2+b}, {u}, v{V_AR+2+b}")
                    if bar and s == 0 and aa == 3 and b == 3 and not opt.late: post.append("s_barrier")
                    G.append([1 if (aa, b) in WAITPOS else 0, m, post])
        return G
    def load_of(G, i): return len(G[i][2]) + (G[i+1][0] if i + 1 < len(G) else 0)
    def inject(G, start, opsl, cap=2, onelds=True):
        i = start
        for op in opsl:
            while i < len(G) and (load_of(G, i) >= cap or (onelds and op.startswith("ds_") and any(x.startswith("ds_") for x in G[i][2]))): i += 1
            if i >= len(G): G[-1][2].append(op); i = len(G) - 1; continue
            G[i][2].append(op)
        return i
    def emitG(G):
        for w, m, post in G:
            a(m)
            for x in post: a(x)
    kf = lambda bb, kt, u: V_KF + 16*bb + 8*kt + 4*u
    sp = lambda bb, kt, qt: V_SP + 16*bb + 8*kt + 4*qt
    kaddr = lambda bb, u, z: (V_T + bb) if (u == 0 and z == 0) else (V_T + 4 + 3*bb + 2*u + z - 1)
    kreads = [f"ds_read_b64 {vr(kf(bb,kt,u) + 2*z, 2)}, v{kaddr(bb,u,z)} offset:{kt*2048}" for bb in range(2) for kt in range(2) for u in range(2) for z in range(2)]
    qcvt = lambda aa: [f"v_cvt_pk_bf16_f32 v{V_BF+i}, v{V_ACC+2*i}, v{V_ACC+2*i+1}" for i in range(8*aa, 8*aa+8)]
    def smf(bb, Cin=None):
        r = []
        for u in range(2):
            for kt in range(2):
                for qt in range(2):
                    C = (("0" if Cin is None else vr(Cin + 8*kt + 4*qt, 4)) if u == 0 else vr(sp(bb,kt,qt), 4))
                    r.append(f"{MF} {vr(sp(bb,kt,qt),4)}, {vr(kf(bb,kt,u),4)}, {vr(V_BF + 8*(2*bb+qt) + 4*u, 4)}, {C}")
        return r
    first_reads(0)
    kpos = max(KAT) + 1 if not KD else max(max(KD) + 1, 12)
    for n in range(16):
        G = item_gaps(n, n == 0, n + 1 if n < 15 else None, bar=(n < 15))
        if n == kpos: inject(G, 0, kreads[:8])
        if n == kpos + 1: inject(G, 0, kreads[8:])
        if n == 15:
            u = upd(15)
            inject(G, 16, [f"v_add_u32 v{r}, {u}, v{r}" for r in list(range(V_AR, V_AR+4)) + list(range(V_AW, V_AW+4))] +
                   [f"v_xor_b32 v{r}, s52, v{r}" for r in range(V_AR, V_AR+4)] +
                   [f"v_xor_b32 v{V_T+4}, s53, v{V_T+2}", f"v_xor_b32 v{V_T+6}, s53, v{V_T+3}", f"v_xor_b32 v{V_T+5}, 0x400, v{V_T+4}", f"v_xor_b32 v{V_T+7}, 0x400, v{V_T+6}"])
            inject(G, 24, qcvt(0), cap=3); inject(G, 28, qcvt(1), cap=3)
        emitG(G)
    stamp()
    a.c("---- partial scores of the partner's batch")
    G = [[0, m, []] for m in smf(0)]
    inject(G, 0, qcvt(2) + qcvt(3))
    emitG(G)
    RXS = V_KF
    for j in range(4): a(f"ds_write_b128 v{V_T+10}, {vr(V_SP + 4*j, 4)} offset:{j*1024}")
    a(f"ds_write_b64 v{V_T+10}, {vr(V_TAG,2)} offset:4096")
    flush_passes()
    a(f"s_mov_b32 s44, {opt.spin}")
    a.lab("L_spoll")
    a(f"ds_read_b64 v[2:3], v{V_T+11} offset:4096")
    a("s_sub_u32 s44, s44, 1"); a("s_cmp_eq_u32 s44, 0")
    a("s_waitcnt lgkmcnt(0)")
    a("s_cbranch_scc1 L_sgo")
    a(f"v_cmp_ne_u64 vcc, v[2:3], {vr(V_TAG,2)}")
    a("s_cbranch_vccnz L_spoll")
    a.lab("L_sgo")
    mark[0] = len(a.L)
    for j in range(4): a(f"ds_read_b128 {vr(RXS + 4*j, 4)}, v{V_T+11} offset:{j*1024}")
    for m in smf(1, RXS): a(m)
    S = lambda kt, qt, i: f"v{sp(1,kt,qt) + i}"
    sm = []
    M = [1, 3]; T = [2, 4]
    for qt in range(2):
        m = f"v{M[qt]}"
        sm += [f"v_max3_f32 {m}, {S(0,qt,0)}, {S(0,qt,1)}, {S(0,qt,2)}", f"v_max3_f32 {m}, {m}, {S(0,qt,3)}, {S(1,qt,0)}",
               f"v_max3_f32 {m}, {m}, {S(1,qt,1)}, {S(1,qt,2)}", f"v_max_f32 {m}, {m}, {S(1,qt,3)}"]
    def xl(op):
        o = []
        for sw in ("v_permlane16_swap_b32", "v_permlane32_swap_b32"):
            o += ["v_mov_b32 v2, v1", "v_mov_b32 v4, v3", f"{sw} v1, v2", f"{sw} v3, v4", f"{op} v1, v1, v2", f"{op} v3, v3, v4"]
        return o
    sm += xl("v_max_f32")
    sm += [f"v_mul_f32 v1, s{S_C}, v1", f"v_mul_f32 v3, s{S_C}, v3"]
    idx8 = [(kt, i) for kt in range(2) for i in range(4)]
    for qt in range(2):
        for kt, i in idx8: sm.append(f"v_fma_f32 {S(kt,qt,i)}, {S(kt,qt,i)}, s{S_C}, -v{M[qt]}")
    for qt in range(2):
        for kt, i in idx8: sm.append(f"v_exp_f32 {S(kt,qt,i)}, {S(kt,qt,i)}")
    for qt in range(2):
        m = f"v{M[qt]}"; t = f"v{T[qt]}"
        sm += [f"v_add_f32 {m}, {S(0,qt,0)}, {S(0,qt,1)}", f"v_add_f32 {t}, {S(0,qt,2)}, {S(0,qt,3)}",
               f"v_add_f32 {m}, {m}, {S(1,qt,0)}", f"v_add_f32 {t}, {t}, {S(1,qt,1)}",
               f"v_add_f32 {m}, {m}, {S(1,qt,2)}", f"v_add_f32 {t}, {t}, {S(1,qt,3)}", f"v_add_f32 {m}, {m}, {t}"]
    sm += xl("v_add_f32")
    sm += ["v_rcp_f32 v1, v1", "v_rcp_f32 v3, v3"]
    for qt in range(2):
        for kt, i in idx8: sm.append(f"v_mul_f32 {S(kt,qt,i)}, {S(kt,qt,i)}, v{M[qt]}")
        for kt in range(2):
            for h in range(2): sm.append(f"v_cvt_pk_bf16_f32 v{V_P + 4*qt + 2*kt + h}, {S(kt,qt,2*h)}, {S(kt,qt,2*h+1)}")
        sm.append(f"buffer_store_dwordx4 {vr(V_P+4*qt,4)}, v{V_T+3}, {srd(SRD_WS)}, s{S_PB} offen offset:{qt*1024} sc1")
    pw = [f"ds_write_b128 v{V_T+12}, {vr(V_P+4*qt,4)} offset:{qt*1024}" for qt in range(2)]
    flag_ops = ["s_waitcnt vmcnt(0)", f"buffer_store_dwordx2 {vr(V_TAG,2)}, v{V_Z}, {srd(SRD_WS)}, s{S_FL} offen sc1"]
    if opt.smbar >= len(sm):
        for x in sm: a(x)
        if opt.flagpos < 0:
            for x in flag_ops: a(x)
        a("s_barrier")
        first_reads(16)
    else:
        for x in sm[:opt.smbar]: a(x)
        a("s_barrier")
        first_reads(16)
        for x in sm[opt.smbar:]: a(x)
    for x in pw: a(x)
    stamp()
    order = [(bb, nt) for bb in range(2) for nt in range(4)]
    bf = lambda bb, nt: V_BF + 16*bb + 4*nt
    out = lambda bb, qt, nt: V_OUT + 16*(2*bb + qt) + 4*nt
    def cvt_ops(bb, nt):
        t0 = V_ACC + 16*(2*bb) + 4*nt; t1 = V_ACC + 16*(2*bb+1) + 4*nt; d = bf(bb, nt)
        return [f"v_cvt_pk_bf16_f32 v{d}, v{t0}, v{t0+1}", f"v_cvt_pk_bf16_f32 v{d+1}, v{t0+2}, v{t0+3}",
                f"v_cvt_pk_bf16_f32 v{d+2}, v{t1}, v{t1+1}", f"v_cvt_pk_bf16_f32 v{d+3}, v{t1+2}, v{t1+3}"]
    def pv_m(bb, qt, nt, P, zero):
        o = vr(out(bb,qt,nt), 4)
        return f"{MF} {o}, {vr(bf(bb,nt),4)}, {vr(P + 8*bb + 4*qt, 4)}, {'0' if zero else o}"
    def readP(i, P): return [f"ds_read_b128 {vr(P + 8*bb + 4*qt, 4)}, v{V_T+4+2*bb+qt} offset:{(i % 4)*8192}" for bb in range(2) for qt in range(2)]
    PN = V_W
    def boundary(i):
        G = []; prev = []
        for bb, nt in order:
            G.append([0, pv_m(bb, 0, nt, V_P, i == 1), prev[2:]])
            prev = cvt_ops(bb, nt)
            G.append([0, pv_m(bb, 1, nt, V_P, i == 1), prev[:2]])
        G[-1][2] += prev[2:]
        return G
    XS = 1 if opt.xdir else 0
    pre = [f"v_lshlrev_b32 v6, 2, v0", f"s_lshl_b32 s40, s{S_CL}, 5", f"s_add_u32 s40, s40, s{S_IDX}", f"s_lshl_b32 s41, s{S_KQ}, 2", f"s_add_u32 s41, s41, s{S_WAVE}",
           f"s_lshl_b32 s43, s41, {11 + XS}", f"s_add_u32 s43, s43, {hex(XBUF)}"]
    for t in (1, 2, 3):
        pre += [f"s_xor_b32 s42, s{S_KQ}, {t}", "s_lshl_b32 s42, s42, 3", "s_add_u32 s42, s42, s40", f"s_lshl_b32 s{52+t}, s42, {11 if opt.ffl else 7}",
                f"s_lshl_b32 s42, s42, {15 + XS}", f"s_add_u32 s{44+t}, s42, s43"]
    pre += [f"s_lshl_b32 s43, s41, {7 if opt.ffl else 3}", f"s_add_u32 s43, s43, {hex(XFLAG)}"] + [f"s_add_u32 s{52+t}, s{52+t}, s43" for t in (1, 2, 3)]
    for i in range(8):
        nA, nB = 16 + 2*i, 17 + 2*i
        G = item_gaps(nA, True, nB) + item_gaps(nB, False, nB + 1 if i < 7 else None, bar=(i < 7))
        if i == 0:
            if opt.flagpos >= 0:
                fp = opt.flagpos
                if G[fp][2] and G[fp][2][-1] == "s_barrier": G[fp][2][-1:-1] = flag_ops
                else: G[fp][2].extend(flag_ops)
            cv = [x for bb, nt in order for x in cvt_ops(bb, nt)]
            inject(G, 58, cv[:16], cap=3); G[-1][2] += cv[16:]
        else:
            inject(G, 52 if opt.late else 48, readP(i - 1, V_P), cap=3, onelds=not opt.late or i == 7)
        if i == 7: inject(G, 56, readP(7, PN)); inject(G, 0, pre)
        emitG(G)
        if i: emitG(boundary(i))
        if opt.hstamps: stamp()
    def xsum(c, d):
        return [f"v_bitop3_b32 v{c}, v{d}, v{d+1}, v{d+2} bitop3:0x96", f"v_bitop3_b32 v{c}, v{c}, v{d+3}, v{d+4} bitop3:0x96",
                f"v_bitop3_b32 v{c}, v{c}, v{d+5}, v{d+6} bitop3:0x96", f"v_bitop3_b32 v{c}, v{c}, v{d+7}, v{V_TAG} bitop3:0x96"]
    def send(t):
        d = V_ACC + 8*t
        o = [f"v_cvt_pk_bf16_f32 v{d+j}, v{V_OUT+16*t+2*j}, v{V_OUT+16*t+2*j+1}" for j in range(8)]
        st = [f"buffer_store_dwordx4 {vr(d + 4*g, 4)}, v7, {srd(SRD_WS)}, s{44+t} offen offset:{g*1024} {opt.xflags}" for g in range(2)]
        if opt.xdir:
            c = V_ACC + 40 + t
            return o[:4] + st[:1] + o[4:] + st[1:] + xsum(c, d) + [f"buffer_store_dword v{c}, v6, {srd(SRD_WS)}, s{44+t} offen offset:2048 sc1"]
        return o[:4] + st[:1] + o[4:] + st[1:]
    G = [[0, pv_m(t >> 1, t & 1, nt, PN, False), []] for t in (1, 2, 3, 0) for nt in range(4)]
    inject(G, 6, send(1) + send(2) + send(3), cap=3)
    emitG(G)
    stamp()
    a(f"s_lshl_b32 s42, s{S_KQ}, 3"); a("s_add_u32 s42, s42, s40")
    a(f"s_lshl_b32 s56, s42, {11 if opt.ffl else 7}"); a(f"s_lshl_b32 s43, s{S_WAVE}, {7 if opt.ffl else 3}"); a("s_add_u32 s56, s56, s43"); a(f"s_add_u32 s56, s56, {hex(XFLAG)}")
    a("v_and_b32 v3, 3, v0"); a("v_min_u32 v3, 2, v3"); a(f"v_add_u32 v3, s{S_KQ}, v3"); a("v_add_u32 v3, 1, v3"); a("v_and_b32 v3, 3, v3"); a(f"v_lshlrev_b32 v3, {9 if opt.ffl else 5}, v3")
    if opt.ffl:
        for r in range(4): a(f"v_mov_b32 v{V_T+4+1+r}, v{V_TAG + (r & 1)}")
    a(f"s_lshl_b32 s42, s42, {15 + XS}"); a(f"s_lshl_b32 s43, s{S_WAVE}, {11 + XS}"); a("s_add_u32 s42, s42, s43"); a(f"s_add_u32 s42, s42, {hex(XBUF)}")
    for j in range(3):
        a(f"s_add_u32 s43, s{S_KQ}, {j+1}"); a("s_and_b32 s43, s43, 3"); a(f"s_lshl_b32 s43, s43, {13 + XS}"); a(f"s_add_u32 s{58+j}, s43, s42")
    a("v_lshrrev_b32 v4, 3, v0"); a("v_lshlrev_b32 v4, 12, v4"); a("v_and_b32 v5, 7, v0"); a("v_lshl_add_u32 v4, v5, 4, v4")
    a(f"s_lshr_b32 s41, s{S_KQ}, 1"); a(f"s_xor_b32 s41, s41, s{S_WAVE}"); a("s_xor_b32 s41, s41, 1"); a("s_lshl_b32 s41, s41, 17")
    a(f"s_lshl_b32 s40, s{S_RB}, 19"); a("s_add_u32 s40, s40, s41")
    a(f"s_and_b32 s41, s{S_KQ}, 1"); a("s_lshl_b32 s41, s41, 16"); a("s_add_u32 s40, s40, s41")
    a(f"s_lshl_b32 s41, s{S_BR}, 11"); a("s_add_u32 s40, s40, s41")
    a(f"s_mul_i32 s41, s{S_WN}, {opt.wox}"); a(f"s_xor_b32 s41, s41, s{S_IDX}"); a("s_lshl_b32 s41, s41, 8"); a("s_add_u32 s40, s40, s41")
    a(f"s_lshl_b32 s41, s{S_WN}, 7"); a("s_add_u32 s40, s40, s41")
    a("s_add_u32 s41, s40, 0x8000")
    a(f"s_lshl_b32 s42, s{S_WAVE}, 11"); a(f"s_add_u32 s42, s42, {SLOT}")
    a("v_and_b32 v1, 15, v0"); a("v_lshrrev_b32 v2, 5, v0"); a("v_xor_b32 v2, v2, v5"); a("v_lshlrev_b32 v2, 4, v2")
    a("v_lshl_add_u32 v1, v1, 7, v2"); a("v_bfe_u32 v2, v0, 4, 1"); a("v_lshl_add_u32 v1, v2, 3, v1"); a("v_add_u32 v1, s42, v1")
    for nt in range(1, 4): a(f"v_xor_b32 v{12+nt}, {32*nt}, v1")
    a("v_lshrrev_b32 v2, 3, v0"); a("v_xor_b32 v5, v5, v2"); a("v_lshlrev_b32 v5, 4, v5"); a("v_lshl_add_u32 v2, v2, 7, v5"); a("v_add_u32 v2, s42, v2")
    a(f"s_mov_b32 s44, {opt.spin}")
    for t in (1, 2, 3):
        if opt.ffl and t == 1: a("s_mov_b64 exec, 0xff")
        if not opt.xdir: a(f"s_waitcnt vmcnt({2*(3-t) + (t-1)})")
        if opt.ffl: a(f"buffer_store_dwordx4 {vr(V_T+5,4)}, v7, {srd(SRD_WS)}, s{52+t} offen sc1")
        else: a(f"buffer_store_dwordx2 {vr(V_TAG,2)}, v{V_Z}, {srd(SRD_WS)}, s{52+t} offen sc1")
        if opt.ffl and t == 3: a("s_mov_b64 exec, -1")
    flush_passes()
    if opt.verbose:
        for r in rep: print("pad", r)
    RX = V_BF
    if opt.xdir:
        def ldall():
            for j in range(3):
                for g in range(2): a(f"buffer_load_dwordx4 {vr(RX + 8*j + 4*g, 4)}, v7, {srd(SRD_WS)}, s{58+j} offen offset:{g*1024} sc1")
                a(f"buffer_load_dword v{RX + 24 + j}, v6, {srd(SRD_WS)}, s{58+j} offen offset:2048 sc1")
        def verify():
            for j in range(3):
                for x in xsum(V_R + j, RX + 8*j): a(x)
                a(f"v_xor_b32 v{V_R+j}, v{V_R+j}, v{RX + 24 + j}")
            a(f"v_or3_b32 v{V_R}, v{V_R}, v{V_R+1}, v{V_R+2}")
            a(f"v_cmp_ne_u32 vcc, 0, v{V_R}")
        if opt.xdir == 1:
            a("s_waitcnt vmcnt(3)")
            ldall()
            a("s_waitcnt vmcnt(0)")
            verify()
            a("s_cbranch_vccz L_xok")
        else:
            a("s_waitcnt vmcnt(3)")
        a.lab("L_xpoll")
        a(f"buffer_load_dwordx2 v[8:9], v3, {srd(SRD_WS)}, s56 offen sc1")
        a("s_sub_u32 s44, s44, 1"); a("s_cmp_eq_u32 s44, 0")
        a("s_waitcnt vmcnt(0)")
        a("s_cbranch_scc1 L_xok")
        a(f"v_cmp_ne_u64 vcc, v[8:9], {vr(V_TAG,2)}")
        a("s_cbranch_vccnz L_xpoll")
        ldall()
        a("s_waitcnt vmcnt(0)")
        verify()
        a("s_cbranch_vccnz L_xpoll")
        a.lab("L_xok")
        stamp()
    elif opt.xprog:
        a("s_mov_b32 s57, 7")
        a.lab("L_xpoll")
        a(f"buffer_load_dwordx2 v[8:9], v3, {srd(SRD_WS)}, s56 offen sc1")
        a("s_sub_u32 s44, s44, 1"); a("s_cmp_eq_u32 s44, 0"); a("s_cselect_b32 s43, 0, 7")
        a("s_waitcnt vmcnt(0)")
        a(f"v_cmp_ne_u64 vcc, v[8:9], {vr(V_TAG,2)}")
        a("s_and_b32 s43, s43, vcc_lo")
        a("s_andn2_b32 s42, s57, s43"); a("s_mov_b32 s57, s43")
        for j in range(3):
            a(f"s_bitcmp1_b32 s42, {j}"); a(f"s_cbranch_scc0 L_xs{j}")
            for g in range(2): a(f"buffer_load_dwordx4 {vr(RX + 8*j + 4*g, 4)}, v7, {srd(SRD_WS)}, s{58+j} offen offset:{g*1024} sc1")
            a.lab(f"L_xs{j}")
        a("s_cmp_lg_u32 s57, 0"); a("s_cbranch_scc1 L_xpoll")
        stamp()
        a("s_waitcnt vmcnt(0)")
    else:
        a.lab("L_xpoll")
        a(f"buffer_load_dwordx2 v[8:9], v3, {srd(SRD_WS)}, s56 offen sc1")
        a("s_sub_u32 s44, s44, 1"); a("s_cmp_eq_u32 s44, 0")
        a("s_waitcnt vmcnt(0)")
        a("s_cbranch_scc1 L_xrd")
        a(f"v_cmp_ne_u64 vcc, v[8:9], {vr(V_TAG,2)}")
        a("s_cbranch_vccnz L_xpoll")
        a.lab("L_xrd")
        stamp()
        for j in range(3):
            for g in range(2): a(f"buffer_load_dwordx4 {vr(RX + 8*j + 4*g, 4)}, v7, {srd(SRD_WS)}, s{58+j} offen offset:{g*1024} sc1")
    for j in range(3):
        a(f"s_waitcnt vmcnt({4 - 2*j})")
        for i in range(8):
            r = RX + 8*j + i
            a(f"v_lshlrev_b32 v5, 16, v{r}"); a(f"v_and_b32 v10, 0xffff0000, v{r}")
            a(f"v_add_f32 v{V_OUT+2*i}, v{V_OUT+2*i}, v5"); a(f"v_add_f32 v{V_OUT+2*i+1}, v{V_OUT+2*i+1}, v10")
    for i in range(8): a(f"v_cvt_pk_bf16_f32 v{V_R+i}, v{V_OUT+2*i}, v{V_OUT+2*i+1}")
    for nt in range(4): a(f"ds_write_b64 v{12+nt if nt else 1}, {vr(V_R+2*nt,2)}")
    a(f"ds_read_b128 {vr(V_R+8,4)}, v2"); a(f"ds_read_b128 {vr(V_R+12,4)}, v2 offset:1024")
    a("s_waitcnt lgkmcnt(1)")
    a(f"buffer_store_dwordx4 {vr(V_R+8,4)}, v4, {srd(SRD_OUT)}, s40 offen {opt.outflags}")
    a("s_waitcnt lgkmcnt(0)")
    a(f"buffer_store_dwordx4 {vr(V_R+12,4)}, v4, {srd(SRD_OUT)}, s41 offen {opt.outflags}")
    a(f"s_or_b32 s40, s{S_KQ}, s{S_IDX}"); a(f"s_or_b32 s40, s40, s{S_WAVE}"); a("s_cmp_lg_u32 s40, 0"); a("s_cbranch_scc1 L_noep")
    a(f"s_lshl_b32 s40, s{S_CL}, 7")
    a(f"buffer_store_dwordx2 {vr(V_TAG,2)}, v{V_Z}, {srd(SRD_WS)}, s40 offen {opt.outflags}")
    a.lab("L_noep")
    if opt.fixdur:
        a.lab("L_fix")
        a("s_memrealtime s[92:93]"); a("s_waitcnt lgkmcnt(0)"); a("s_sub_u32 s92, s92, s98")
        a(f"s_cmp_lt_u32 s92, {opt.fixdur}"); a("s_cbranch_scc1 L_fix")
    if opt.stamps:
        a("s_waitcnt vmcnt(0)")
        stamp()
        a(f"s_cmp_lg_u32 s{S_WAVE}, 0"); a("s_cbranch_scc1 L_end2")
        a("s_waitcnt lgkmcnt(0)")
        if opt.xid:
            r = S_ST + 2 * nst[0]; nst[0] += 1
            a(f"s_getreg_b32 s{r}, hwreg(HW_REG_XCC_ID)"); a(f"s_getreg_b32 s{r+1}, hwreg(HW_REG_HW_ID)")
        n = nst[0]
        a(f"s_mul_i32 s40, s2, {n*8}"); a("s_add_u32 s40, s40, 0x8000000")
        a(f"s_add_u32 s42, s{SRD_WS}, s40"); a(f"s_addc_u32 s43, s{SRD_WS+1}, 0")
        for i in range(n):
            a(f"v_mov_b32 v8, s{S_ST+2*i}"); a(f"v_mov_b32 v9, s{S_ST+2*i+1}")
            a(f"global_store_dwordx2 v{V_Z}, v[8:9], s[42:43] offset:{i*8}"); a("s_nop 1")
        a.lab("L_end2")
    a("s_endpgm")
    a.lab("L_code_end")
    tail = ['.section .rodata,"a"', ".p2align 6", f".amdhsa_kernel {NAME}_kernel"]
    tail += ["  .amdhsa_" + l for l in ("next_free_vgpr 256", "next_free_sgpr 102", "accum_offset 256", "group_segment_fixed_size 0", "kernarg_size 104",
              "user_sgpr_count 2", "user_sgpr_kernarg_segment_ptr 1", "system_sgpr_workgroup_id_x 1")]
    tail += [".end_amdhsa_kernel"]
    txt = "\n".join(head + [(x if x.endswith(":") else "    " + x) for x in a.L] + tail) + "\n"
    return txt, nst[0], rep

def parse(argv):
    ap = argparse.ArgumentParser()
    ap.add_argument("-o", default="cdna_kernels/" + NAME + ".s")
    for f in ("stamps", "cyc", "lstamps", "nodma", "nomfma", "samek", "hstamps", "verbose", "pairs"): ap.add_argument("--" + f, action="store_true")
    ap.add_argument("--prio", type=int, default=0)
    ap.add_argument("--spin", type=int, default=100000)
    ap.add_argument("--fixdur", type=int, default=0)
    ap.add_argument("--q0", type=int, default=2)
    ap.add_argument("--p1", type=int, default=4)
    ap.add_argument("--p2", default="6,8")
    ap.add_argument("--p3", type=int, default=12)
    ap.add_argument("--pm", default="2,3,4,3")
    ap.add_argument("--kat", default="")
    ap.add_argument("--wox", type=int, default=3)
    ap.add_argument("--smbar", type=int, default=200)
    ap.add_argument("--flagpos", type=int, default=8)
    ap.add_argument("--outflags", default="sc1")
    ap.add_argument("--pflags", default="sc1")
    ap.add_argument("--plate", type=int, default=1)
    ap.add_argument("--pix", type=int, default=1)
    ap.add_argument("--kd", default="")
    ap.add_argument("--lprio", type=int, default=0)
    ap.add_argument("--xid", type=int, default=0)
    ap.add_argument("--xdir", type=int, default=0)
    ap.add_argument("--dmaflags", default="")
    ap.add_argument("--vt", type=int, default=-1)
    ap.add_argument("--wt", type=int, default=-1)
    ap.add_argument("--ctouch", type=int, default=0)
    ap.add_argument("--wpair", type=int, default=0)
    ap.add_argument("--ffl", type=int, default=1)
    ap.add_argument("--tlb", type=int, default=0)
    ap.add_argument("--kflags", default="")
    ap.add_argument("--ntw", default="")
    ap.add_argument("--ntr", default="")
    ap.add_argument("--xflags", default="sc1")
    ap.add_argument("--late", type=int, default=1)
    ap.add_argument("--q1", type=int, default=4)
    ap.add_argument("--q2", type=int, default=4)
    ap.add_argument("--w7", type=int, default=0)
    ap.add_argument("--xprog", type=int, default=0)
    ap.add_argument("--kdkey", type=int, default=0)
    return ap.parse_args(argv)

if __name__ == "__main__":
    opt = parse(sys.argv[1:])
    t, n, rep = gen(opt)
    open(opt.o, "w").write(t)
    print("wrote", opt.o, "stamps", n, "lines", t.count("\n"), "pads", len(rep))
```

```python
import sys, argparse
from passes import auto_wait, hazard_fix
NAME = "concat_heads__mha_block_cached__mha_block_cached__near_ridge"

class Asm:
    def __init__(self): self.L = []; self.drop = []
    def __call__(self, s):
        for pat in self.drop:
            if pat in s: return
        self.L.append(s)
    def lab(self, s): self.L.append(s + ":")
    def c(self, s): self.L.append("; " + s)

IDL = 0x1000; OFLAG = 0x4000; XFLAG = 0x10000; XBUF = 0x400000; OBUF = 0xC00000; WS_REC = 0x1400000
SLOT = 32768; KSLOT = 4 * SLOT; VSLOT = 0; OSLOT = 2 * SLOT
S_BR, S_KQ, S_RB, S_IDX, S_WAVE = 3, 4, 5, 6, 7
SRD_X, SRD_K, SRD_V, SRD_WQ, SRD_WO, SRD_WS, SRD_OUT = 8, 12, 16, 20, 24, 28, 32
S_TAG = 36; S_CL = 38; S_HQ = 39
S_C = 50; S_OB = 49; S_OFFR = 47; S_OFFW = 48; S_W = 45; S_HT = 46
S_WM, S_WN = 56, 57; S_LOC = 58; S_FL = 60; S_GRP = 61
S_ST = 62
def srd(b): return f"s[{b}:{b+3}]"
def vr(b, n): return f"v[{b}:{b+n-1}]"
V_AW = 12; V_R = 16; V_W = 32; V_BF = 64; V_P = 96; V_AR = 104; V_TAG = 112; V_Z = 114; V_T = 115
V_ACC = 128; V_OUT = 192; V_KF = 192; V_SP = 224
MF = "v_mfma_f32_16x16x32_bf16"
NI = 33
def slot(n): return n % 4 if n < 16 else (n - 16) % 5
def offR(n): return {17: OSLOT, 18: OSLOT + 16384}.get(n, slot(n) * SLOT)
def offW(n): return {17: SLOT + 16384, 18: SLOT}.get(n, slot(n) * SLOT + 16384)

def gen(opt):
    a = Asm()
    if opt.nodma: a.drop.append(" lds")
    if opt.nomfma: a.drop += ["v_mfma"]
    head = ["; Fused double MHA block: Q-proj + attention | O*Wo split-K over head groups | reduce-scatter (gfx950)",
            f"; @launch grid=(256,1,1) block=(512,1,1) lds={SLOT*5}",
            '.amdgcn_target "amdgcn-amd-amdhsa--gfx950"', ".text", f".globl {NAME}_kernel", ".p2align 8", f".type {NAME}_kernel,@function"]
    a.lab(f"{NAME}_kernel")
    nst = [0]
    def stamp_s():
        if not opt.stamps or nst[0] >= 18: return None
        r = S_ST + 2 * nst[0]; nst[0] += 1
        return f"{'s_memtime' if opt.cyc else 's_memrealtime'} s[{r}:{r+1}]"
    def stamp():
        if opt.pairs and opt.stamps:
            opt.cyc = False; a(stamp_s()); opt.cyc = True; a(stamp_s()); return
        s = stamp_s()
        if s: a(s)
    stamp()
    if opt.fixdur or opt.lstamps: a("s_memrealtime s[98:99]")
    a("s_cmp_ge_u32 s2, 256"); a("s_cbranch_scc1 L_end")
    a(f"s_bfe_u32 s{S_BR}, s2, 0x10002")
    a(f"s_mul_i32 s41, s{S_BR}, 40")
    a("s_add_u32 s42, s0, s41"); a("s_addc_u32 s43, s1, 0")
    for b, o in ((SRD_X, 0), (SRD_WQ, 24), (SRD_K, 8), (SRD_V, 16), (SRD_WO, 32)): a(f"s_load_dwordx2 s[{b}:{b+1}], s[42:43], {o}")
    a(f"s_load_dwordx2 s[{SRD_WS}:{SRD_WS+1}], s[0:1], 96")
    a(f"s_load_dwordx2 s[{SRD_OUT}:{SRD_OUT+1}], s[0:1], 80")
    a("v_lshrrev_b32 v1, 6, v0"); a("v_and_b32 v0, 63, v0")
    a(f"s_and_b32 s{S_KQ}, s2, 3")
    a(f"v_readfirstlane_b32 s{S_WAVE}, v1")
    a(f"s_lshr_b32 s{S_RB}, s2, 6"); a(f"s_bfe_u32 s{S_IDX}, s2, 0x30003")
    a(f"s_lshl_b32 s{S_CL}, s{S_BR}, 2"); a(f"s_add_u32 s{S_CL}, s{S_CL}, s{S_RB}")
    a(f"s_lshl_b32 s{S_HQ}, s{S_RB}, 1"); a(f"s_add_u32 s{S_HQ}, s{S_HQ}, s{S_IDX}"); a(f"s_and_b32 s{S_HQ}, s{S_HQ}, 7")
    a(f"s_lshl_b32 s{S_GRP}, s{S_CL}, 2"); a(f"s_add_u32 s{S_GRP}, s{S_GRP}, s{S_KQ}")
    for b, n in ((SRD_X, 0x100000), (SRD_WQ, 0x800000), (SRD_K, 0x400000), (SRD_V, 0x400000), (SRD_WO, 0x800000), (SRD_WS, WS_REC), (SRD_OUT, 0x200000)):
        a(f"s_mov_b32 s{b+2}, {hex(n)}"); a(f"s_mov_b32 s{b+3}, 0x20000")
    a(f"s_cmp_lt_u32 s{S_WAVE}, 4"); a("s_cbranch_scc1 L_compute")
    a(f"s_cmp_ge_u32 s{S_WAVE}, 6"); a("s_cbranch_scc1 L_aux")
    def tag_hash():
        a(f"s_mul_i32 s{S_TAG}, s{S_TAG}, 0x9e3779b1"); a(f"s_add_u32 s{S_TAG}, s{S_TAG}, 0x7f4a7c15")
        a(f"s_mul_i32 s{S_TAG+1}, s{S_TAG+1}, 0x85ebca6b"); a(f"s_add_u32 s{S_TAG+1}, s{S_TAG+1}, 0xc2b2ae35")
    def tag_load():
        a(f"s_lshl_b32 s40, s{S_CL}, 7"); a(f"s_load_dwordx2 s[{S_TAG}:{S_TAG+1}], s[{SRD_WS}:{SRD_WS+1}], s40")

    a.c("---- loader waves")
    a(f"s_sub_u32 s40, s{S_WAVE}, 4")
    a("v_lshrrev_b32 v3, 4, v0"); a("v_and_b32 v2, 15, v0")
    a("v_lshlrev_b32 v4, 2, v3"); a("v_xor_b32 v2, v2, v4"); a("v_xor_b32 v5, 2, v2")
    a("s_lshl_b32 s41, s40, 1"); a("v_xor_b32 v6, s41, v2"); a("v_lshlrev_b32 v6, 4, v6")
    a("v_lshlrev_b32 v2, 4, v2"); a("v_lshlrev_b32 v5, 4, v5")
    a("s_lshl_b32 s41, s40, 2"); a("v_add_u32 v1, s41, v3")
    a("v_lshl_add_u32 v12, v1, 13, v2"); a("v_lshl_add_u32 v13, v1, 13, v5")
    a("v_lshl_add_u32 v14, v1, 11, v2"); a("v_lshl_add_u32 v15, v1, 11, v5")
    a("v_lshl_add_u32 v16, v1, 8, v6")
    a("v_lshrrev_b32 v1, 3, v0"); a("v_and_b32 v2, 7, v0")
    a("v_add_u32 v4, s41, v3"); a("v_xor_b32 v2, v2, v4"); a("v_lshlrev_b32 v2, 4, v2")
    a("s_lshl_b32 s41, s40, 3"); a("v_add_u32 v1, s41, v1")
    a("v_lshl_add_u32 v10, v1, 11, v2"); a("v_lshl_add_u32 v11, v1, 8, v2")
    a(f"s_lshl_b32 s{S_W}, s40, 10")
    a(f"v_lshlrev_b32 v17, 4, v0"); a(f"v_add_u32 v17, s{S_W}, v17")
    a(f"s_lshl_b32 s50, s{S_RB}, 2"); a(f"s_lshl_b32 s51, s{S_HQ}, 1"); a("s_add_u32 s50, s50, s51")
    a(f"s_lshl_b32 s52, s{S_RB}, 18")
    a(f"s_lshl_b32 s51, s{S_KQ}, 3"); a(f"s_add_u32 s51, s51, s{S_HQ}")
    a("s_lshl_b32 s53, s51, 8")
    a(f"s_lshl_b32 s56, s{S_RB}, 20"); a("s_lshl_b32 s41, s51, 13"); a("s_add_u32 s57, s56, s41")
    a(f"s_lshl_b32 s58, s{S_GRP}, 18"); a(f"s_add_u32 s58, s58, {hex(OBUF)}")
    a(f"s_lshl_b32 s59, s{S_KQ}, 21"); a(f"s_lshl_b32 s41, s{S_IDX}, 8"); a("s_add_u32 s59, s59, s41")
    PMS = list(map(int, opt.pm.split(",")))
    def h_table(pm):
        seq = []; r = [2, 4, 6, 3, 5, 7]
        for i in range(8): seq.append(0 if i == 0 else 1 if i == pm else r.pop(0))
        return seq
    ht = [sum(x << (4*i) for i, x in enumerate(h_table(pm))) for pm in PMS]
    a(f"s_mov_b32 s{S_HT}, {hex(ht[0])}")
    for w in range(1, len(PMS)):
        a(f"s_and_b32 s41, s{S_IDX}, {len(PMS)-1}"); a(f"s_cmp_eq_u32 s41, {w}"); a(f"s_cselect_b32 s{S_HT}, {hex(ht[w])}, s{S_HT}")
    a(f"s_mul_i32 s41, s{S_HQ}, 0x11111111"); a(f"s_add_u32 s{S_HT}, s{S_HT}, s41"); a(f"s_and_b32 s{S_HT}, s{S_HT}, 0x77777777")
    def p1_table(p1, p2, p3):
        seq = [None] * 16; Ms = {0: 0, p1: 2, p2: 1, p3: 3}; avail = []
        for n in range(16):
            if n in Ms: seq[n] = Ms[n]; avail += [(n + 1, Ms[n] + 4*j) for j in (1, 2, 3)]
            else:
                t, c = avail.pop(0); assert t <= n; seq[n] = c
        return seq
    pack = lambda seq: sum((x & 15) << (4*i) for i, x in enumerate(seq))
    P2S = list(map(int, opt.p2.split(",")))
    tabs = [pack(p1_table(opt.p1, p2, opt.p3)) for p2 in P2S]
    a(f"s_mov_b32 s42, {hex(tabs[0] & 0xffffffff)}"); a(f"s_mov_b32 s43, {hex(tabs[0] >> 32)}")
    for u in range(1, len(P2S)):
        a(f"s_and_b32 s41, s2, {len(P2S)-1}"); a(f"s_cmp_eq_u32 s41, {u}")
        a(f"s_cselect_b32 s42, {hex(tabs[u] & 0xffffffff)}, s42"); a(f"s_cselect_b32 s43, {hex(tabs[u] >> 32)}, s43")
    KAT = tuple(map(int, opt.kat.split(","))) if opt.kat else (opt.p1, opt.p3)
    if opt.lstamps: a("s_memrealtime s[92:93]")
    def lst():
        if opt.lstamps:
            a("s_memrealtime s[92:93]"); a("s_waitcnt lgkmcnt(0)"); a("s_mov_b32 m0, s94"); a("v_writelane_b32 v30, s92, m0"); a("s_add_u32 s94, s94, 1")
    issued = []
    def dma(tg, vo, sr, sbase, lit, ldsoff, fl=""):
        a(f"s_add_u32 m0, s{S_W}, {ldsoff}")
        a(f"s_add_u32 s41, s{sbase}, {hex(lit)}")
        a(f"buffer_load_dwordx4 v{vo}, {srd(sr)}, s41 offen {fl} lds")
        issued.append(tg)
    def prepW(n):
        if n < 16:
            a(f"s_bfe_u32 s54, s{42 + (n >> 3)}, {hex(4*(n & 7) | (4 << 16))}")
            a("s_add_u32 s54, s54, s50"); a("s_and_b32 s54, s54, 15")
            if opt.samek: a("s_and_b32 s54, s54, 1")
            a(f"s_lshl_b32 s55, s54, 7"); a(f"s_add_u32 s{S_OFFR}, s52, s55")
            a(f"s_lshl_b32 s55, s54, 19"); a(f"s_add_u32 s{S_OFFW}, s53, s55")
        else:
            a(f"s_bfe_u32 s54, s{S_HT}, {hex(4*((n - 17) >> 1) | (4 << 16))}")
            if opt.samek: a("s_mov_b32 s54, 0")
            a("s_lshl_b32 s55, s54, 18"); a(f"s_add_u32 s{S_OFFW}, s59, s55")
    def prepR(n):
        a(f"s_bfe_u32 s54, s{S_HT}, {hex(4*((n - 17) >> 1) | (4 << 16))}")
        a("s_lshl_b32 s55, s54, 15"); a(f"s_add_u32 s{S_OFFR}, s58, s55")
    def opsW(n):
        if n < 16: return [(n, 12 + (m & 1), SRD_WQ, S_OFFW, m*8*8192, offW(n) + m*2048) for m in range(8)]
        c2 = (n - 17) & 1
        return [(n, 14 + (m & 1), SRD_WO, S_OFFW, m*8*2048 + c2*64*2048, offW(n) + m*2048) for m in range(8)]
    def opsR(n):
        if n < 16: return [(n, 10, SRD_X, S_OFFR, m*16*2048, offR(n) + m*2048) for m in range(8)]
        c2 = (n - 17) & 1
        return [(n, 17, SRD_WS, S_OFFR, c2*16384 + m*2048, offR(n) + m*2048, opt.rflags) for m in range(8)]
    def opsK(n, c): return [(n, 11, SRD_K, 57, (m//2)*262144 + (m % 2)*4096 + h*128, KSLOT + h*16384 + m*2048) for m in range(4*c, 4*c+4) for h in range(2)]
    opsV = [(16, 16, SRD_V, 57, (2*j + m//4)*262144 + (m % 4)*2048, VSLOT + j*16384 + m*2048) for j in range(2) for m in range(8)]
    def item_ops(n):
        if n == 16: return [("o", o) for o in opsV]
        L = [("pw", n)] + [("o", o) for o in opsW(n)]
        for c, kk in enumerate(KAT):
            if kk == n: L += [("o", o) for o in opsK(n, c)]
        if n > 16: L += [("pr", n)]
        return L + [("o", o) for o in opsR(n)]
    def run(L):
        for k, x in L:
            if k == "o": dma(*x)
            elif k == "pw": prepW(x)
            else: prepR(x)
    def split(L, q):
        c = 0
        for i, (k, x) in enumerate(L):
            if c == q: return L[:i], L[i:]
            if k == "o": c += 1
        return L, []
    def bar(need):
        if need is not None:
            last = max(i for i, t in enumerate(issued) if t in need)
            a(f"s_waitcnt vmcnt({len(issued) - 1 - last})")
        lst(); a("s_barrier")
    L0 = item_ops(0)
    run(L0[:1])
    a("s_waitcnt lgkmcnt(0)")
    if opt.lstamps:
        a("v_mov_b32 v30, 0"); a("s_mov_b32 s94, 3")
        a("v_writelane_b32 v30, s98, 0"); a("v_writelane_b32 v30, s92, 1")
        a("s_memrealtime s[92:93]"); a("s_waitcnt lgkmcnt(0)"); a("v_writelane_b32 v30, s92, 2")
    run(L0[1:]); run(item_ops(1))
    tag_load()
    def otouch():
        a(f"s_lshl_b32 s55, s{S_HQ}, 15"); a("s_add_u32 s55, s55, s58"); a(f"s_lshl_b32 s41, s{S_W}, 4"); a("s_add_u32 s55, s55, s41")
        a("v_lshlrev_b32 v26, 7, v0")
        for hf in range(2):
            a(f"s_add_u32 s41, s55, {hf*8192}")
            a(f"buffer_load_dword v27, v26, {srd(SRD_WS)}, s41 offen sc1"); issued.append("t")
    for n in range(2, 17):
        A, B = split(item_ops(n), opt.q0 if n < 4 else 0)
        run(A); bar({n - 2}); run(B)
        if n == opt.ot: otouch()
    a("s_waitcnt lgkmcnt(0)"); tag_hash()
    a(f"v_mov_b32 v20, s{S_TAG}"); a(f"v_mov_b32 v21, s{S_TAG+1}")
    a(f"v_mov_b32 v22, s{S_W}"); a(f"v_add_u32 v22, {offR(19)}, v22")
    bar({15})
    run([("pw", 17)] + [("o", o) for o in opsW(17) + opsW(18)])
    bar({16})
    run([("pw", 19)] + [("o", o) for o in opsW(19) + opsW(20)])
    bar({17, 18})
    run([("pw", 21)] + [("o", o) for o in opsW(21)])
    a(f"s_mov_b32 s44, {opt.spin}")
    a.lab("L_mb")
    a("ds_read_b64 v[24:25], v22")
    a("s_sub_u32 s44, s44, 1"); a("s_cmp_eq_u32 s44, 0")
    a("s_waitcnt lgkmcnt(0)")
    a("s_cbranch_scc1 L_mbgo")
    a("v_cmp_ne_u64 vcc, v[24:25], v[20:21]")
    a("s_cbranch_vccz L_mbgo")
    a("s_sleep 1"); a("s_branch L_mb")
    a.lab("L_mbgo")
    lst()
    A, B = split([("pr", 19)] + [("o", o) for o in opsR(19) + opsR(20)], 8 + opt.qr)
    run(A); bar({19}); run(B)
    A, B = split([("pr", 21)] + [("o", o) for o in opsR(21)], opt.qr)
    run(A); bar({20}); run(B)
    run(item_ops(22))
    for n in range(23, NI):
        A, B = split(item_ops(n), 99 if n == 23 else opt.q2)
        run(A); bar({n - 2}); run(B)
    bar({NI - 2}); bar({NI - 1})
    if opt.lstamps:
        a(f"s_cmp_lg_u32 s{S_WAVE}, 4"); a("s_cbranch_scc1 L_end")
        a("s_mul_i32 s40, s2, 512"); a("s_add_u32 s40, s40, 0x8000000")
        a(f"s_add_u32 s42, s{SRD_WS}, s40"); a(f"s_addc_u32 s43, s{SRD_WS+1}, 0")
        a("v_lshlrev_b32 v1, 3, v0"); a("v_mov_b32 v31, 0")
        a("global_store_dwordx2 v1, v[30:31], s[42:43]")
    a("s_endpgm")

    a.lab("L_aux")
    a("s_waitcnt lgkmcnt(0)")
    tag_load()
    a("s_getreg_b32 s44, hwreg(HW_REG_XCC_ID, 0, 4)")
    a("v_bfe_u32 v1, v0, 2, 3"); a("v_and_b32 v2, 3, v0"); a("v_lshlrev_b32 v2, 3, v2")
    if opt.two:
        a(f"s_xor_b32 s41, s{S_HQ}, s{S_WAVE}"); a("s_and_b32 s41, s41, 1"); a("s_xor_b32 s41, s41, 1")
        a("v_and_b32 v1, 6, v1"); a("v_or_b32 v1, s41, v1")
    a("v_lshl_add_u32 v4, v1, 7, v2")
    a(f"s_lshl_b32 s43, s{S_GRP}, 10"); a(f"s_add_u32 s43, s43, {hex(OFLAG)}")
    a(f"s_lshl_b32 s42, s{S_GRP}, 7"); a(f"s_lshl_b32 s41, s{S_IDX}, 3"); a("s_add_u32 s42, s42, s41"); a(f"s_add_u32 s42, s42, {hex(IDL)}")
    a("v_mov_b32 v5, 0"); a("v_and_b32 v6, 1, v0"); a("v_lshlrev_b32 v6, 10, v6"); a(f"v_add_u32 v6, {offR(19)}, v6")
    a("s_waitcnt lgkmcnt(0)")
    tag_hash()
    a(f"s_add_u32 s44, s44, s{S_TAG+1}")
    a(f"v_mov_b32 v2, s{S_TAG}"); a(f"v_mov_b32 v3, s44")
    if not opt.two:
        a(f"s_cmp_eq_u32 s{S_WAVE}, 6"); a("s_cbranch_scc1 L_end")
    a(f"buffer_store_dwordx2 v[2:3], v5, {srd(SRD_WS)}, s42 offen sc1")
    a("s_nop 1"); a(f"v_mov_b32 v3, s{S_TAG+1}")
    a(f"s_cmp_eq_u32 s{S_WAVE}, 6"); a(f"s_cselect_b32 s44, 21, {opt.pstart}")
    a.lab("L_pb"); a("s_barrier"); a("s_sub_u32 s44, s44, 1"); a("s_cmp_lg_u32 s44, 0"); a("s_cbranch_scc1 L_pb")
    a(f"s_cmp_eq_u32 s{S_WAVE}, 6"); a("s_cbranch_scc1 L_pstart")
    a.lab("L_pstart")
    a(f"s_mov_b32 s44, {opt.spin}")
    a.lab("L_ppoll")
    a(f"buffer_load_dwordx2 v[8:9], v4, {srd(SRD_WS)}, s43 offen {opt.pollf}")
    a("s_sub_u32 s44, s44, 1"); a("s_cmp_eq_u32 s44, 0")
    a("s_waitcnt vmcnt(0)")
    a("s_cbranch_scc1 L_pgo")
    a("v_cmp_ne_u64 vcc, v[8:9], v[2:3]")
    a("s_cbranch_vccnz L_ppoll")
    a.lab("L_pgo")
    a(f"s_cmp_eq_u32 s{S_WAVE}, 6"); a("s_cbranch_scc1 L_end")
    a("ds_write_b64 v6, v[2:3]")
    a.lab("L_end")
    a("s_endpgm")

    a.lab("L_compute")
    mark = [len(a.L)]; rep = []
    def flush_passes():
        body = hazard_fix(auto_wait(a.L[mark[0]:]), report=rep)
        a.L = a.L[:mark[0]] + body
        mark[0] = len(a.L)
    if opt.prio: a(f"s_setprio {opt.prio}")
    a(f"s_lshr_b32 s{S_WM}, s{S_WAVE}, 1"); a(f"s_and_b32 s{S_WN}, s{S_WAVE}, 1")
    a("v_and_b32 v1, 15, v0"); a("v_lshrrev_b32 v2, 4, v0")
    a("v_lshrrev_b32 v3, 1, v1"); a("v_xor_b32 v4, v3, v2"); a("v_lshlrev_b32 v4, 4, v4"); a("v_lshl_add_u32 v4, v1, 7, v4")
    a(f"s_lshl_b32 s43, s{S_WAVE}, 12"); a("s_xor_b32 s42, s43, 4096")
    AR = lambda s, aa: V_AR + 4*s + aa
    a(f"v_add_u32 v{AR(0,0)}, s42, v4"); a(f"v_add_u32 v{AR(0,2)}, s43, v4")
    a(f"v_add_u32 v{AR(0,1)}, 2048, v{AR(0,0)}"); a(f"v_add_u32 v{AR(0,3)}, 2048, v{AR(0,2)}")
    for aa in range(4): a(f"v_xor_b32 v{AR(1,aa)}, 64, v{AR(0,aa)}")
    a("v_lshrrev_b32 v5, 1, v2"); a("v_xor_b32 v5, v5, v3"); a("v_lshlrev_b32 v5, 4, v5"); a("v_lshl_add_u32 v5, v1, 7, v5")
    a("v_and_b32 v6, 1, v2"); a("v_lshl_add_u32 v5, v6, 3, v5")
    a(f"s_lshl_b32 s44, s{S_WN}, 14"); a(f"s_add_u32 s44, s44, {KSLOT}")
    a(f"s_sub_u32 s53, {OSLOT}, s44")
    a("s_add_u32 s42, s42, s44"); a("s_add_u32 s43, s43, s44")
    a(f"v_add_u32 v{V_T}, s42, v5"); a(f"v_add_u32 v{V_T+1}, s43, v5")
    for bb in range(2):
        for uz in range(1, 4): a(f"v_xor_b32 v{V_T+4+3*bb+uz-1}, {32*uz}, v{V_T+bb}")
    a("v_bfe_u32 v5, v0, 2, 2"); a("v_lshl_add_u32 v4, v2, 3, v5"); a("v_lshlrev_b32 v4, 8, v4")
    a("v_and_b32 v3, 3, v0"); a("v_lshl_add_u32 v4, v3, 3, v4")
    a("v_lshl_add_u32 v1, v2, 2, v5"); a("v_lshlrev_b32 v1, 8, v1"); a("v_lshl_add_u32 v1, v3, 3, v1")
    a("v_lshlrev_b32 v5, 1, v5"); a("v_or_b32 v5, v5, v6")
    a("v_lshl_add_u32 v1, v5, 5, v1")
    a(f"s_lshl_b32 s40, s{S_WAVE}, 13"); a(f"v_add_u32 v{V_T+2}, s40, v1")
    a(f"s_lshl_b32 s40, s{S_WN}, 2")
    for b in range(4):
        a(f"s_add_u32 s41, s40, {b}"); a("v_xor_b32 v3, s41, v5"); a(f"v_lshl_add_u32 v{V_AW+b}, v3, 5, v4")
    a(f"s_lshl_b32 s52, s{S_KQ}, 11")
    a("v_lshlrev_b32 v7, 4, v0"); a(f"v_mov_b32 v{V_Z}, 0")
    a(f"s_mov_b32 s{S_C}, 0x3e0293ee")
    a(f"s_lshl_b32 s40, s{S_WM}, 13"); a("s_add_u32 s40, s40, s44")
    a(f"v_add_u32 v{V_T+10}, s40, v7"); a(f"v_xor_b32 v{V_T+11}, 0x4000, v{V_T+10}")
    a(f"s_lshl_b32 s40, s{S_WAVE}, 12"); a(f"s_add_u32 s40, s40, {OSLOT}"); a(f"v_add_u32 v{V_T+3}, s40, v7")
    a("v_and_b32 v11, 7, v0"); a("v_lshlrev_b32 v11, 3, v11")
    a("s_waitcnt lgkmcnt(0)")
    tag_load()
    a("s_getreg_b32 s51, hwreg(HW_REG_XCC_ID, 0, 4)")
    a(f"s_lshl_b32 s40, s{S_GRP}, 3"); a(f"s_add_u32 s40, s40, s{S_HQ}")
    a(f"s_lshl_b32 s{S_OB}, s40, 15"); a(f"s_lshl_b32 s41, s{S_WAVE}, 12"); a(f"s_add_u32 s{S_OB}, s{S_OB}, s41"); a(f"s_add_u32 s{S_OB}, s{S_OB}, {hex(OBUF)}")
    a(f"s_add_u32 s48, s{S_OB}, 16384")
    a("s_lshl_b32 s40, s40, 7"); a(f"s_lshl_b32 s41, s{S_WAVE}, 3"); a("s_add_u32 s40, s40, s41"); a(f"s_add_u32 s{S_FL}, s40, {hex(OFLAG)}")
    a(f"s_lshl_b32 s54, s{S_GRP}, 7"); a(f"s_add_u32 s54, s54, {hex(IDL)}")
    a("s_waitcnt lgkmcnt(0)")
    tag_hash()
    a(f"v_mov_b32 v{V_TAG}, s{S_TAG}"); a(f"v_mov_b32 v{V_TAG+1}, s{S_TAG+1}")
    a(f"s_add_u32 s51, s51, s{S_TAG+1}")
    a(f"v_mov_b32 v{V_P+6}, s{S_TAG}"); a(f"v_mov_b32 v{V_P+7}, s51")
    a("s_barrier")
    stamp()

    def bases(off, span, items):
        res = {}; cur = 0
        for n in items:
            o = off(n)
            if not (0 <= o - cur and o - cur + span <= 65536): cur = (o // 65536) * 65536 if o % 65536 + span <= 65536 else o
            res[n] = cur
        return res
    ITEMS = list(range(16)) + list(range(17, NI))
    BR = bases(offR, 16384 - 4096*3, ITEMS)
    BW = bases(offW, 9216 + 8, ITEMS)
    def rdR(n, s, aa): return f"ds_read_b128 {vr(V_R+4*aa,4)}, v{AR(s,aa)} offset:{offR(n) - BR[n]}"
    def rdW(n, s, b, z): return f"ds_read_b64_tr_b16 {vr(V_W + 16*s + 4*b + 2*z, 2)}, v{V_AW+b} offset:{offW(n) - BW[n] + s*8192 + z*1024}"
    lit = lambda d: hex(d & 0xffffffff)
    WPOS = {(0,0): (0,0), (0,1): (0,1), (0,2): (1,0), (1,0): (1,1), (1,1): (2,0), (1,2): (2,1), (2,0): (3,0), (2,1): (3,1)}
    WAITPOS = {(0,0), (0,1), (0,2), (0,3), (2,0), (3,0)}
    def acc(aa, b): return vr(V_ACC + 16*aa + 4*b, 4)
    def first_reads(n):
        for aa in range(4):
            for b in range(4):
                if (aa, b) in WPOS: a(rdW(n, 0, *WPOS[(aa, b)]))
                if b == 3: a(rdR(n, 0, aa))
    def load_of(G, i): return len(G[i][2]) + (G[i+1][0] if i + 1 < len(G) else 0)
    def inject(G, start, opsl, cap=2, onelds=True):
        i = start
        for op in opsl:
            while i < len(G) and (load_of(G, i) >= cap or (onelds and op.startswith("ds_") and any(x.startswith("ds_") for x in G[i][2]))): i += 1
            if i >= len(G): G[-1][2].append(op); i = len(G) - 1; continue
            G[i][2].append(op)
        return i
    def item_gaps(n, zero, nxt, bar=True):
        G = []
        for s in range(2):
            tk, ts = (n, 1) if s == 0 else (nxt, 0)
            for aa in range(4):
                for b in range(4):
                    post = []
                    C = "0" if (zero and s == 0) else acc(aa, b)
                    m = f"{MF} {acc(aa,b)}, {vr(V_W + 16*s + 4*b, 4)}, {vr(V_R + 4*aa, 4)}, {C}"
                    if tk is not None:
                        if (aa, b) in WPOS: post.append(rdW(tk, ts, *WPOS[(aa, b)]))
                        if b == 3: post.append(rdR(tk, ts, aa))
                    G.append([1 if (aa, b) in WAITPOS else 0, m, post])
        if nxt is not None:
            dW = BW[nxt] - BW[n]; dR = BR[nxt] - BR[n]
            if dW:
                p = inject(G, 10, [f"v_add_u32 v{V_AW+b}, {lit(dW)}, v{V_AW+b}" for b in range(4)]); assert p < 15
            if dR:
                p = inject(G, 4, [f"v_add_u32 v{AR(0,aa)}, {lit(dR)}, v{AR(0,aa)}" for aa in range(4)], cap=3); assert p < 16
                inject(G, 20, [f"v_add_u32 v{AR(1,aa)}, {lit(dR)}, v{AR(1,aa)}" for aa in range(4)])
        if bar: G[15][2].append("s_barrier")
        return G
    def emitG(G):
        for w, m, post in G:
            a(m)
            for x in post: a(x)
    kf = lambda bb, kt, u: V_KF + 16*bb + 8*kt + 4*u
    sp = lambda bb, kt, qt: V_SP + 16*bb + 8*kt + 4*qt
    kaddr = lambda bb, u, z: (V_T + bb) if (u == 0 and z == 0) else (V_T + 4 + 3*bb + 2*u + z - 1)
    kreads = [f"ds_read_b64 {vr(kf(bb,kt,u) + 2*z, 2)}, v{kaddr(bb,u,z)} offset:{kt*2048}" for bb in range(2) for kt in range(2) for u in range(2) for z in range(2)]
    qcvt = lambda aa: [f"v_cvt_pk_bf16_f32 v{V_BF+i}, v{V_ACC+2*i}, v{V_ACC+2*i+1}" for i in range(8*aa, 8*aa+8)]
    def smf(bb, Cin=None):
        r = []
        for u in range(2):
            for kt in range(2):
                for qt in range(2):
                    C = (("0" if Cin is None else vr(Cin + 8*kt + 4*qt, 4)) if u == 0 else vr(sp(bb,kt,qt), 4))
                    r.append(f"{MF} {vr(sp(bb,kt,qt),4)}, {vr(kf(bb,kt,u),4)}, {vr(V_BF + 8*(2*bb+qt) + 4*u, 4)}, {C}")
        return r
    first_reads(0)
    kpos = max(KAT) + 1
    oaddr = lambda j: [V_T + 1, V_T + 7, V_T + 8, V_T + 9][j]
    for n in range(16):
        G = item_gaps(n, n == 0, n + 1 if n < 15 else None, bar=(n < 15))
        if n == 10: inject(G, 16, [f"buffer_load_dwordx2 {vr(V_P+4,2)}, v11, {srd(SRD_WS)}, s54 offen sc1"])
        if n == kpos: inject(G, 0, kreads[:8])
        if n == kpos + 1: inject(G, 0, kreads[8:])
        if n == 14:
            inject(G, 20, [f"v_cmp_ne_u64 vcc, {vr(V_P+4,2)}, {vr(V_P+6,2)}", "s_cmp_eq_u64 vcc, 0", f"s_cselect_b32 s{S_LOC}, {0 if opt.nolocal else 1}, 0"], cap=4)
        if n == 15:
            dW = BW[17] - BW[15]; dR = BR[17] - BR[15]
            ex = [f"v_add_u32 v{V_AW+b}, {lit(dW)}, v{V_AW+b}" for b in range(4)] if dW else []
            ex += [f"v_add_u32 v{V_AR+r}, {lit(dR)}, v{V_AR+r}" for r in range(8)] if dR else []
            ex += [f"v_xor_b32 v{V_AR+r}, s52, v{V_AR+r}" for r in range(8)]
            ex += [f"v_add_u32 v{oaddr(j)}, s53, v{oaddr(j)}" for j in range(4)]
            ex += [f"v_xor_b32 v{V_R+dt}, {32*dt}, v{V_T+2}" for dt in range(0)]
            inject(G, 16, ex[:16]); inject(G, 24, qcvt(0), cap=2); inject(G, 28, qcvt(1), cap=2)
            late = ex[16:]
        emitG(G)
    stamp()
    a.c("---- partial scores of the partner's batch")
    G = [[0, m, []] for m in smf(0)]
    inject(G, 0, qcvt(2) + qcvt(3))
    emitG(G)
    RXS = V_KF
    for x in late[:4]: a(x)
    for j in range(4): a(f"ds_write_b128 v{V_T+10}, {vr(V_SP + 4*j, 4)} offset:{j*1024}")
    a(f"ds_write_b64 v{V_T+10}, {vr(V_TAG,2)} offset:4096")
    for x in late[4:]: a(x)
    for dt in range(1, 8): a(f"v_xor_b32 v{V_R+dt}, {32*dt}, v{V_T+2}")
    flush_passes()
    a(f"s_mov_b32 s44, {opt.spin}")
    a.lab("L_spoll")
    a(f"ds_read_b64 v[2:3], v{V_T+11} offset:4096")
    a("s_sub_u32 s44, s44, 1"); a("s_cmp_eq_u32 s44, 0")
    a("s_waitcnt lgkmcnt(0)")
    a("s_cbranch_scc1 L_sgo")
    a(f"v_cmp_ne_u64 vcc, v[2:3], {vr(V_TAG,2)}")
    a("s_cbranch_vccnz L_spoll")
    a.lab("L_sgo")
    mark[0] = len(a.L)
    for j in range(4): a(f"ds_read_b128 {vr(RXS + 4*j, 4)}, v{V_T+11} offset:{j*1024}")
    for m in smf(1, RXS): a(m)
    S = lambda kt, qt, i: f"v{sp(1,kt,qt) + i}"
    sm = []
    M = [1, 3]; T = [2, 4]
    for qt in range(2):
        m = f"v{M[qt]}"
        sm += [f"v_max3_f32 {m}, {S(0,qt,0)}, {S(0,qt,1)}, {S(0,qt,2)}", f"v_max3_f32 {m}, {m}, {S(0,qt,3)}, {S(1,qt,0)}",
               f"v_max3_f32 {m}, {m}, {S(1,qt,1)}, {S(1,qt,2)}", f"v_max_f32 {m}, {m}, {S(1,qt,3)}"]
    def xl(op):
        o = []
        for sw in ("v_permlane16_swap_b32", "v_permlane32_swap_b32"):
            o += ["v_mov_b32 v2, v1", "v_mov_b32 v4, v3", f"{sw} v1, v2", f"{sw} v3, v4", f"{op} v1, v1, v2", f"{op} v3, v3, v4"]
        return o
    sm += xl("v_max_f32")
    sm += [f"v_mul_f32 v1, s{S_C}, v1", f"v_mul_f32 v3, s{S_C}, v3"]
    idx8 = [(kt, i) for kt in range(2) for i in range(4)]
    for qt in range(2):
        for kt, i in idx8: sm.append(f"v_fma_f32 {S(kt,qt,i)}, {S(kt,qt,i)}, s{S_C}, -v{M[qt]}")
    for qt in range(2):
        for kt, i in idx8: sm.append(f"v_exp_f32 {S(kt,qt,i)}, {S(kt,qt,i)}")
    for qt in range(2):
        m = f"v{M[qt]}"; t = f"v{T[qt]}"
        sm += [f"v_add_f32 {m}, {S(0,qt,0)}, {S(0,qt,1)}", f"v_add_f32 {t}, {S(0,qt,2)}, {S(0,qt,3)}",
               f"v_add_f32 {m}, {m}, {S(1,qt,0)}", f"v_add_f32 {t}, {t}, {S(1,qt,1)}",
               f"v_add_f32 {m}, {m}, {S(1,qt,2)}", f"v_add_f32 {t}, {t}, {S(1,qt,3)}", f"v_add_f32 {m}, {m}, {t}"]
    sm += xl("v_add_f32")
    sm += ["v_rcp_f32 v1, v1", "v_rcp_f32 v3, v3"]
    for qt in range(2):
        for kt, i in idx8: sm.append(f"v_mul_f32 {S(kt,qt,i)}, {S(kt,qt,i)}, v{M[qt]}")
        for kt in range(2):
            for h in range(2): sm.append(f"v_cvt_pk_bf16_f32 v{V_P + 4*qt + 2*kt + h}, {S(kt,qt,2*h)}, {S(kt,qt,2*h+1)}")
    nb = opt.smbar
    for x in sm[:nb]: a(x)
    a("s_barrier")
    vaddr = lambda dt: (V_T + 2) if dt == 0 else (V_R + dt)
    vreads = [f"ds_read_b64_tr_b16 {vr(V_W + 4*dt + 2*z, 2)}, v{vaddr(dt)} offset:{VSLOT + z*4096}" for dt in range(8) for z in range(2)]
    rest = sm[nb:]
    for i, x in enumerate(vreads):
        a(x)
        if i < len(rest): a(rest[i])
    for x in rest[len(vreads):]: a(x)
    stamp()
    a.c("---- O^T = V^T P^T for the own batch, staged as the R image of items 17/18")
    ot = lambda dt, qt: V_OUT + 8*dt + 4*qt
    G = [[0, f"{MF} {vr(ot(dt,qt),4)}, {vr(V_W + 4*dt, 4)}, {vr(V_P + 4*qt, 4)}, 0", []] for dt in range(8) for qt in range(2)]
    ow = []
    for dt in range(8):
        for qt in range(2):
            d = V_BF + 4*dt + 2*qt; t = ot(dt, qt)
            ow += [f"v_cvt_pk_bf16_f32 v{d}, v{t}, v{t+1}", f"v_cvt_pk_bf16_f32 v{d+1}, v{t+2}, v{t+3}",
                   f"ds_write_b64 v{oaddr(dt % 4)}, {vr(d,2)} offset:{qt*2048 + (dt//4)*16384}"]
    inject(G, 4, ow, cap=3, onelds=False)
    emitG(G)
    OR = V_OUT
    for c2 in range(2):
        for j in range(4): a(f"ds_read_b128 {vr(OR + 16*c2 + 4*j, 4)}, v{V_T+3} offset:{c2*16384 + j*1024}")
    a("s_waitcnt lgkmcnt(0)")
    flush_passes()
    a(f"s_cmp_eq_u32 s{S_LOC}, 0"); a("s_cbranch_scc1 L_orem")
    ost = lambda fl: [f"buffer_store_dwordx4 {vr(OR + 16*c2 + 4*j, 4)}, v7, {srd(SRD_WS)}, s{[S_OB, 48][c2]} offen offset:{j*1024} {fl}" for c2 in range(2) for j in range(4)]
    for x in ost(""): a(x)
    a("s_branch L_odone")
    a.lab("L_orem")
    for x in ost("sc1"): a(x)
    a.lab("L_odone")
    stamp()
    mark[0] = len(a.L)
    flag_ops = ["s_waitcnt vmcnt(0)", f"s_cmp_eq_u32 s{S_LOC}, 0", "s_cbranch_scc1 L_frem",
                f"buffer_store_dwordx2 {vr(V_TAG,2)}, v{V_Z}, {srd(SRD_WS)}, s{S_FL} offen", "s_branch L_fdone", "L_frem:",
                f"buffer_store_dwordx2 {vr(V_TAG,2)}, v{V_Z}, {srd(SRD_WS)}, s{S_FL} offen sc1", "L_fdone:"]
    if opt.flagpos < 0:
        for x in flag_ops: a(x)
    a("s_barrier")
    first_reads(17)
    for n in range(17, NI):
        G = item_gaps(n, n == 17, n + 1 if n < NI - 1 else None, bar=(n != 17 and n < NI - 1))
        if n == 17 and opt.flagpos >= 0:
            if opt.hstamps: flag_ops = [stamp_s()] + flag_ops[:1] + [stamp_s()] + flag_ops[1:]
            G[opt.flagpos][2].extend(flag_ops)
        if n == NI - 1: Glast = G; break
        emitG(G)
        if opt.hstamps and n in (17, 18, 19, 20, 22, 24): stamp()
    pre = [f"s_lshl_b32 s40, s{S_CL}, 5", f"s_add_u32 s40, s40, s{S_IDX}", f"s_lshl_b32 s41, s{S_KQ}, 2", f"s_add_u32 s41, s41, s{S_WAVE}",
           "s_lshl_b32 s43, s41, 11", f"s_add_u32 s43, s43, {hex(XBUF)}"]
    for t in (1, 2, 3):
        pre += [f"s_xor_b32 s42, s{S_KQ}, {t}", "s_lshl_b32 s42, s42, 3", "s_add_u32 s42, s42, s40", f"s_lshl_b32 s{52+t}, s42, 7",
                "s_lshl_b32 s42, s42, 15", f"s_add_u32 s{44+t}, s42, s43"]
    pre += ["s_lshl_b32 s43, s41, 3", f"s_add_u32 s43, s43, {hex(XFLAG)}"] + [f"s_add_u32 s{52+t}, s{52+t}, s43" for t in (1, 2, 3)]
    G = Glast[:16] + Glast[20:24] + Glast[24:28] + Glast[28:32] + Glast[16:20]
    inject(G, 0, pre, cap=3)
    def send(t):
        d = V_BF + 8*t
        o = [f"v_cvt_pk_bf16_f32 v{d+j}, v{V_ACC+16*t+2*j}, v{V_ACC+16*t+2*j+1}" for j in range(8)]
        st = [f"buffer_store_dwordx4 {vr(d + 4*g, 4)}, v7, {srd(SRD_WS)}, s{44+t} offen offset:{g*1024} sc1" for g in range(2)]
        return o[:4] + st[:1] + o[4:] + st[1:]
    inject(G, 22, send(1) + send(2) + send(3), cap=3)
    emitG(G)
    stamp()
    for t in (1, 2, 3):
        a(f"s_waitcnt vmcnt({2*(3-t) + (t-1)})")
        a(f"buffer_store_dwordx2 {vr(V_TAG,2)}, v{V_Z}, {srd(SRD_WS)}, s{52+t} offen sc1")
    a(f"s_lshl_b32 s42, s{S_KQ}, 3"); a("s_add_u32 s42, s42, s40")
    a(f"s_lshl_b32 s56, s42, 7"); a(f"s_lshl_b32 s43, s{S_WAVE}, 3"); a("s_add_u32 s56, s56, s43"); a(f"s_add_u32 s56, s56, {hex(XFLAG)}")
    a("v_and_b32 v3, 3, v0"); a("v_min_u32 v3, 2, v3"); a(f"v_add_u32 v3, s{S_KQ}, v3"); a("v_add_u32 v3, 1, v3"); a("v_and_b32 v3, 3, v3"); a("v_lshlrev_b32 v3, 5, v3")
    a("s_lshl_b32 s42, s42, 15"); a(f"s_lshl_b32 s43, s{S_WAVE}, 11"); a("s_add_u32 s42, s42, s43"); a(f"s_add_u32 s42, s42, {hex(XBUF)}")
    for j in range(3):
        a(f"s_add_u32 s43, s{S_KQ}, {j+1}"); a("s_and_b32 s43, s43, 3"); a("s_lshl_b32 s43, s43, 13"); a(f"s_add_u32 s{51+j}, s43, s42")
    a("v_lshrrev_b32 v4, 3, v0"); a("v_lshlrev_b32 v4, 12, v4"); a("v_and_b32 v5, 7, v0"); a("v_lshl_add_u32 v4, v5, 4, v4")
    a(f"s_lshr_b32 s41, s{S_KQ}, 1"); a(f"s_xor_b32 s41, s41, s{S_WAVE}"); a("s_xor_b32 s41, s41, 1"); a("s_lshl_b32 s41, s41, 17")
    a(f"s_lshl_b32 s40, s{S_RB}, 19"); a("s_add_u32 s40, s40, s41")
    a(f"s_and_b32 s41, s{S_KQ}, 1"); a("s_lshl_b32 s41, s41, 16"); a("s_add_u32 s40, s40, s41")
    a(f"s_lshl_b32 s41, s{S_BR}, 11"); a("s_add_u32 s40, s40, s41")
    a(f"s_lshl_b32 s41, s{S_IDX}, 8"); a("s_add_u32 s40, s40, s41")
    a(f"s_lshl_b32 s41, s{S_WN}, 7"); a("s_add_u32 s40, s40, s41")
    a("s_add_u32 s41, s40, 0x8000")
    FS = (slot(NI - 1) + 2) % 5 * SLOT
    a(f"s_lshl_b32 s42, s{S_WAVE}, 11"); a(f"s_add_u32 s42, s42, {FS}")
    a("v_and_b32 v1, 15, v0"); a("v_lshrrev_b32 v2, 5, v0"); a("v_xor_b32 v2, v2, v5"); a("v_lshlrev_b32 v2, 4, v2")
    a("v_lshl_add_u32 v1, v1, 7, v2"); a("v_bfe_u32 v2, v0, 4, 1"); a("v_lshl_add_u32 v1, v2, 3, v1"); a("v_add_u32 v1, s42, v1")
    for nt in range(1, 4): a(f"v_xor_b32 v{12+nt}, {32*nt}, v1")
    a("v_lshrrev_b32 v2, 3, v0"); a("v_xor_b32 v5, v5, v2"); a("v_lshlrev_b32 v5, 4, v5"); a("v_lshl_add_u32 v2, v2, 7, v5"); a("v_add_u32 v2, s42, v2")
    a(f"s_mov_b32 s44, {opt.spin}")
    flush_passes()
    if opt.verbose:
        for r in rep: print("pad", r)
    RX = V_OUT
    a.lab("L_xpoll")
    a(f"buffer_load_dwordx2 v[8:9], v3, {srd(SRD_WS)}, s56 offen sc1")
    a("s_sub_u32 s44, s44, 1"); a("s_cmp_eq_u32 s44, 0")
    a("s_waitcnt vmcnt(0)")
    a("s_cbranch_scc1 L_xrd")
    a(f"v_cmp_ne_u64 vcc, v[8:9], {vr(V_TAG,2)}")
    a("s_cbranch_vccnz L_xpoll")
    a.lab("L_xrd")
    stamp()
    for j in range(3):
        for g in range(2): a(f"buffer_load_dwordx4 {vr(RX + 8*j + 4*g, 4)}, v7, {srd(SRD_WS)}, s{51+j} offen offset:{g*1024} sc1")
    for j in range(3):
        a(f"s_waitcnt vmcnt({4 - 2*j})")
        for i in range(8):
            r = RX + 8*j + i
            a(f"v_lshlrev_b32 v5, 16, v{r}"); a(f"v_and_b32 v6, 0xffff0000, v{r}")
            a(f"v_add_f32 v{V_ACC+2*i}, v{V_ACC+2*i}, v5"); a(f"v_add_f32 v{V_ACC+2*i+1}, v{V_ACC+2*i+1}, v6")
    for i in range(8): a(f"v_cvt_pk_bf16_f32 v{V_R+i}, v{V_ACC+2*i}, v{V_ACC+2*i+1}")
    for nt in range(4): a(f"ds_write_b64 v{12+nt if nt else 1}, {vr(V_R+2*nt,2)}")
    a(f"ds_read_b128 {vr(V_R+8,4)}, v2"); a(f"ds_read_b128 {vr(V_R+12,4)}, v2 offset:1024")
    a("s_waitcnt lgkmcnt(1)")
    a(f"buffer_store_dwordx4 {vr(V_R+8,4)}, v4, {srd(SRD_OUT)}, s40 offen {opt.outflags}")
    a("s_waitcnt lgkmcnt(0)")
    a(f"buffer_store_dwordx4 {vr(V_R+12,4)}, v4, {srd(SRD_OUT)}, s41 offen {opt.outflags}")
    a(f"s_or_b32 s40, s{S_KQ}, s{S_IDX}"); a(f"s_or_b32 s40, s40, s{S_WAVE}"); a("s_cmp_lg_u32 s40, 0"); a("s_cbranch_scc1 L_noep")
    a(f"s_lshl_b32 s40, s{S_CL}, 7")
    a(f"buffer_store_dwordx2 {vr(V_TAG,2)}, v{V_Z}, {srd(SRD_WS)}, s40 offen {opt.outflags}")
    a.lab("L_noep")
    if opt.fixdur:
        a.lab("L_fix")
        a("s_memrealtime s[92:93]"); a("s_waitcnt lgkmcnt(0)"); a("s_sub_u32 s92, s92, s98")
        a(f"s_cmp_lt_u32 s92, {opt.fixdur}"); a("s_cbranch_scc1 L_fix")
    if opt.stamps:
        a("s_waitcnt vmcnt(0)")
        stamp()
        a(f"s_cmp_lg_u32 s{S_WAVE}, 0"); a("s_cbranch_scc1 L_end2")
        a("s_waitcnt lgkmcnt(0)")
        n = nst[0]
        a(f"s_mul_i32 s40, s2, {n*8}"); a("s_add_u32 s40, s40, 0x8000000")
        a(f"s_add_u32 s42, s{SRD_WS}, s40"); a(f"s_addc_u32 s43, s{SRD_WS+1}, 0")
        for i in range(n):
            a(f"v_mov_b32 v8, s{S_ST+2*i}"); a(f"v_mov_b32 v9, s{S_ST+2*i+1}")
            a(f"global_store_dwordx2 v{V_Z}, v[8:9], s[42:43] offset:{i*8}"); a("s_nop 1")
        a.lab("L_end2")
    a("s_endpgm")
    tail = ['.section .rodata,"a"', ".p2align 6", f".amdhsa_kernel {NAME}_kernel"]
    tail += ["  .amdhsa_" + l for l in ("next_free_vgpr 256", "next_free_sgpr 102", "accum_offset 256", "group_segment_fixed_size 0", "kernarg_size 104",
              "user_sgpr_count 2", "user_sgpr_kernarg_segment_ptr 1", "system_sgpr_workgroup_id_x 1")]
    tail += [".end_amdhsa_kernel"]
    txt = "\n".join(head + [(x if x.endswith(":") else "    " + x) for x in a.L] + tail) + "\n"
    return txt, nst[0], rep

def parse(argv):
    ap = argparse.ArgumentParser()
    ap.add_argument("-o", default="cdna_kernels/" + NAME + ".s")
    for f in ("stamps", "cyc", "lstamps", "nodma", "nomfma", "samek", "hstamps", "verbose", "pairs", "nolocal"): ap.add_argument("--" + f, action="store_true")
    ap.add_argument("--prio", type=int, default=0)
    ap.add_argument("--spin", type=int, default=100000)
    ap.add_argument("--fixdur", type=int, default=0)
    ap.add_argument("--q0", type=int, default=2)
    ap.add_argument("--q2", type=int, default=4)
    ap.add_argument("--p1", type=int, default=4)
    ap.add_argument("--p2", default="8")
    ap.add_argument("--p3", type=int, default=12)
    ap.add_argument("--pm", default="4")
    ap.add_argument("--kat", default="")
    ap.add_argument("--smbar", type=int, default=60)
    ap.add_argument("--flagpos", type=int, default=4)
    ap.add_argument("--outflags", default="sc1")
    ap.add_argument("--rflags", default="sc1")
    ap.add_argument("--qr", type=int, default=2)
    ap.add_argument("--ot", type=int, default=-1)
    ap.add_argument("--two", type=int, default=1)
    ap.add_argument("--pstart", type=int, default=18)
    ap.add_argument("--pollf", default="sc1")
    return ap.parse_args(argv)

if __name__ == "__main__":
    opt = parse(sys.argv[1:])
    t, n, rep = gen(opt)
    open(opt.o, "w").write(t)
    print("wrote", opt.o, "stamps", n, "lines", t.count("\n"), "pads", len(rep))
```
